```python
import torch

def _softmax(x, axis=-1):
    return torch.softmax(x, dim=axis)
def _gelu(x):
    return torch.nn.functional.gelu(x, approximate="tanh")
def _silu(x):
    return torch.nn.functional.silu(x)
def _sigmoid(x):
    return torch.sigmoid(x)
def _layernorm(x, axis=-1, eps=1e-5):
    m = x.mean(dim=axis, keepdim=True)
    v = x.var(dim=axis, keepdim=True, unbiased=False)
    return (x - m) / torch.sqrt(v + eps)
def _scatter_add(tgt, idx, src, axis=0):
    return tgt.clone().index_add_(axis, idx, src)
def _segment_sum(src, seg, n):
    out = torch.zeros((n,) + src.shape[1:], dtype=src.dtype)
    return out.index_add_(0, seg, src)
def _pad(x, pw):
    flat = tuple(v for pair in reversed(pw) for v in pair)
    return torch.nn.functional.pad(x, flat)

kernel_name = 'standalone__cheap_equivariant_egnn__graph'

def setup_inputs():

    _w = (lambda a: (lambda t: t.to(torch.bfloat16) if t.is_floating_point() else t)(torch.as_tensor(a)))
    N, deg, D, De = 10000, 16, 256, max(0, 1)
    E = N * deg
    return {
        "h": _w((lambda *s: torch.randn(*s, dtype=torch.bfloat16) * 0.2)(N, D)),
        "pos": _w((lambda *s: torch.randn(*s, dtype=torch.bfloat16) * 0.8)(N, 3)),
        "e_attr": _w((lambda *s: torch.randn(*s, dtype=torch.bfloat16) * 0.8)(E, De)),
        "src": _w((lambda lo, hi, *s: torch.randint(lo, hi, s))(0, N, E).to(torch.int64)),
        "dst": _w((lambda lo, hi, *s: torch.randint(lo, hi, s))(0, N, E).to(torch.int64)),
        "w_e": _w(0.1 * (lambda *s: torch.randn(*s, dtype=torch.bfloat16) * 0.8)(2 * D + 1 + De, D)),
        "w_x": _w(0.1 * (lambda *s: torch.randn(*s, dtype=torch.bfloat16) * 0.2)(D, 1)),
        "w_h": _w(0.1 * (lambda *s: torch.randn(*s, dtype=torch.bfloat16) * 0.2)(2 * D, D)),
    }

def reference(h, pos, e_attr, src, dst, w_e, w_x, w_h):
    N, D = h.shape[0], h.shape[1]
    diff = pos[dst] - pos[src]
    dist2 = torch.sum(diff * diff, axis=-1, keepdims=True)
    e_in = torch.concatenate([h[dst], h[src], dist2, e_attr], axis=-1)
    m_ij = _silu(e_in @ w_e)
    coord_scale = m_ij @ w_x
    pos_new = pos + _segment_sum(diff * coord_scale, dst, N)
    m_i = _segment_sum(m_ij, dst, N)
    h_new = h + _silu(torch.concatenate([h, m_i], axis=-1) @ w_h)
    return h_new, pos_new
```

```python
import re


class Asm:
    def __init__(self):
        self.lines = []

    def __call__(self, text):
        for ln in text.split("\n"):
            ln = ln.strip()
            if ln:
                self.lines.append(ln)

    def label(self, name):
        self.lines.append(name + ":")

    def comment(self, text):
        self.lines.append("; " + text)

    def text(self):
        out = []
        for ln in self.lines:
            if ln.endswith(":") or ln.startswith(".") or ln.startswith(";"):
                out.append(ln)
            else:
                out.append("    " + ln)
        return "\n".join(out) + "\n"


def v(n, cnt=1):
    return f"v{n}" if cnt == 1 else f"v[{n}:{n + cnt - 1}]"


def s(n, cnt=1):
    return f"s{n}" if cnt == 1 else f"s[{n}:{n + cnt - 1}]"


def interleave(main, extra, first=0, every=None):
    main = list(main)
    extra = list(extra)
    if not extra:
        return main
    if every is None:
        every = max(1, (len(main) - first) // len(extra))
    out = []
    k = 0
    for i, ins in enumerate(main):
        while k < len(extra) and i >= first and (i - first) == k * every:
            item = extra[k]
            out.extend(item if isinstance(item, list) else [item])
            k += 1
        out.append(ins)
    while k < len(extra):
        item = extra[k]
        out.extend(item if isinstance(item, list) else [item])
        k += 1
    return out


TRANS = ("v_exp_f32", "v_log_f32", "v_rcp_f32", "v_rsq_f32", "v_sqrt_f32", "v_sin_f32", "v_cos_f32")
_REG = re.compile(r"^-?(?:abs\()?([vsa])(?:(\d+)|\[(\d+):(\d+)\])\)?$")


def regs_of(op):
    op = op.strip()
    if op in ("vcc", "exec", "m0", "scc"):
        return {op}
    if op in ("vcc_lo", "vcc_hi"):
        return {"vcc"}
    m = _REG.match(op)
    if not m:
        return set()
    k = m.group(1)
    if m.group(2) is not None:
        return {k + m.group(2)}
    return {k + str(i) for i in range(int(m.group(3)), int(m.group(4)) + 1)}


class Ins:
    def __init__(self, text, idx):
        self.text = text
        self.idx = idx
        body = text.split(";")[0].strip()
        parts = body.split(None, 1)
        self.op = parts[0]
        rest = parts[1] if len(parts) > 1 else ""
        ops = []
        for tok in rest.split(","):
            tok = tok.strip()
            if tok:
                ops.append(tok.split()[0])
        self.ops = ops
        self.mods = rest
        op = self.op
        self.is_mfma = op.startswith("v_mfma")
        self.is_valu = op.startswith("v_") and not self.is_mfma
        self.is_trans = any(op.startswith(t) for t in TRANS)
        self.is_ds = op.startswith("ds_")
        self.is_vmem = op.startswith("buffer_") or op.startswith("global_")
        self.is_salu = op.startswith("s_")
        self.is_dpp = "_dpp" in op or "row_" in rest or "quad_perm" in rest
        self.defs, self.uses = set(), set()
        self.srcA = self.srcB = self.srcC = set()
        R = [regs_of(o) for o in ops]
        if self.is_mfma:
            self.defs = R[0]
            self.srcA, self.srcB = R[1], R[2]
            self.srcC = R[3] if len(R) > 3 else set()
            self.uses = self.srcA | self.srcB | self.srcC
            self.passes = 8 if "32x32x16" in op else 4
        elif self.is_valu:
            if op.startswith("v_cmp"):
                self.defs = R[0]
                self.uses = set().union(*R[1:])
                if op.startswith("v_cmpx"):
                    self.defs |= {"exec"}
            elif op.startswith("v_permlane32_swap") or op.startswith("v_permlane16_swap"):
                self.defs = R[0] | R[1]
                self.uses = R[0] | R[1]
            elif op.startswith("v_add_co") or op.startswith("v_addc_co") or op.startswith("v_sub_co"):
                self.defs = R[0] | R[1]
                self.uses = set().union(*R[2:])
            else:
                self.defs = R[0]
                self.uses = set().union(*R[1:]) if len(R) > 1 else set()
                if op.startswith("v_fmac") or self.is_dpp or op.startswith("v_writelane"):
                    self.uses |= R[0]
        elif self.is_ds:
            if op.startswith("ds_read") or "_rtn" in op or op.startswith("ds_bpermute") or op.startswith("ds_swizzle"):
                self.defs = R[0]
                self.uses = set().union(*R[1:]) if len(R) > 1 else set()
            else:
                self.uses = set().union(*R)
        elif self.is_vmem:
            lds = re.search(r"\blds\b", rest) is not None
            if "load" in op and not lds:
                self.defs = R[0]
                self.uses = set().union(*R[1:])
            else:
                self.uses = set().union(*R)
                if lds:
                    self.uses |= {"m0"}
            self.wide_store_data = R[0] if ("store_dwordx4" in op or "store_dwordx3" in op) else set()
        elif self.is_salu:
            if op.startswith("s_cmp") or op.startswith("s_bitcmp") or op.startswith("s_cbranch") or op in (
                    "s_waitcnt", "s_nop", "s_barrier", "s_endpgm", "s_branch", "s_setprio", "s_sleep",
                    "s_set_gpr_idx_off", "s_set_gpr_idx_on", "s_setpc_b64"):
                self.uses = set().union(*R) if R else set()
            else:
                self.defs = R[0] if R else set()
                self.uses = set().union(*R[1:]) if len(R) > 1 else set()
                if "saveexec" in op:
                    self.defs |= {"exec"}
        self.states = 1
        if op == "s_nop":
            self.states = int(ops[0], 0) + 1


def required(p, c):
    need = 0
    vdefs = {r for r in p.defs if r[0] in "va" and r not in ("vcc",)}
    sdefs = {r for r in p.defs if r[0] == "s" or r == "vcc"}
    if p.is_mfma:
        long_ = {8: 12, 4: 8}[p.passes]
        if c.is_mfma:
            if vdefs & (c.srcA | c.srcB):
                need = max(need, long_)
            if vdefs & c.srcC:
                if not (c.srcC == p.defs and c.passes == p.passes):
                    need = max(need, {8: 10, 4: 6}[p.passes])
            elif vdefs & c.defs and c.passes != p.passes:
                need = max(need, long_)
        elif c.is_valu or c.is_ds or c.is_vmem:
            if vdefs & (c.uses | c.defs):
                need = max(need, long_)
            if c.is_valu and (p.srcC & c.defs):
                need = max(need, {8: 7, 4: 3}[p.passes])
            if (c.is_ds or c.is_vmem) and (p.srcC & c.defs):
                need = max(need, {8: 7, 4: 3}[p.passes])
    if p.is_valu:
        if c.is_mfma and vdefs & c.uses:
            need = max(need, 2)
        if c.is_mfma and "exec" in p.defs:
            need = max(need, 4)
        if c.is_valu:
            if c.is_dpp and vdefs & c.uses:
                need = max(need, 2)
            if c.is_dpp and "exec" in p.defs:
                need = max(need, 5)
            if c.op.startswith("v_permlane") and vdefs & c.uses:
                need = max(need, 2)
            if (c.op.startswith("v_readlane") or c.op.startswith("v_readfirstlane")) and vdefs & c.uses:
                need = max(need, 1)
            if sdefs & c.uses:
                need = max(need, 2)
            if (c.op.startswith("v_readlane") or c.op.startswith("v_writelane")) and sdefs & regs_of(c.ops[-1]):
                need = max(need, 4)
            if p.is_trans and not c.is_trans and vdefs & c.uses:
                need = max(need, 1)
        if c.is_vmem and sdefs & c.uses:
            need = max(need, 5)
        if c.is_salu and sdefs & c.uses:
            need = max(need, 1)
    if p.is_salu and "m0" in p.defs and (c.is_vmem and "m0" in c.uses):
        need = max(need, 1)
    if p.is_vmem and getattr(p, "wide_store_data", set()) & c.defs:
        need = max(need, 2 if c.is_valu else 1)
    return need


def check_hazards(text, horizon=14):
    ins, labels = [], {}
    for ln in text.split("\n"):
        t = ln.split(";")[0].strip()
        if not t or t.startswith("."):
            continue
        if t.endswith(":"):
            labels[t[:-1]] = len(ins)
            continue
        ins.append(Ins(t, len(ins)))

    def succ(i):
        x = ins[i]
        if x.op == "s_endpgm" or x.op == "s_setpc_b64":
            return []
        if x.op == "s_branch":
            return [labels[x.ops[0]]]
        out = [i + 1] if i + 1 < len(ins) else []
        if x.op.startswith("s_cbranch"):
            out.append(labels[x.ops[0]])
        return out

    problems = []
    for p in ins:
        if not (p.is_mfma or p.is_valu or p.is_salu or p.is_vmem):
            continue
        seen = set()
        stack = [(j, 0) for j in succ(p.idx)]
        while stack:
            j, d = stack.pop()
            if j >= len(ins) or (j, d) in seen or d >= horizon:
                continue
            seen.add((j, d))
            c = ins[j]
            need = required(p, c)
            if need > d:
                problems.append(f"need {need} have {d}: [{p.idx}] {p.text}  ->  [{c.idx}] {c.text}")
            for k in succ(j):
                stack.append((k, d + c.states))
    return sorted(set(problems))
```

```python
N, E, D = 10000, 160000, 256
NB = 250
NC = 250
CH = 640
LOG2E = 0x3fb8aa3b
LN2 = 0x3f317218

BP_OFF, BP_SIZE = 0, N * 512
REC_OFF, REC_SIZE = 5120000, E * 8
DESC_OFF, DESC_ROW = 6400000, NC * 8
DESC_SIZE = NB * DESC_ROW
FR_OFF, FR_ONE = 6901760, 131072
WS_USED = FR_OFF + 3 * FR_ONE

H_SIZE = N * 512
POS_SIZE = N * 6
WE_SIZE = 514 * 512
WH_SIZE = 512 * 512
OUT_SIZE = N * 512 + N * 6


def colmap(x):
    b = [(x >> i) & 1 for i in range(6)]
    return (b[5] << 5) | (b[2] << 4) | (b[4] << 3) | (b[3] << 2) | (b[1] << 1) | b[0]


def pos2col(p):
    return (p & ~63) | colmap(p & 63)
```

```python
from asmlib import Asm, v, s
from cfg import *

LH, LW, LBINS = 0, 40960, 106496
K1_LDS = LBINS + 1280 * 4


def srd(a, d, base, size):
    a(f"s_mov_b32 {s(d)}, {s(base)}")
    a(f"s_and_b32 {s(d + 1)}, {s(base + 1)}, 0xffff")
    a(f"s_mov_b32 {s(d + 2)}, {size}")
    a(f"s_mov_b32 {s(d + 3)}, 0x20000")


def srd_off(a, d, base, off, size):
    a(f"s_add_u32 {s(d)}, {s(base)}, {off}")
    a(f"s_addc_u32 {s(d + 1)}, {s(base + 1)}, 0")
    a(f"s_and_b32 {s(d + 1)}, {s(d + 1)}, 0xffff")
    a(f"s_mov_b32 {s(d + 2)}, {size}")
    a(f"s_mov_b32 {s(d + 3)}, 0x20000")


def wave_scan(a, r, full=True):
    for sh in (1, 2, 4, 8):
        a("s_nop 1")
        a(f"v_add_u32_dpp {v(r)}, {v(r)}, {v(r)} row_shr:{sh} row_mask:0xf bank_mask:0xf bound_ctrl:0")
    a("s_nop 1")
    a(f"v_add_u32_dpp {v(r)}, {v(r)}, {v(r)} row_bcast:15 row_mask:0xa bank_mask:0xf")
    if full:
        a("s_nop 1")
        a(f"v_add_u32_dpp {v(r)}, {v(r)}, {v(r)} row_bcast:31 row_mask:0xc bank_mask:0xf")


def gen_k1(a):
    S_H, S_WE, S_DST, S_SRC, S_EA, S_WS, S_FR, S_DESC = 24, 28, 32, 36, 40, 44, 48, 52
    sWV, sRB, sCB, sGEMM, sBIN, sFRAG, sT0, sT1, sT2, sSO = 56, 57, 58, 59, 60, 61, 62, 63, 64, 65
    vLANE, vDST, vSRC, vEA, vBIN, vRANK, vREC = 1, 2, 3, 4, 5, 6, 8
    vT0, vT1, vT2 = 10, 11, 25
    vFL, vFP, vFA, vFC = 12, 20, 24, 26
    vA, vQ, vDESC, vDA = 32, 52, 74, 82
    vACC, vHF, vWF, vHB, vWB, vOUT = 88, 104, 112, 144, 148, 152

    a.label("prep_kernel")
    a("s_cmp_ge_u32 s2, 256")
    a("s_cbranch_scc1 K1_END")
    a("s_load_dwordx16 s[4:19], s[0:1], 0")
    a("s_load_dwordx2 s[20:21], s[0:1], 80")
    a(f"v_lshrrev_b32 {v(vT0)}, 6, v0")
    a(f"v_and_b32 {v(vLANE)}, 63, v0")
    a(f"v_readfirstlane_b32 {s(sWV)}, {v(vT0)}")
    a(f"s_lshr_b32 {s(sT0)}, s2, 4")
    a(f"s_lshl_b32 {s(sT0)}, {s(sT0)}, 3")
    a(f"s_and_b32 {s(sT1)}, s2, 7")
    a(f"s_or_b32 {s(sRB)}, {s(sT0)}, {s(sT1)}")
    a(f"s_bfe_u32 {s(sCB)}, s2, 0x10003")
    a(f"s_cmp_lt_u32 {s(sRB)}, 125")
    a(f"s_cselect_b32 {s(sGEMM)}, 1, 0")
    a(f"s_cmp_lt_u32 s2, {NC}")
    a(f"s_cselect_b32 {s(sBIN)}, 1, 0")
    a(f"s_cmp_lt_u32 s2, 192")
    a(f"s_cselect_b32 {s(sFRAG)}, 1, 0")
    a(f"s_cmp_ge_u32 {s(sWV)}, 8")
    a(f"s_cselect_b32 {s(sFRAG)}, {s(sFRAG)}, 0")
    a(f"s_mul_i32 {s(sT0)}, s2, {CH}")
    a(f"v_add_u32 {v(vT0)}, {s(sT0)}, v0")
    a(f"v_lshlrev_b32 {v(vT1)}, 2, {v(vT0)}")
    a(f"v_lshlrev_b32 {v(vT0)}, 1, {v(vT0)}")
    a(f"v_mul_u32_u24 {v(vDA)}, {4 * DESC_ROW}, {v(vLANE)}")
    a(f"s_lshl_b32 {s(sT0)}, s2, 3")
    a(f"v_add_u32 {v(vDA)}, {s(sT0)}, {v(vDA)}")
    for j in range(1, 4):
        a(f"v_add_u32 {v(vDA + j)}, {j * DESC_ROW}, {v(vDA)}")
    a(f"s_lshl_b32 {s(sT0)}, s2, 11")
    a(f"s_add_u32 {s(sT0)}, {s(sT0)}, {FR_OFF - 512 * 16}")
    a(f"v_lshl_add_u32 {v(vFA)}, v0, 4, {s(sT0)}")
    a("s_waitcnt lgkmcnt(0)")
    srd(a, S_DST, 12, E * 4)
    srd(a, S_SRC, 10, E * 4)
    srd(a, S_EA, 8, E * 2)
    a(f"buffer_load_dword {v(vDST)}, {v(vT1)}, {s(S_DST, 4)}, 0 offen")
    a(f"buffer_load_dword {v(vSRC)}, {v(vT1)}, {s(S_SRC, 4)}, 0 offen")
    a(f"buffer_load_ushort {v(vEA)}, {v(vT0)}, {s(S_EA, 4)}, 0 offen")
    srd(a, S_H, 4, H_SIZE)
    srd(a, S_WE, 14, WE_SIZE)
    srd(a, S_WS, 20, WS_USED)
    srd_off(a, S_DESC, 20, DESC_OFF, DESC_SIZE)

    a(f"s_cmp_eq_u32 {s(sFRAG)}, 0")
    a("s_cbranch_scc1 K1_NOFRAG")
    a(f"s_cmp_lt_u32 s2, 64")
    a(f"s_cselect_b32 {s(S_FR)}, s14, s18")
    a(f"s_cselect_b32 {s(S_FR + 1)}, s15, s19")
    a(f"s_and_b32 {s(S_FR + 1)}, {s(S_FR + 1)}, 0xffff")
    a(f"s_mov_b32 {s(S_FR + 2)}, {WH_SIZE}")
    a(f"s_mov_b32 {s(S_FR + 3)}, 0x20000")
    a(f"s_and_b32 {s(sT0)}, s2, 63")
    a(f"s_lshl_b32 {s(sT0)}, {s(sT0)}, 1")
    a(f"s_add_u32 {s(sT0)}, {s(sT0)}, {s(sWV)}")
    a(f"s_sub_u32 {s(sT0)}, {s(sT0)}, 8")
    a(f"v_and_b32 {v(vT0)}, 15, {v(vLANE)}")
    a(f"v_lshrrev_b32 {v(vT1)}, 4, {v(vLANE)}")
    a(f"s_lshr_b32 {s(sT1)}, {s(sT0)}, 4")
    a(f"s_lshl_b32 {s(sT1)}, {s(sT1)}, 5")
    a(f"s_bfe_u32 {s(sT2)}, {s(sT0)}, 0x10003")
    a(f"s_cmp_lt_u32 s2, 64")
    a("s_cbranch_scc0 K1_FCOL_H")
    a(f"s_lshl_b32 {s(sT2)}, {s(sT2)}, 3")
    a(f"s_add_u32 {s(sT1)}, {s(sT1)}, {s(sT2)}")
    a(f"v_and_b32 {v(vFC)}, 3, {v(vT0)}")
    a(f"v_bfe_u32 {v(vT2)}, {v(vT0)}, 2, 1")
    a(f"v_lshl_or_b32 {v(vFC)}, {v(vT2)}, 4, {v(vFC)}")
    a(f"v_lshrrev_b32 {v(vT2)}, 3, {v(vT0)}")
    a(f"v_lshl_or_b32 {v(vFC)}, {v(vT2)}, 2, {v(vFC)}")
    a("s_branch K1_FCOL_DONE")
    a.label("K1_FCOL_H")
    a(f"s_lshl_b32 {s(sT2)}, {s(sT2)}, 2")
    a(f"s_add_u32 {s(sT1)}, {s(sT1)}, {s(sT2)}")
    a(f"v_and_b32 {v(vFC)}, 3, {v(vT0)}")
    a(f"v_lshrrev_b32 {v(vT2)}, 2, {v(vT0)}")
    a(f"v_lshl_or_b32 {v(vFC)}, {v(vT2)}, 3, {v(vFC)}")
    a.label("K1_FCOL_DONE")
    a(f"v_add_u32 {v(vFC)}, {s(sT1)}, {v(vFC)}")
    a(f"v_lshlrev_b32 {v(vFC)}, 1, {v(vFC)}")
    a(f"s_and_b32 {s(sT1)}, {s(sT0)}, 7")
    a(f"s_lshl_b32 {s(sT1)}, {s(sT1)}, 14")
    a(f"s_cmp_ge_u32 s2, 128")
    a(f"s_cselect_b32 {s(sT2)}, 11, 12")
    a(f"s_cselect_b32 {s(sSO)}, 6144, 0")
    a(f"s_cselect_b32 {s(66)}, {256 * 512}, 0")
    a(f"s_add_u32 {s(sT1)}, {s(sT1)}, {s(66)}")
    a(f"v_lshlrev_b32 {v(vT1)}, {s(sT2)}, {v(vT1)}")
    a(f"v_add3_u32 {v(vT0)}, {v(vFC)}, {v(vT1)}, {s(sT1)}")
    for t in range(8):
        so = "0" if t < 4 else s(sSO)
        a(f"buffer_load_ushort {v(vFL + t)}, {v(vT0)}, {s(S_FR, 4)}, {so} offen offset:{t * 512}")
    a.label("K1_NOFRAG")

    a(f"s_cmp_eq_u32 {s(sGEMM)}, 0")
    a("s_cbranch_scc1 K1_NODMA")
    a(f"s_mul_i32 {s(sT0)}, {s(sRB)}, {80 * 512}")
    a(f"s_lshl_b32 {s(sT1)}, {s(sWV)}, 12")
    a(f"s_add_u32 {s(sT0)}, {s(sT0)}, {s(sT1)}")
    a(f"s_and_b32 {s(sT2)}, {s(sWV)}, 1")
    a(f"s_lshl_b32 {s(sT2)}, {s(sT2)}, 3")
    a(f"v_lshrrev_b32 {v(vT0)}, 5, {v(vLANE)}")
    a(f"v_and_b32 {v(vT1)}, 31, {v(vLANE)}")
    a(f"v_xor_b32 {v(vT1)}, {v(vT1)}, {v(vT0)}")
    a(f"v_xor_b32 {v(vT1)}, {s(sT2)}, {v(vT1)}")
    a(f"v_lshlrev_b32 {v(vT1)}, 4, {v(vT1)}")
    a(f"v_lshl_or_b32 {v(vT1)}, {v(vT0)}, 9, {v(vT1)}")
    for j in range(4):
        a(f"s_add_u32 {s(sT2)}, {s(sT1)}, {LH + j * 1024}")
        a(f"s_mov_b32 m0, {s(sT2)}")
        a(f"v_xor_b32 {v(vT0)}, {j * 32}, {v(vT1)}")
        a(f"buffer_load_dwordx4 {v(vT0)}, {s(S_H, 4)}, {s(sT0)} offen lds")
        a(f"s_add_u32 {s(sT0)}, {s(sT0)}, 1024")
    a(f"v_lshrrev_b32 {v(vT0)}, 4, {v(vLANE)}")
    a(f"v_and_b32 {v(vT1)}, 15, {v(vLANE)}")
    a(f"v_lshlrev_b32 {v(vT2)}, 1, {v(vT0)}")
    a(f"v_xor_b32 {v(vT1)}, {v(vT1)}, {v(vT2)}")
    a(f"v_lshlrev_b32 {v(vT1)}, 4, {v(vT1)}")
    a(f"v_lshl_or_b32 {v(vT1)}, {v(vT0)}, 9, {v(vT1)}")
    a(f"s_lshl_b32 {s(sT0)}, {s(sCB)}, 8")
    a(f"s_add_u32 {s(sT0)}, {s(sT0)}, {256 * 512}")
    a(f"v_add_u32 {v(vT1)}, {s(sT0)}, {v(vT1)}")
    for j in range(7):
        if j == 6:
            a(f"s_cmp_ge_u32 {s(sWV)}, 4")
            a("s_cbranch_scc1 K1_NODMA")
        a(f"s_add_u32 {s(sT0)}, {s(sWV)}, {10 * j}")
        a(f"s_lshl_b32 {s(sT1)}, {s(sT0)}, 10")
        a(f"s_add_u32 {s(sT1)}, {s(sT1)}, {LW}")
        a(f"s_mov_b32 m0, {s(sT1)}")
        a(f"s_and_b32 {s(sT2)}, {s(sT0)}, 2")
        a(f"s_lshl_b32 {s(sT2)}, {s(sT2)}, 6")
        a(f"s_lshl_b32 {s(sT0)}, {s(sT0)}, 11")
        a(f"v_xor_b32 {v(vT0)}, {s(sT2)}, {v(vT1)}")
        a(f"buffer_load_dwordx4 {v(vT0)}, {s(S_WE, 4)}, {s(sT0)} offen lds")
    a.label("K1_NODMA")

    a(f"v_mov_b32 {v(vREC)}, 0")
    a(f"v_mov_b32 {v(vREC + 1)}, 0")
    a(f"v_lshlrev_b32 {v(vT0)}, 3, v0")
    a(f"v_add_u32 {v(vT0)}, {LBINS}, {v(vT0)}")
    a(f"ds_write_b64 {v(vT0)}, {v(vREC, 2)}")
    a("s_waitcnt lgkmcnt(0)")
    a("s_barrier")
    a(f"s_cmp_eq_u32 {s(sGEMM)}, 0")
    a("s_cbranch_scc1 K1_W0")
    a("s_waitcnt vmcnt(10)")
    a("s_branch K1_W1")
    a.label("K1_W0")
    a("s_waitcnt vmcnt(0)")
    a.label("K1_W1")
    a(f"v_lshrrev_b32 {v(vT0)}, 3, {v(vDST)}")
    a(f"v_lshlrev_b32 {v(vBIN)}, 2, {v(vT0)}")
    a(f"v_add_u32 {v(vBIN)}, {LBINS}, {v(vBIN)}")
    a(f"v_mov_b32 {v(vT1)}, 1")
    a(f"ds_add_rtn_u32 {v(vRANK)}, {v(vBIN)}, {v(vT1)}")
    a(f"v_mul_u32_u24 {v(vT1)}, 52429, {v(vT0)}")
    a(f"v_lshrrev_b32 {v(vT1)}, 18, {v(vT1)}")
    a(f"v_mul_u32_u24 {v(vT1)}, 5, {v(vT1)}")
    a(f"v_sub_u32 {v(vT0)}, {v(vT0)}, {v(vT1)}")
    a(f"v_and_b32 {v(vT1)}, 7, {v(vDST)}")
    a(f"v_lshl_or_b32 {v(vT1)}, {v(vT0)}, 3, {v(vT1)}")
    a(f"v_lshl_or_b32 {v(vREC)}, {v(vSRC)}, 9, {v(vT1)}")
    a("s_waitcnt lgkmcnt(0)")
    a(f"v_lshl_or_b32 {v(vREC + 1)}, {v(vRANK)}, 16, {v(vEA)}")
    a("s_barrier")
    a(f"s_cmp_lg_u32 {s(sWV)}, 0")
    a("s_cbranch_scc1 K1_NOSCAN")
    a(f"v_mul_u32_u24 {v(vT0)}, 80, {v(vLANE)}")
    a(f"v_add_u32 {v(vT0)}, {LBINS}, {v(vT0)}")
    for i in range(5):
        a(f"ds_read_b128 {v(vA + 4 * i, 4)}, {v(vT0)} offset:{16 * i}")
    a("s_waitcnt lgkmcnt(0)")
    for i in range(1, 20):
        a(f"v_add_u32 {v(vA + i)}, {v(vA + i - 1)}, {v(vA + i)}")
    a(f"v_mov_b32 {v(vT1)}, {v(vA + 19)}")
    wave_scan(a, vT1)
    a(f"v_sub_u32 {v(vQ)}, {v(vT1)}, {v(vA + 19)}")
    for i in range(1, 21):
        a(f"v_add_u32 {v(vQ + i)}, {v(vQ)}, {v(vA + i - 1)}")
    for i in range(5):
        a(f"ds_write_b128 {v(vT0)}, {v(vQ + 4 * i, 4)} offset:{16 * i}")
    for j in range(4):
        for hl in range(2):
            r = vQ + 5 * j + 3 * hl
            d = vDESC + 2 * j + hl
            a(f"v_lshl_or_b32 {v(d)}, {v(r + 1)}, 10, {v(r)}")
            a(f"v_lshl_or_b32 {v(d)}, {v(r + 2)}, 20, {v(d)}")
    a.label("K1_NOSCAN")
    a("s_waitcnt vmcnt(0) lgkmcnt(0)")
    a("s_barrier")
    a(f"s_cmp_eq_u32 {s(sBIN)}, 0")
    a("s_cbranch_scc1 K1_NOREC")
    a(f"ds_read_b32 {v(vT0)}, {v(vBIN)}")
    a(f"s_mul_i32 {s(sT0)}, s2, {CH * 8}")
    a(f"s_add_u32 {s(sT0)}, {s(sT0)}, {REC_OFF}")
    a("s_waitcnt lgkmcnt(0)")
    a(f"v_add_lshl_u32 {v(vT0)}, {v(vT0)}, {v(vRANK)}, 3")
    a(f"buffer_store_dwordx2 {v(vREC, 2)}, {v(vT0)}, {s(S_WS, 4)}, {s(sT0)} offen")
    a(f"s_cmp_lg_u32 {s(sWV)}, 0")
    a("s_cbranch_scc1 K1_NOREC")
    for j in range(4):
        a(f"buffer_store_dwordx2 {v(vDESC + 2 * j, 2)}, {v(vDA + j)}, {s(S_DESC, 4)}, 0 offen")
    a.label("K1_NOREC")
    a(f"s_cmp_eq_u32 {s(sFRAG)}, 0")
    a("s_cbranch_scc1 K1_NOFST")
    for p in range(4):
        a(f"v_lshl_or_b32 {v(vFP + p)}, {v(vFL + 2 * p + 1)}, 16, {v(vFL + 2 * p)}")
    a(f"buffer_store_dwordx4 {v(vFP, 4)}, {v(vFA)}, {s(S_WS, 4)}, 0 offen")
    a.label("K1_NOFST")

    a(f"s_cmp_eq_u32 {s(sGEMM)}, 0")
    a("s_cbranch_scc1 K1_END")
    a(f"s_cmp_ge_u32 {s(sWV)}, 5")
    a(f"s_cselect_b32 {s(sT0)}, 1, 0")
    a(f"s_cselect_b32 {s(sT1)}, 5, 0")
    a(f"s_sub_u32 {s(sT1)}, {s(sWV)}, {s(sT1)}")
    a(f"v_and_b32 {v(vT0)}, 15, {v(vLANE)}")
    a(f"v_lshrrev_b32 {v(vT1)}, 4, {v(vLANE)}")
    a(f"v_xor_b32 {v(vT2)}, {v(vT0)}, {v(vT1)}")
    a(f"v_lshlrev_b32 {v(vT2)}, 4, {v(vT2)}")
    a(f"v_lshl_or_b32 {v(vT2)}, {v(vT0)}, 9, {v(vT2)}")
    a(f"s_lshl_b32 {s(sT2)}, {s(sT1)}, 13")
    a(f"s_add_u32 {s(sT2)}, {s(sT2)}, {LH}")
    a(f"v_add_u32 {v(vHB)}, {s(sT2)}, {v(vT2)}")
    for k in range(1, 4):
        a(f"v_xor_b32 {v(vHB + k)}, {64 * k}, {v(vHB)}")
    a(f"s_mul_i32 {s(sT2)}, {s(sRB)}, 80")
    a(f"s_lshl_b32 {s(sT1)}, {s(sT1)}, 4")
    a(f"s_add_u32 {s(sT2)}, {s(sT2)}, {s(sT1)}")
    a(f"s_lshl_b32 {s(sT2)}, {s(sT2)}, 9")
    a(f"s_lshl_b32 {s(sT1)}, {s(sCB)}, 8")
    a(f"s_add_u32 {s(sT2)}, {s(sT2)}, {s(sT1)}")
    a(f"s_lshl_b32 {s(sT1)}, {s(sT0)}, 7")
    a(f"s_add_u32 {s(sSO)}, {s(sT2)}, {s(sT1)}")
    a(f"v_lshlrev_b32 {v(vRANK)}, 4, {v(vT1)}")
    a(f"v_lshl_or_b32 {v(vRANK)}, {v(vT0)}, 9, {v(vRANK)}")
    a(f"v_bfe_u32 {v(vT0)}, {v(vLANE)}, 2, 2")
    a(f"v_lshl_or_b32 {v(vT2)}, {v(vT1)}, 3, {v(vT0)}")
    a(f"v_lshlrev_b32 {v(vT2)}, 8, {v(vT2)}")
    a(f"v_and_b32 {v(vT1)}, 1, {v(vT1)}")
    a(f"v_xor_b32 {v(vT1)}, {s(sT0)}, {v(vT1)}")
    a(f"v_lshl_or_b32 {v(vT0)}, {v(vT1)}, 2, {v(vT0)}")
    a(f"v_lshl_or_b32 {v(vT2)}, {v(vT0)}, 5, {v(vT2)}")
    a(f"v_and_b32 {v(vT0)}, 3, {v(vLANE)}")
    a(f"v_lshl_or_b32 {v(vT2)}, {v(vT0)}, 3, {v(vT2)}")
    a(f"v_add_u32 {v(vWB)}, {LW}, {v(vT2)}")
    for ti in range(1, 4):
        a(f"v_xor_b32 {v(vWB + ti)}, {32 * ti}, {v(vWB)}")

    def reads(kk):
        b = kk & 1
        a(f"ds_read_b128 {v(vHF + 4 * b, 4)}, {v(vHB + (kk & 3))} offset:{256 * (kk >> 2)}")
        for ti in range(4):
            for half in range(2):
                a(f"ds_read_b64_tr_b16 {v(vWF + 16 * b + 4 * ti + 2 * half, 2)}, {v(vWB + ti)} offset:{8192 * kk + 1024 * half}")

    reads(0)
    for kk in range(8):
        b = kk & 1
        a("s_waitcnt lgkmcnt(0)")
        if kk < 7:
            reads(kk + 1)
        for ti in range(4):
            c = "0" if kk == 0 else v(vACC + 4 * ti, 4)
            a(f"v_mfma_f32_16x16x32_bf16 {v(vACC + 4 * ti, 4)}, {v(vWF + 16 * b + 4 * ti, 4)}, {v(vHF + 4 * b, 4)}, {c}")
    a(f"s_mov_b32 {s(66)}, {LOG2E}")
    a(f"s_mov_b32 {s(67)}, {LOG2E}")
    a("s_nop 5")
    for p in range(8):
        a(f"v_pk_mul_f32 {v(vACC + 2 * p, 2)}, {v(vACC + 2 * p, 2)}, {s(66, 2)}")
    for p in range(8):
        a(f"v_cvt_pk_bf16_f32 {v(vOUT + p)}, {v(vACC + 2 * p)}, {v(vACC + 2 * p + 1)}")
    a(f"buffer_store_dwordx4 {v(vOUT, 4)}, {v(vRANK)}, {s(S_WS, 4)}, {s(sSO)} offen")
    a(f"buffer_store_dwordx4 {v(vOUT + 4, 4)}, {v(vRANK)}, {s(S_WS, 4)}, {s(sSO)} offen offset:64")
    a.label("K1_END")
    a("s_endpgm")
    return dict(name="prep_kernel", vgpr=160, sgpr=72, grid=256, block=640, lds=K1_LDS)
```

```python
from asmlib import Asm, v, s, interleave
from cfg import *
from k1 import srd, srd_off

NTMAX = 52
CAP = NTMAX * 16
LIMIT = CAP - 75
LS = 0
LX = LS + NTMAX * 1024
LL = LX + NTMAX * 512
LE = LL + CAP * 4
LZ = LE + CAP * 2
LPOS = LZ + 640
LWX = LPOS + 640
LTOT = LWX + 512
LM = LTOT + 128
MROW = 528
LR = LM + 40 * MROW
RING = 6144
LTI = LR + 8 * RING
K2_LDS = LTI + 1024
assert LM % 256 == 0 and LR % 64 == 0 and LZ % 32 == 0 and K2_LDS <= 163840
MARK = 0x40000000

YA, YB, EA_, EB = 0, 16, 32, 48
ACC, MP, AF, X2, SP, LST = 64, 96, 104, 112, 120, 124
WH2, Y2Q, Y2C, Y2K, ID, QUA, CP = 128, 192, 212, 216, 220, 228, 232
vS, vX, vXS, vL, vR0, vR1, vG, vMA, vWXA, vLN, vT0, vT1 = range(244, 256)
S_BP, S_REC, S_DESC, S_FR, S_H, S_POS, S_WE, S_WX, S_OUT = 24, 28, 32, 36, 40, 44, 48, 52, 56
sWV, sQ, sST, sFIRST, sSLOW, sLO, sTOT = 60, 61, 62, 63, 64, 65, 66
sTB = 67
sMASK = 74
sP, sPEND, sGA, sRB, sT0, sT1, sT2, sT3 = 76, 77, 78, 79, 80, 81, 82, 83
sC0 = 84
sM9, sTL, sBT = 86, 87, 88
sE0, sE1 = 90, 92


def group_of(a, dst, tile):
    a(f"s_mov_b32 {s(dst)}, 0")
    for g in range(1, 5):
        a(f"s_cmp_ge_u32 {s(tile)}, {s(sTB + g)}")
        a(f"s_addc_u32 {s(dst)}, {s(dst)}, 0")


uid = [0]


def p_site(tile_off, Y):
    uid[0] += 1
    n = uid[0]
    b = Asm()
    b(f"s_lshl_b32 {s(sTL)}, {s(sP)}, 1")
    b(f"s_add_u32 {s(sTL)}, {s(sTL)}, {tile_off}")
    b(f"s_bitcmp1_b64 {s(sMASK, 2)}, {s(sTL)}")
    b(f"s_cbranch_scc0 K2_NOSW{n}")
    group_of(b, sT0, sTL)
    b(f"s_lshl_b32 {s(sT0)}, {s(sT0)}, 2")
    b(f"s_set_gpr_idx_on {s(sT0)}, gpr_idx(SRC0)")
    for i in range(4):
        b(f"v_mov_b32 {v(Y2C + i)}, {v(Y2Q + i)}")
    b("s_set_gpr_idx_off")
    b.label(f"K2_NOSW{n}")
    return [b.lines,
            f"v_mfma_f32_32x32x16_bf16 {v(Y, 16)}, {v(AF, 4)}, {v(ID, 4)}, 0",
            f"v_mfma_f32_32x32x16_bf16 {v(Y, 16)}, {v(AF + 4, 4)}, {v(ID + 4, 4)}, {v(Y, 16)}",
            f"v_mfma_f32_32x32x16_bf16 {v(Y, 16)}, {v(X2, 4)}, {v(Y2C, 4)}, {v(Y, 16)}",
            f"v_mfma_f32_32x32x16_bf16 {v(Y, 16)}, {v(X2 + 4, 4)}, {v(Y2K, 4)}, {v(Y, 16)}"]


def flush(b, F):
    b(f"s_mul_i32 {s(sT0)}, {s(sGA)}, {8 * MROW}")
    b(f"s_lshl_b32 {s(sT1)}, {s(sGA)}, 7")
    b(f"s_add_u32 {s(sT1)}, {s(sT1)}, {LPOS}")
    for st in range(2):
        for p in range(8):
            b(f"v_cvt_pk_bf16_f32 {v(F + 8 * st + p)}, {v(ACC + 16 * st + 2 * p)}, {v(ACC + 16 * st + 2 * p + 1)}")
        if st == 0:
            for k in range(4):
                b(f"ds_read_b128 {v(ACC + 4 * k, 4)}, {v(vWXA)} offset:{32 * k}")
    b(f"v_add_u32 {v(vT0)}, {s(sT0)}, {v(vMA)}")
    b(f"v_lshl_add_u32 {v(vT1)}, {v(vLN)}, 2, {s(sT1)}")
    b("s_waitcnt lgkmcnt(0)")
    for k in range(4):
        c = "0" if k == 0 else v(ACC + 16, 16)
        b(f"v_mfma_f32_32x32x16_bf16 {v(ACC + 16, 16)}, {v(ACC + 4 * k, 4)}, {v(F + 4 * k, 4)}, {c}")
    b(f"s_mov_b64 exec, {s(sE0, 2)}")
    for st in range(2):
        for p in range(8):
            b(f"ds_pk_add_bf16 {v(vT0)}, {v(F + 8 * st + p)} offset:{64 * st + 16 * (p >> 1) + 4 * (p & 1)}")
    b(f"s_mov_b64 exec, {s(sE1, 2)}")
    b(f"ds_add_f32 {v(vT1)}, {v(ACC + 16)}")
    b("s_mov_b64 exec, -1")


def s_site(tile_off, F):
    uid[0] += 1
    n = uid[0]
    b = Asm()
    b(f"s_lshl_b32 {s(sTL)}, {s(sP)}, 1")
    b(f"s_add_u32 {s(sTL)}, {s(sTL)}, {tile_off & 0xffffffff}")
    b(f"s_bitcmp1_b64 {s(sMASK, 2)}, {s(sTL)}")
    b(f"s_cbranch_scc1 K2_FL{n}")
    b(f"v_mfma_f32_32x32x16_bf16 {v(ACC, 16)}, {v(MP, 4)}, {v(SP, 4)}, {v(ACC, 16)}")
    b(f"v_mfma_f32_32x32x16_bf16 {v(ACC + 16, 16)}, {v(MP + 4, 4)}, {v(SP, 4)}, {v(ACC + 16, 16)}")
    b.label(f"K2_FR{n}")
    o = Asm()
    o.label(f"K2_FL{n}")
    o(f"s_cmp_eq_u32 {s(sGA)}, -1")
    o(f"s_cbranch_scc1 K2_FS{n}")
    flush(o, F)
    o.label(f"K2_FS{n}")
    group_of(o, sGA, sTL)
    o(f"v_mfma_f32_32x32x16_bf16 {v(ACC, 16)}, {v(MP, 4)}, {v(SP, 4)}, 0")
    o(f"v_mfma_f32_32x32x16_bf16 {v(ACC + 16, 16)}, {v(MP + 4, 4)}, {v(SP, 4)}, 0")
    o(f"s_branch K2_FR{n}")
    return b.lines, o.lines


def dma(slot, lreg, pair_off):
    b = Asm()
    b(f"s_add_u32 {s(sT0)}, {s(sP)}, {pair_off}")
    b(f"s_cmp_lt_u32 {s(sT0)}, {s(sPEND)}")
    b(f"s_cselect_b32 {s(S_BP + 2)}, {BP_SIZE}, 0")
    b(f"s_add_u32 m0, {s(sRB)}, {slot * 2048}")
    b(f"v_and_or_b32 {v(lreg)}, {v(lreg)}, {s(sM9)}, {v(vG)}")
    b(f"buffer_load_dwordx4 {v(lreg)}, {s(S_BP, 4)}, 0 offen lds")
    b(f"s_add_u32 m0, {s(sRB)}, {slot * 2048 + 1024}")
    b(f"v_and_or_b32 {v(lreg + 1)}, {v(lreg + 1)}, {s(sM9)}, {v(vG)}")
    b(f"buffer_load_dwordx4 {v(lreg + 1)}, {s(S_BP, 4)}, 0 offen lds")
    return b.lines


def frag_reads(slot):
    return [f"ds_read_b128 {v(AF, 4)}, {v(vR0)} offset:{slot * 2048}",
            f"ds_read_b128 {v(AF + 4, 4)}, {v(vR1)} offset:{slot * 2048}",
            f"ds_read_b128 {v(X2, 4)}, {v(vX)} offset:{slot * 512}",
            f"ds_read_b128 {v(X2 + 4, 4)}, {v(vX)} offset:{slot * 512 + 16}"]


def exps(Y, Ex):
    return [f"v_exp_f32 {v(Ex + i)}, -{v(Y + i)}" for i in range(16)]


def rcps(Ex):
    return [f"v_rcp_f32 {v(Ex + i)}, {v(Ex + i)}" for i in range(16)]


def muls(Y, Ex):
    out = [f"v_pk_mul_f32 {v(Ex + 2 * i, 2)}, {v(Ex + 2 * i, 2)}, {v(Y + 2 * i, 2)}" for i in range(8)]
    out += [f"v_cvt_pk_bf16_f32 {v(MP + i)}, {v(Ex + 2 * i)}, {v(Ex + 2 * i + 1)}" for i in range(8)]
    return out


def plus_one(Ex):
    return ["s_nop 1", f"v_mfma_f32_32x32x16_bf16 {v(Ex, 16)}, {v(QUA, 4)}, {v(QUA, 4)}, {v(Ex, 16)}"]


def place(main, items):
    out = []
    for i, ins in enumerate(main + [None]):
        for pos, lines in items:
            if pos == i:
                out.extend(lines if isinstance(lines, list) else [lines])
        if ins is not None:
            out.append(ins)
    return out


def colmap_v(a, dst, src, tmp):
    a(f"v_and_b32 {v(dst)}, 0x23, {v(src)}")
    a(f"v_bfe_u32 {v(tmp)}, {v(src)}, 2, 1")
    a(f"v_lshl_or_b32 {v(dst)}, {v(tmp)}, 4, {v(dst)}")
    a(f"v_bfe_u32 {v(tmp)}, {v(src)}, 3, 2")
    a(f"v_lshl_or_b32 {v(dst)}, {v(tmp)}, 2, {v(dst)}")


def gen_k2(a):
    T = WH2
    tTID, tDL, tDH, tN, tO0, tP2 = T, T + 2, T + 3, T + 4, T + 5, T + 6
    tA, tB, tT = T + 8, T + 9, T + 10
    tV = T + 12
    tR = T + 16
    tWD, tWE, tWX = T + 24, T + 25, T + 26
    tHB = T + 28
    t0, t1, t2, t3, t4, t5 = range(T + 32, T + 38)
    tZ = T + 40
    tW, tEA = T + 44, T + 46
    tPS, tPD = T + 48, T + 52
    tAS, tAX = T + 56, T + 58
    tRA = T + 60

    a.label("edge_kernel")
    a(f"s_cmp_ge_u32 s2, {NB}")
    a("s_cbranch_scc1 K2_END")
    a("s_load_dwordx16 s[4:19], s[0:1], 0")
    a("s_load_dwordx2 s[20:21], s[0:1], 64")
    a("s_load_dwordx2 s[22:23], s[0:1], 80")
    a(f"v_mov_b32 {v(tTID)}, v0")
    a(f"v_lshrrev_b32 {v(t0)}, 6, v0")
    a(f"v_and_b32 {v(vLN)}, 63, v0")
    a(f"v_readfirstlane_b32 {s(sWV)}, {v(t0)}")
    a(f"s_mov_b32 {s(sFIRST)}, 1")
    a(f"s_mov_b32 {s(sSLOW)}, 0")
    a(f"s_mov_b32 {s(sM9)}, 0xfffffe00")
    a(f"s_mov_b32 {s(sE0)}, 0xff")
    a(f"s_mov_b32 {s(sE0 + 1)}, 0xff")
    a(f"s_mov_b32 {s(sE1)}, -1")
    a(f"s_mov_b32 {s(sE1 + 1)}, 0")
    a(f"s_and_b32 {s(sQ)}, {s(sWV)}, 3")
    a(f"s_lshr_b32 {s(sST)}, {s(sWV)}, 2")
    a(f"s_mul_i32 {s(sRB)}, {s(sWV)}, {RING}")
    a(f"s_add_u32 {s(sRB)}, {s(sRB)}, {LR}")
    a(f"v_and_b32 {v(t0)}, 31, {v(vLN)}")
    a(f"s_lshl_b32 {s(sT0)}, {s(sWV)}, 5")
    a(f"v_add_u32 {v(tRA)}, {s(sT0)}, {v(t0)}")
    a(f"v_lshlrev_b32 {v(t1)}, 3, {v(tRA)}")
    a(f"v_mul_u32_u24 {v(tRA)}, {CH}, {v(tRA)}")
    a(f"v_lshrrev_b32 {v(tP2)}, 5, {v(vLN)}")
    a(f"v_lshlrev_b32 {v(tP2)}, 1, {v(tP2)}")
    a(f"s_mul_i32 {s(sT0)}, s2, {DESC_ROW}")
    a(f"s_add_u32 {s(sT0)}, {s(sT0)}, {DESC_OFF}")
    a("s_waitcnt lgkmcnt(0)")
    a(f"s_add_u32 {s(S_DESC)}, s22, {s(sT0)}")
    a(f"s_addc_u32 {s(S_DESC + 1)}, s23, 0")
    a(f"s_and_b32 {s(S_DESC + 1)}, {s(S_DESC + 1)}, 0xffff")
    a(f"s_mov_b32 {s(S_DESC + 2)}, {DESC_ROW}")
    a(f"s_mov_b32 {s(S_DESC + 3)}, 0x20000")
    a(f"buffer_load_dwordx2 {v(tDL, 2)}, {v(t1)}, {s(S_DESC, 4)}, 0 offen")
    srd(a, S_H, 4, H_SIZE)
    srd_off(a, S_FR, 22, FR_OFF, 3 * FR_ONE)
    a(f"v_lshrrev_b32 {v(t0)}, 5, {v(vLN)}")
    a(f"v_and_b32 {v(t1)}, 31, {v(vLN)}")
    a(f"v_xor_b32 {v(t1)}, {v(t1)}, {v(t0)}")
    a(f"s_lshl_b32 {s(sT1)}, {s(sWV)}, 1")
    a(f"v_xor_b32 {v(t1)}, {s(sT1)}, {v(t1)}")
    a(f"v_lshlrev_b32 {v(t1)}, 4, {v(t1)}")
    a(f"v_lshl_or_b32 {v(t1)}, {v(t0)}, 9, {v(t1)}")
    a(f"s_mul_i32 {s(sT0)}, s2, {40 * 512}")
    a(f"s_lshl_b32 {s(sT1)}, {s(sWV)}, 10")
    a(f"s_add_u32 {s(sT0)}, {s(sT0)}, {s(sT1)}")
    for j in range(3):
        if j == 2:
            a(f"s_cmp_ge_u32 {s(sWV)}, 4")
            a("s_cbranch_scc1 K2_NOH")
        a(f"s_add_u32 m0, {s(sT1)}, {LM + 8192 * j}")
        a("s_nop 0")
        a(f"buffer_load_dwordx4 {v(t1)}, {s(S_H, 4)}, {s(sT0)} offen lds")
        a(f"s_add_u32 {s(sT0)}, {s(sT0)}, 8192")
    a.label("K2_NOH")
    a(f"v_lshlrev_b32 {v(t5)}, 4, {v(vLN)}")

    def frag_loads(dst, mat, addr):
        a(f"s_lshl_b32 {s(sT0)}, {s(sWV)}, 14")
        if mat:
            a(f"s_add_u32 {s(sT0)}, {s(sT0)}, {mat * FR_ONE}")
        for f in range(16):
            a(f"buffer_load_dwordx4 {v(dst + 4 * f, 4)}, {v(addr)}, {s(S_FR, 4)}, {s(sT0)} offen offset:{1024 * (f & 3)}")
            if f & 3 == 3 and f < 15:
                a(f"s_add_u32 {s(sT0)}, {s(sT0)}, 4096")

    frag_loads(0, 0, t5)
    srd(a, S_WE, 14, WE_SIZE)
    srd(a, S_WX, 16, 512)
    srd(a, S_POS, 6, POS_SIZE)
    srd(a, S_BP, 22, BP_SIZE)
    srd_off(a, S_REC, 22, REC_OFF, REC_SIZE)
    srd(a, S_OUT, 20, OUT_SIZE)
    colmap_v(a, t0, vLN, t1)
    a(f"s_lshl_b32 {s(sT0)}, {s(sQ)}, 7")
    a(f"s_add_u32 {s(sT0)}, {s(sT0)}, {512 * 512}")
    a(f"v_lshlrev_b32 {v(t0)}, 1, {v(t0)}")
    a(f"buffer_load_ushort {v(tWD)}, {v(t0)}, {s(S_WE, 4)}, {s(sT0)} offen")
    a(f"buffer_load_ushort {v(tWE)}, {v(t0)}, {s(S_WE, 4)}, {s(sT0)} offen offset:512")
    a(f"v_and_b32 {v(t0)}, 0xe7, {v(tTID)}")
    a(f"v_bfe_u32 {v(t1)}, {v(tTID)}, 3, 1")
    a(f"v_lshl_or_b32 {v(t0)}, {v(t1)}, 4, {v(t0)}")
    a(f"v_bfe_u32 {v(t1)}, {v(tTID)}, 4, 1")
    a(f"v_lshl_or_b32 {v(t0)}, {v(t1)}, 3, {v(t0)}")
    a(f"v_lshlrev_b32 {v(t0)}, 1, {v(t0)}")
    a(f"buffer_load_ushort {v(tWX)}, {v(t0)}, {s(S_WX, 4)}, 0 offen")

    def lds_init(first):
        for i in range(4):
            a(f"v_mov_b32 {v(tZ + i)}, 0")
        a(f"v_lshlrev_b32 {v(t0)}, 4, {v(tTID)}")
        a(f"v_add_u32 {v(t1)}, 65536, {v(t0)}")
        total = LL // 16
        for r in range((total + 511) // 512):
            left = total - 512 * r
            if left < 512:
                a(f"v_cmp_gt_u32 vcc, {left}, {v(tTID)}")
                a("s_nop 0")
                a("s_mov_b64 exec, vcc")
            off = 8192 * r
            if off < 65536:
                a(f"ds_write_b128 {v(t0)}, {v(tZ, 4)} offset:{off}")
            else:
                a(f"ds_write_b128 {v(t1)}, {v(tZ, 4)} offset:{off - 65536}")
        if first:
            a(f"v_cmp_gt_u32 vcc, {(LWX - LZ) // 16}, {v(tTID)}")
            a("s_nop 0")
            a("s_mov_b64 exec, vcc")
            a(f"ds_write_b128 {v(t1)}, {v(tZ, 4)} offset:{LZ - 65536}")
        a("s_mov_b64 exec, -1")
        a(f"v_cmp_gt_u32 vcc, {CAP // 4}, {v(tTID)}")
        for i in range(4):
            a(f"v_mov_b32 {v(t2 + i)}, {MARK}")
        a("s_mov_b64 exec, vcc")
        a(f"ds_write_b128 {v(t1)}, {v(t2, 4)} offset:{LL - 65536}")
        a("s_mov_b64 exec, -1")

    lds_init(True)
    a(f"v_and_b32 {v(t0)}, 15, {v(vLN)}")
    a(f"v_bfe_u32 {v(t1)}, {v(vLN)}, 4, 1")
    a(f"v_lshrrev_b32 {v(t2)}, 5, {v(vLN)}")
    a(f"v_lshl_or_b32 {v(t3)}, {v(t1)}, 2, {v(t2)}")
    a(f"v_bfe_u32 {v(t4)}, {v(vLN)}, 1, 2")
    a(f"v_xor_b32 {v(t3)}, {v(t3)}, {v(t4)}")
    a(f"v_lshlrev_b32 {v(t3)}, 4, {v(t3)}")
    a(f"v_lshl_or_b32 {v(t3)}, {v(t0)}, 7, {v(t3)}")
    a(f"v_add_u32 {v(vR0)}, {s(sRB)}, {v(t3)}")
    a(f"v_xor_b32 {v(vR1)}, 32, {v(vR0)}")
    a(f"v_cmp_eq_u32 vcc, {v(t1)}, {v(t2)}")
    a(f"v_mov_b32 {v(t3)}, 1024")
    a(f"v_and_b32 {v(t4)}, 7, {v(vLN)}")
    a(f"v_cndmask_b32 {v(vXS)}, 0, {v(t3)}, vcc")
    a(f"v_bfe_u32 {v(t3)}, {v(vLN)}, 4, 2")
    a(f"v_xor_b32 {v(t3)}, {v(t3)}, {v(t4)}")
    a(f"s_lshl_b32 {s(sT0)}, {s(sQ)}, 7")
    a(f"v_lshl_add_u32 {v(vG)}, {v(t3)}, 4, {s(sT0)}")
    a(f"v_mul_u32_u24 {v(t3)}, {MROW}, {v(t4)}")
    a(f"v_lshl_add_u32 {v(t3)}, {v(t2)}, 3, {v(t3)}")
    a(f"s_add_u32 {s(sT1)}, {s(sT0)}, {LM}")
    a(f"v_add_u32 {v(vMA)}, {s(sT1)}, {v(t3)}")
    a(f"s_add_u32 {s(sT1)}, {s(sT0)}, {LWX}")
    a(f"v_lshl_add_u32 {v(vWXA)}, {v(t2)}, 4, {s(sT1)}")
    a(f"v_lshrrev_b32 {v(t1)}, 4, {v(vLN)}")
    a(f"v_xor_b32 {v(t1)}, {v(t1)}, {v(t0)}")
    a(f"v_lshlrev_b32 {v(t1)}, 4, {v(t1)}")
    a(f"v_lshl_or_b32 {v(t1)}, {v(t0)}, 9, {v(t1)}")
    a(f"v_add_u32 {v(tHB)}, {LM}, {v(t1)}")
    for k in range(1, 4):
        a(f"v_xor_b32 {v(tHB + k)}, {64 * k}, {v(tHB)}")
    a("s_waitcnt vmcnt(21)")

    a.label("K2_BATCH")
    a(f"v_and_b32 {v(tO0)}, 1023, {v(tDL)}")
    a(f"v_lshrrev_b32 {v(tN)}, 20, {v(tDH)}")
    a(f"v_sub_u32 {v(tN)}, {v(tN)}, {v(tO0)}")
    a(f"v_add3_u32 {v(t0)}, {v(tRA)}, {v(tO0)}, {v(tP2)}")
    a(f"v_lshlrev_b32 {v(t0)}, 3, {v(t0)}")
    a(f"v_sub_u32 {v(tN)}, {v(tN)}, {v(tP2)}")
    a(f"v_mov_b32 {v(t2)}, {MARK}")
    a(f"v_cmp_lt_i32 vcc, 0, {v(tN)}")
    a(f"v_cmp_lt_i32 {s(sT2, 2)}, 4, {v(tN)}")
    a(f"v_mov_b32 {v(tO0)}, {v(t0)}")
    a(f"v_cndmask_b32 {v(t1)}, {v(t2)}, {v(t0)}, vcc")
    a(f"v_cndmask_b32 {v(t2)}, {v(t2)}, {v(t0)}, {s(sT2, 2)}")
    a(f"buffer_load_dwordx4 {v(tR, 4)}, {v(t1)}, {s(S_REC, 4)}, 0 offen")
    a(f"buffer_load_dwordx4 {v(tR + 4, 4)}, {v(t2)}, {s(S_REC, 4)}, 0 offen offset:32")
    a(f"v_lshlrev_b32 {v(t5)}, 4, {v(vLN)}")
    frag_loads(ACC, 1, t5)
    a(f"v_lshrrev_b32 {v(t0)}, 10, {v(tDL)}")
    a(f"v_lshl_or_b32 {v(t0)}, {v(tDH)}, 20, {v(t0)}")
    a(f"v_and_b32 {v(t0)}, 0x3fffffff, {v(t0)}")
    a(f"v_sub_u32 {v(t0)}, {v(t0)}, {v(tDL)}")
    a(f"v_lshrrev_b32 {v(t1)}, 10, {v(tDH)}")
    a(f"v_and_b32 {v(t2)}, 0xfffff, {v(tDH)}")
    a(f"v_sub_u32 {v(t1)}, {v(t1)}, {v(t2)}")
    a(f"v_add_u32 {v(t2)}, {v(tN)}, {v(tP2)}")
    for i in range(3):
        a(f"v_mov_b32 {v(tA + i)}, {v(t0 + i)}")
    for sh in ("row_shr:1", "row_shr:2", "row_shr:4", "row_shr:8"):
        for i in range(3):
            a(f"v_add_u32_dpp {v(tA + i)}, {v(tA + i)}, {v(tA + i)} {sh} row_mask:0xf bank_mask:0xf bound_ctrl:0")
    for i in range(3):
        a(f"v_add_u32_dpp {v(tA + i)}, {v(tA + i)}, {v(tA + i)} row_bcast:15 row_mask:0xa bank_mask:0xf")
    a(f"s_lshl_b32 {s(sT0)}, {s(sWV)}, 2")
    a(f"s_add_u32 {s(sT0)}, {s(sT0)}, {LTOT}")
    a(f"v_mov_b32 {v(t3)}, {s(sT0)}")
    a("s_mov_b32 exec_lo, 0x80000000")
    a("s_mov_b32 exec_hi, 0")
    for i in range(3):
        a(f"ds_write_b32 {v(t3)}, {v(tA + i)} offset:{32 * i}")
    a("s_mov_b64 exec, -1")
    a(f"v_sub_u32 {v(tA)}, {v(tA)}, {v(t0)}")
    a(f"v_sub_u32 {v(tB)}, {v(tB)}, {v(t1)}")
    a(f"v_and_b32 {v(t3)}, 7, {v(vLN)}")
    a(f"v_lshlrev_b32 {v(t3)}, 2, {v(t3)}")
    a(f"v_add_u32 {v(t3)}, {LTOT}, {v(t3)}")
    a("s_waitcnt vmcnt(37) lgkmcnt(0)")
    a("s_barrier")
    for i in range(3):
        a(f"ds_read_b32 {v(t0 + i)}, {v(t3)} offset:{32 * i}")
    a("s_waitcnt lgkmcnt(0)")
    for i in range(3):
        a(f"v_mov_b32 {v(t3 + i)}, {v(t0 + i)}")
    for sh in ("row_shr:1", "row_shr:2", "row_shr:4"):
        for i in range(3):
            a(f"v_add_u32_dpp {v(t0 + i)}, {v(t0 + i)}, {v(t0 + i)} {sh} row_mask:0xf bank_mask:0xf bound_ctrl:0")
    for i in range(3):
        a(f"v_sub_u32 {v(t3 + i)}, {v(t0 + i)}, {v(t3 + i)}")
    a(f"v_readlane_b32 {s(sT0)}, {v(t0)}, 7")
    a(f"v_readlane_b32 {s(sT1)}, {v(t1)}, 7")
    a(f"v_readlane_b32 {s(sBT)}, {v(t2)}, 7")
    a(f"v_readlane_b32 {s(sT2)}, {v(t3)}, {s(sWV)}")
    a(f"v_readlane_b32 {s(sT3)}, {v(t4)}, {s(sWV)}")
    a(f"v_readlane_b32 {s(sTL)}, {v(t5)}, {s(sWV)}")
    a(f"s_mov_b32 {s(sTB)}, 0")
    for g in range(5):
        src = sT0 if g < 3 else sT1
        a(f"s_bfe_u32 {s(sP)}, {s(src)}, {hex((10 << 16) | (10 * (g % 3)))}")
        a(f"s_add_u32 {s(sP)}, {s(sP)}, 15")
        a(f"s_lshr_b32 {s(sP)}, {s(sP)}, 4")
        a(f"s_add_u32 {s(sTB + g + 1)}, {s(sTB + g)}, {s(sP)}")
    a(f"s_cmp_lg_u32 {s(sSLOW)}, 0")
    a("s_cbranch_scc1 K2_FITS")
    a(f"s_cmp_gt_u32 {s(sBT)}, 1023")
    a("s_cbranch_scc1 K2_OVER")
    a(f"s_cmp_gt_u32 {s(sTB + 5)}, {NTMAX}")
    a("s_cbranch_scc1 K2_OVER")
    a.label("K2_FITS")
    a(f"s_lshl_b32 {s(sT0)}, {s(sTB + 1)}, 14")
    a(f"s_lshl_b32 {s(sT1)}, {s(sTB + 2)}, 24")
    a(f"s_add_u32 {s(sT2)}, {s(sT2)}, {s(sT0)}")
    a(f"s_add_u32 {s(sT2)}, {s(sT2)}, {s(sT1)}")
    a(f"s_lshl_b32 {s(sT0)}, {s(sTB + 3)}, 4")
    a(f"s_lshl_b32 {s(sT1)}, {s(sTB + 4)}, 14")
    a(f"s_add_u32 {s(sT3)}, {s(sT3)}, {s(sT0)}")
    a(f"s_add_u32 {s(sT3)}, {s(sT3)}, {s(sT1)}")
    a(f"v_add_u32 {v(tA)}, {s(sT2)}, {v(tA)}")
    a(f"v_add_u32 {v(tB)}, {s(sT3)}, {v(tB)}")
    a(f"v_lshl_or_b32 {v(tV)}, {v(tB)}, 30, {v(tA)}")
    a(f"v_lshrrev_b32 {v(tV + 1)}, 2, {v(tB)}")
    a(f"s_add_u32 {s(sT0)}, {s(sTB + 5)}, 1")
    a(f"s_lshr_b32 {s(sT0)}, {s(sT0)}, 1")
    a(f"s_add_u32 {s(sT1)}, {s(sT0)}, 1")
    a(f"s_lshr_b32 {s(sT1)}, {s(sT1)}, 1")
    a(f"s_cmp_eq_u32 {s(sST)}, 0")
    a(f"s_cselect_b32 {s(sP)}, 0, {s(sT1)}")
    a(f"s_cselect_b32 {s(sPEND)}, {s(sT1)}, {s(sT0)}")
    a(f"s_mov_b64 {s(sMASK, 2)}, 0")
    for g in range(1, 5):
        a(f"s_bitset1_b64 {s(sMASK, 2)}, {s(sTB + g)}")
    a(f"s_lshl_b32 {s(sT0)}, {s(sP)}, 1")
    a(f"s_lshr_b64 {s(sMASK, 2)}, {s(sMASK, 2)}, {s(sT0)}")
    a(f"s_or_b32 {s(sMASK)}, {s(sMASK)}, 1")
    a(f"s_lshl_b64 {s(sMASK, 2)}, {s(sMASK, 2)}, {s(sT0)}")
    a(f"s_mov_b32 {s(sGA)}, -1")

    a(f"s_cmp_eq_u32 {s(sFIRST)}, 0")
    a("s_cbranch_scc1 K2_NOA")

    def node_gemm(acc, wreg, hf, w_is_b, tail=None):
        def reads(kk):
            for nt in range(3):
                a(f"ds_read_b128 {v(hf + 12 * (kk & 1) + 4 * nt, 4)}, {v(tHB + (kk & 3))} offset:{8192 * nt + 256 * (kk >> 2)}")
        reads(0)
        if tail:
            tail()
        for kk in range(8):
            a("s_waitcnt lgkmcnt(0)")
            if kk < 7:
                reads(kk + 1)
            for nt in range(3):
                for ct in range(2):
                    d = acc + 8 * nt + 4 * ct
                    hreg = v(hf + 12 * (kk & 1) + 4 * nt, 4)
                    w = v(wreg + 4 * (8 * ct + kk), 4)
                    ab = f"{hreg}, {w}" if w_is_b else f"{w}, {hreg}"
                    a(f"v_mfma_f32_16x16x32_bf16 {v(d, 4)}, {ab}, {'0' if kk == 0 else v(d, 4)}")

    def consts():
        a("s_waitcnt vmcnt(18)")
        a(f"v_and_b32 {v(t0)}, 255, {v(tTID)}")
        a(f"v_lshlrev_b32 {v(t0)}, 1, {v(t0)}")
        a(f"v_add_u32 {v(t0)}, {LWX}, {v(t0)}")
        a(f"ds_write_b16 {v(t0)}, {v(tWX)}")
        a(f"s_mov_b32 {s(sC0)}, {LOG2E}")
        a(f"s_mov_b32 {s(sC0 + 1)}, {LOG2E}")
        for i, w in enumerate((tWD, tWE)):
            a(f"v_lshlrev_b32 {v(t0)}, 16, {v(w)}")
            a(f"v_mul_f32 {v(t0)}, {s(sC0)}, {v(t0)}")
            a(f"v_cvt_pk_bf16_f32 {v(t1)}, {v(t0)}, {v(t0)}")
            a(f"v_lshlrev_b32 {v(t1)}, 16, {v(t1)}")
            a(f"v_sub_f32 {v(t2)}, {v(t0)}, {v(t1)}")
            a(f"v_cvt_pk_bf16_f32 {v(Y2K + i)}, {v(t0)}, {v(t2)}")
        a(f"v_mov_b32 {v(Y2K + 2)}, 0")
        a(f"v_mov_b32 {v(Y2K + 3)}, 0")

    node_gemm(Y2Q, 0, ID, True, consts)
    a(f"s_lshr_b32 {s(sT0)}, {s(sWV)}, 1")
    a(f"s_mul_i32 {s(sT0)}, {s(sT0)}, {RING}")
    a(f"s_and_b32 {s(sT1)}, {s(sWV)}, 1")
    a(f"s_lshl_b32 {s(sT1)}, {s(sT1)}, 9")
    a(f"s_add_u32 {s(sT0)}, {s(sT0)}, {s(sT1)}")
    a(f"s_add_u32 {s(sT0)}, {s(sT0)}, {LR}")
    a(f"v_and_b32 {v(t0)}, 15, {v(vLN)}")
    a(f"v_lshlrev_b32 {v(t0)}, 4, {v(t0)}")
    a(f"v_bfe_u32 {v(t1)}, {v(vLN)}, 4, 1")
    a(f"v_lshl_or_b32 {v(t0)}, {v(t1)}, 3, {v(t0)}")
    a(f"v_lshrrev_b32 {v(t1)}, 5, {v(vLN)}")
    a(f"v_lshl_or_b32 {v(t0)}, {v(t1)}, 10, {v(t0)}")
    a(f"v_add_u32 {v(t0)}, {s(sT0)}, {v(t0)}")
    for p in range(12):
        a(f"v_pk_mul_f32 {v(Y2Q + 2 * p, 2)}, {v(Y2Q + 2 * p, 2)}, {s(sC0, 2)}")
    for p in range(12):
        a(f"v_cvt_pk_bf16_f32 {v(ID + p)}, {v(Y2Q + 2 * p)}, {v(Y2Q + 2 * p + 1)}")
    for nt in range(3):
        for ct in range(2):
            for cp in range(2):
                a(f"ds_write_b64 {v(t0)}, {v(ID + 4 * nt + 2 * ct, 2)} offset:{2048 * nt + 256 * ct + 4 * RING * cp}")
    a.label("K2_NOA")

    def scatter(r, slot):
        a(f"v_and_b32 {v(t0)}, 0x38, {v(r)}")
        a(f"v_lshrrev_b32 {v(t1)}, 2, {v(t0)}")
        a(f"v_add_u32 {v(t0)}, {v(t0)}, {v(t1)}")
        a(f"v_lshrrev_b64 {v(t2, 2)}, {v(t0)}, {v(tV, 2)}")
        a(f"v_and_b32 {v(t2)}, 1023, {v(t2)}")
        a(f"v_lshrrev_b32 {v(t1)}, 16, {v(r + 1)}")
        a(f"v_add_u32 {v(t2)}, {v(t2)}, {v(t1)}")
        a(f"v_cmp_lt_i32 vcc, {slot}, {v(tN)}")
        a(f"v_and_b32 {v(t0)}, 0x7e0, {v(t2)}")
        a(f"v_and_b32 {v(t1)}, 7, {v(t2)}")
        a(f"v_lshl_or_b32 {v(t0)}, {v(t1)}, 2, {v(t0)}")
        a(f"v_bfe_u32 {v(t1)}, {v(t2)}, 3, 2")
        a(f"v_or_b32 {v(t0)}, {v(t0)}, {v(t1)}")
        a(f"v_lshlrev_b32 {v(t1)}, 1, {v(t0)}")
        a(f"v_lshl_add_u32 {v(t0)}, {v(t0)}, 2, {s(sT0)}")
        a(f"v_add_u32 {v(t1)}, {s(sT0)}, {v(t1)}")
        a("s_mov_b64 exec, vcc")
        a(f"ds_write_b32 {v(t0)}, {v(r)}")
        a(f"ds_write_b16 {v(t1)}, {v(r + 1)} offset:{LE - LL}")
        a("s_mov_b64 exec, -1")

    a(f"s_mov_b32 {s(sT0)}, {LL}")
    a("s_waitcnt vmcnt(16)")
    scatter(tR, 0)
    scatter(tR + 2, 1)
    scatter(tR + 4, 4)
    scatter(tR + 6, 5)
    a.label("K2_MORE")
    a(f"v_cmp_lt_i32 vcc, 8, {v(tN)}")
    a("s_nop 4")
    a("s_cbranch_vccz K2_NOMORE")
    a(f"v_add_u32 {v(tO0)}, 32, {v(tO0)}")
    a(f"v_subrev_u32 {v(tN)}, 4, {v(tN)}")
    a(f"buffer_load_dwordx4 {v(tR, 4)}, {v(tO0)}, {s(S_REC, 4)}, 0 offen offset:32")
    a("s_waitcnt vmcnt(0)")
    scatter(tR, 4)
    scatter(tR + 2, 5)
    a("s_branch K2_MORE")
    a.label("K2_NOMORE")
    a(f"s_lshl_b32 {s(sT0)}, {s(sP)}, 7")
    a(f"s_add_u32 {s(sT0)}, {s(sT0)}, {LL}")
    a(f"v_lshrrev_b32 {v(t0)}, 3, {v(vLN)}")
    a(f"v_lshl_add_u32 {v(vL)}, {v(t0)}, 4, {s(sT0)}")
    a(f"s_lshl_b32 {s(sT0)}, {s(sP)}, 11")
    a(f"v_lshl_add_u32 {v(vS)}, {v(vLN)}, 4, {s(sT0)}")
    a(f"s_lshl_b32 {s(sT0)}, {s(sP)}, 10")
    a(f"s_add_u32 {s(sT0)}, {s(sT0)}, {LX}")
    a(f"v_and_b32 {v(t0)}, 15, {v(vLN)}")
    a(f"v_lshl_add_u32 {v(t0)}, {v(t0)}, 5, {s(sT0)}")
    a(f"v_cmp_eq_u32 vcc, 0, {v(vXS)}")
    a(f"v_mov_b32 {v(t1)}, {LZ + 16}")
    a(f"v_lshlrev_b32 {v(t2)}, 2, {v(tTID)}")
    a(f"v_cndmask_b32 {v(vX)}, {v(t0)}, {v(t1)}, vcc")
    a(f"v_add_u32 {v(t2)}, {LL}, {v(t2)}")
    a(f"v_lshlrev_b32 {v(t3)}, 1, {v(tTID)}")
    a(f"v_add_u32 {v(t3)}, {LE}, {v(t3)}")
    a("s_waitcnt lgkmcnt(0)")
    a("s_barrier")

    a(f"ds_read_b128 {v(tZ, 4)}, {v(vL)}")
    a(f"ds_read_b32 {v(tW)}, {v(t2)}")
    a(f"ds_read_b32 {v(tW + 1)}, {v(t2)} offset:2048")
    a(f"ds_read_u16 {v(tEA)}, {v(t3)}")
    a(f"ds_read_u16 {v(tEA + 1)}, {v(t3)} offset:1024")
    a(f"s_cmp_eq_u32 {s(sFIRST)}, 0")
    a("s_cbranch_scc1 K2_NOY2")
    a(f"v_lshl_add_u32 {v(t0)}, {v(vLN)}, 4, {s(sRB)}")
    for g in range(5):
        a(f"ds_read_b128 {v(Y2Q + 4 * g, 4)}, {v(t0)} offset:{1024 * g}")
    a.label("K2_NOY2")
    a(f"v_cmp_gt_u32 vcc, {CAP - 512}, {v(tTID)}")
    a(f"v_mov_b32 {v(t0)}, {MARK}")
    a("s_waitcnt lgkmcnt(0)")
    a(f"v_cndmask_b32 {v(tW + 1)}, {v(t0)}, {v(tW + 1)}, vcc")
    for ln in dma(0, tZ, 0) + dma(1, tZ + 2, 0):
        a(ln)
    a(f"s_mul_i32 {s(sT0)}, s2, 40")
    for r in range(2):
        a(f"v_lshrrev_b32 {v(t0)}, 9, {v(tW + r)}")
        a(f"v_mul_u32_u24 {v(t0)}, 6, {v(t0)}")
        a(f"v_and_b32 {v(t0)}, -4, {v(t0)}")
        a(f"buffer_load_dwordx2 {v(tPS + 2 * r, 2)}, {v(t0)}, {s(S_POS, 4)}, 0 offen")
        a(f"v_and_b32 {v(t1)}, 63, {v(tW + r)}")
        a(f"v_add_u32 {v(t1)}, {s(sT0)}, {v(t1)}")
        a(f"v_mul_u32_u24 {v(t1)}, 6, {v(t1)}")
        a(f"v_and_b32 {v(t1)}, -4, {v(t1)}")
        a(f"buffer_load_dwordx2 {v(tPD + 2 * r, 2)}, {v(t1)}, {s(S_POS, 4)}, 0 offen")
    a(f"v_lshrrev_b32 {v(t0)}, 5, {v(tTID)}")
    a(f"v_bfe_u32 {v(t1)}, {v(tTID)}, 1, 1")
    a(f"v_lshl_or_b32 {v(t0)}, {v(t0)}, 1, {v(t1)}")
    a(f"v_bfe_u32 {v(t1)}, {v(tTID)}, 4, 1")
    a(f"v_lshlrev_b32 {v(t2)}, 10, {v(t0)}")
    a(f"v_lshl_or_b32 {v(t2)}, {v(t1)}, 9, {v(t2)}")
    a(f"v_and_b32 {v(t1)}, 1, {v(tTID)}")
    a(f"v_lshl_or_b32 {v(t2)}, {v(t1)}, 3, {v(t2)}")
    a(f"v_bfe_u32 {v(t3)}, {v(tTID)}, 2, 2")
    a(f"v_lshl_or_b32 {v(t2)}, {v(t3)}, 1, {v(t2)}")
    a(f"v_lshlrev_b32 {v(t0)}, 9, {v(t0)}")
    a(f"v_lshl_or_b32 {v(t0)}, {v(t1)}, 8, {v(t0)}")
    a(f"v_bfe_u32 {v(t3)}, {v(tTID)}, 2, 3")
    a(f"v_lshl_or_b32 {v(t0)}, {v(t3)}, 5, {v(t0)}")
    for r in range(2):
        a(f"v_and_b32 {v(t1)}, 7, {v(tW + r)}")
        a(f"v_lshl_add_u32 {v(tAS + r)}, {v(t1)}, 4, {v(t2)}")
        a(f"v_add_u32 {v(tAX + r)}, {LX + 16384 * r}, {v(t0)}")
    a(f"v_add_u32 {v(tAS + 1)}, 32768, {v(tAS + 1)}")

    a(f"s_cmp_eq_u32 {s(sFIRST)}, 0")
    a("s_cbranch_scc1 K2_NOC")

    def c_wait():
        a.comment("identity and all-quarters operands")
        a(f"v_and_b32 {v(t0)}, 1, {v(vLN)}")
        a(f"v_lshlrev_b32 {v(t0)}, 4, {v(t0)}")
        a(f"v_mov_b32 {v(t1)}, 0x3f80")
        a(f"v_lshlrev_b32 {v(t0)}, {v(t0)}, {v(t1)}")
        a(f"v_bfe_u32 {v(t1)}, {v(vLN)}, 1, 4")
        a(f"v_lshrrev_b32 {v(t3)}, 5, {v(vLN)}")
        a(f"v_lshlrev_b32 {v(t3)}, 2, {v(t3)}")
        a(f"v_sub_u32 {v(t1)}, {v(t1)}, {v(t3)}")
        for u in range(2):
            for p in range(4):
                a(f"v_cmp_eq_u32 vcc, {8 * u + p}, {v(t1)}")
                a(f"v_mov_b32 {v(QUA + p)}, 0x3e803e80")
                a("s_nop 0")
                a(f"v_cndmask_b32 {v(ID + 4 * u + p)}, 0, {v(t0)}, vcc")
        a("s_waitcnt vmcnt(8)")

    node_gemm(0, ACC, 24, False, c_wait)
    a("s_nop 3")
    for p in range(12):
        a(f"v_pk_mul_f32 {v(2 * p, 2)}, {v(2 * p, 2)}, {s(sC0, 2)}")
    for p in range(12):
        a(f"v_cvt_pk_bf16_f32 {v(CP + p)}, {v(2 * p)}, {v(2 * p + 1)}")
    a.label("K2_NOC")

    a("s_waitcnt vmcnt(0)")
    a(f"v_mov_b32 {v(t5)}, 0x3f80")
    a(f"s_mov_b32 {s(sT1)}, 0xffff0000")
    for r in range(2):
        ps, pd, w = tPS + 2 * r, tPD + 2 * r, tW + r
        a(f"v_bfe_u32 {v(t0)}, {v(w)}, 9, 1")
        a(f"v_lshlrev_b32 {v(t0)}, 4, {v(t0)}")
        a(f"v_alignbit_b32 {v(ps)}, {v(ps + 1)}, {v(ps)}, {v(t0)}")
        a(f"v_lshrrev_b32 {v(ps + 1)}, {v(t0)}, {v(ps + 1)}")
        a(f"v_and_b32 {v(t0)}, 1, {v(w)}")
        a(f"v_lshlrev_b32 {v(t0)}, 4, {v(t0)}")
        a(f"v_alignbit_b32 {v(pd)}, {v(pd + 1)}, {v(pd)}, {v(t0)}")
        a(f"v_lshrrev_b32 {v(pd + 1)}, {v(t0)}, {v(pd + 1)}")
        a(f"v_lshlrev_b32 {v(t0)}, 16, {v(pd)}")
        a(f"v_lshlrev_b32 {v(t1)}, 16, {v(ps)}")
        a(f"v_sub_f32 {v(t0)}, {v(t0)}, {v(t1)}")
        a(f"v_and_b32 {v(t1)}, {s(sT1)}, {v(pd)}")
        a(f"v_and_b32 {v(t2)}, {s(sT1)}, {v(ps)}")
        a(f"v_sub_f32 {v(t1)}, {v(t1)}, {v(t2)}")
        a(f"v_lshlrev_b32 {v(t2)}, 16, {v(pd + 1)}")
        a(f"v_lshlrev_b32 {v(t3)}, 16, {v(ps + 1)}")
        a(f"v_sub_f32 {v(t2)}, {v(t2)}, {v(t3)}")
        a(f"v_cvt_pk_bf16_f32 {v(ps)}, {v(t0)}, {v(t1)}")
        a(f"v_cvt_pk_bf16_f32 {v(ps + 1)}, {v(t2)}, {v(t2)}")
        a(f"v_lshlrev_b32 {v(t0)}, 16, {v(ps)}")
        a(f"v_and_b32 {v(t1)}, {s(sT1)}, {v(ps)}")
        a(f"v_and_b32 {v(t2)}, {s(sT1)}, {v(ps + 1)}")
        for k in range(3):
            a(f"v_mul_f32 {v(t0 + k)}, {v(t0 + k)}, {v(t0 + k)}")
        a(f"v_cvt_pk_bf16_f32 {v(t0)}, {v(t0)}, {v(t1)}")
        a(f"v_cvt_pk_bf16_f32 {v(t2)}, {v(t2)}, {v(t2)}")
        a(f"v_and_b32 {v(t1)}, {s(sT1)}, {v(t0)}")
        a(f"v_lshlrev_b32 {v(t0)}, 16, {v(t0)}")
        a(f"v_and_b32 {v(t2)}, {s(sT1)}, {v(t2)}")
        a(f"v_add_f32 {v(t0)}, {v(t0)}, {v(t1)}")
        a(f"v_add_f32 {v(t0)}, {v(t0)}, {v(t2)}")
        a(f"v_cmp_gt_u32 vcc, {MARK}, {v(w)}")
        a(f"v_cvt_pk_bf16_f32 {v(pd)}, {v(t0)}, {v(t0)}")
        a(f"v_lshl_or_b32 {v(pd + 1)}, {v(tEA + r)}, 16, {v(tEA + r)}")
        a(f"v_and_b32 {v(t1)}, 7, {v(w)}")
        a(f"v_lshl_add_u32 {v(t1)}, {v(t1)}, 1, {v(tAX + r)}")
        a("s_mov_b64 exec, vcc")
        a(f"ds_write_b16 {v(tAS + r)}, {v(t5)}")
        a(f"ds_write_b16 {v(tAS + r)}, {v(ps)} offset:128")
        a(f"ds_write_b16_d16_hi {v(tAS + r)}, {v(ps)} offset:256")
        a(f"ds_write_b16 {v(tAS + r)}, {v(ps + 1)} offset:384")
        a(f"ds_write_b16 {v(t1)}, {v(t5)}")
        a(f"ds_write_b64 {v(tAX + r)}, {v(pd, 2)} offset:16")
        a("s_mov_b64 exec, -1")
    a(f"v_lshlrev_b32 {v(vT0)}, 4, {v(tTID)}")
    a(f"v_lshlrev_b32 {v(vT1)}, 4, {v(vLN)}")
    a("s_waitcnt lgkmcnt(0)")
    frag_loads(WH2, 2, vT1)
    a("s_barrier")
    a(f"s_cmp_eq_u32 {s(sFIRST)}, 0")
    a("s_cbranch_scc1 K2_NOZ")
    for i in range(4):
        a(f"v_mov_b32 {v(EA_ + i)}, 0")
    a(f"v_cmp_gt_u32 vcc, {(40 * MROW - 16384)}, {v(vT0)}")
    a(f"v_add_u32 {v(vT0)}, {LM}, {v(vT0)}")
    a(f"ds_write_b128 {v(vT0)}, {v(EA_, 4)}")
    a(f"ds_write_b128 {v(vT0)}, {v(EA_, 4)} offset:8192")
    a("s_mov_b64 exec, vcc")
    a(f"ds_write_b128 {v(vT0)}, {v(EA_, 4)} offset:16384")
    a("s_mov_b64 exec, -1")
    a(f"s_mov_b32 {s(sFIRST)}, 0")
    a.label("K2_NOZ")

    for ln in frag_reads(0):
        a(ln)
    a(f"ds_read_b128 {v(LST, 4)}, {v(vL)} offset:128")
    a("s_waitcnt lgkmcnt(0)")
    a("s_barrier")
    a(f"s_cmp_ge_u32 {s(sP)}, {s(sPEND)}")
    a("s_cbranch_scc1 K2_DONE")
    for ln in dma(0, LST, 1):
        a(ln)
    for item in p_site(0, YA):
        for ln in (item if isinstance(item, list) else [item]):
            a(ln)
    for ln in frag_reads(1):
        a(ln)
    a(f"v_add_u32 {v(vX)}, {v(vXS)}, {v(vX)}")
    a("s_nop 6")

    out_of_line = []
    a.label("K2_LOOP")
    ps = p_site(1, YB)
    sin, sout = s_site(-1, EB)
    out_of_line += sout
    blk = place(exps(YA, EA_), [
        (0, ["s_waitcnt lgkmcnt(0)"] + ps[0] + [ps[1]]),
        (2, dma(1, LST + 2, 1)),
        (3, ps[2]), (6, ps[3]), (9, ps[4]),
        (12, sin + [f"ds_read_b128 {v(SP, 4)}, {v(vS)}",
                    f"ds_read_b128 {v(LST, 4)}, {v(vL)} offset:256"]),
        (16, plus_one(EA_))])
    blk += place(exps(YB, EB), [
        (4, f"v_add_u32 {v(vL)}, 128, {v(vL)}"),
        (16, plus_one(EB))])
    blk += place(rcps(EA_) + muls(YA, EA_), [
        (14, ["s_waitcnt vmcnt(2)"] + frag_reads(0))])
    ps = p_site(2, YA)
    sin, sout = s_site(0, EA_)
    out_of_line += sout
    blk += place(rcps(EB) + muls(YB, EB), [
        (0, ["s_waitcnt lgkmcnt(0)"] + ps[0] + [ps[1]]),
        (2, dma(0, LST, 2)),
        (3, ps[2]), (6, ps[3]), (9, ps[4]),
        (12, sin + [f"ds_read_b128 {v(SP, 4)}, {v(vS)} offset:1024"]),
        (18, ["s_waitcnt vmcnt(2)"] + frag_reads(1)),
        (22, [f"v_add_u32 {v(vS)}, 2048, {v(vS)}", f"v_add_u32 {v(vX)}, {v(vXS)}, {v(vX)}"]),
        (30, [f"s_add_u32 {s(sP)}, {s(sP)}, 1", f"s_cmp_lt_u32 {s(sP)}, {s(sPEND)}"])])
    for ln in blk:
        a(ln)
    a("s_cbranch_scc1 K2_LOOP")
    a("s_waitcnt lgkmcnt(0)")
    sin, sout = s_site(-1, EB)
    out_of_line += sout
    for ln in sin:
        a(ln)
    a("s_nop 11")
    flush(a, EB)
    a.label("K2_DONE")
    a("s_waitcnt vmcnt(0) lgkmcnt(0)")
    a(f"s_cmp_lg_u32 {s(sSLOW)}, 0")
    a("s_cbranch_scc1 K2_NEXT")

    a.label("K2_FINAL")
    FA, MF, HR, e0 = 0, 24, 48, 64
    a(f"v_and_b32 {v(e0)}, 15, {v(vLN)}")
    a(f"v_lshrrev_b32 {v(e0 + 1)}, 4, {v(vLN)}")
    a(f"s_mul_i32 {s(sT0)}, s2, {40 * 512}")
    a(f"s_lshl_b32 {s(sT1)}, {s(sWV)}, 6")
    a(f"s_add_u32 {s(sT0)}, {s(sT0)}, {s(sT1)}")
    a(f"v_lshlrev_b32 {v(e0 + 2)}, 4, {v(e0 + 1)}")
    a(f"v_lshl_or_b32 {v(e0 + 3)}, {v(e0)}, 9, {v(e0 + 2)}")
    a(f"v_add_u32 {v(e0 + 3)}, {s(sT0)}, {v(e0 + 3)}")
    a(f"v_add_u32 {v(e0 + 4)}, 8192, {v(e0 + 3)}")
    a(f"v_cmp_gt_u32 vcc, 8, {v(e0)}")
    a(f"v_add_u32 {v(e0 + 5)}, 16384, {v(e0 + 3)}")
    a(f"v_mov_b32 {v(e0 + 6)}, {MARK}")
    a(f"v_cndmask_b32 {v(e0 + 5)}, {v(e0 + 6)}, {v(e0 + 5)}, vcc")
    for nt in range(3):
        a(f"buffer_load_dwordx4 {v(HR + 4 * nt, 4)}, {v(e0 + 3 + nt)}, {s(S_H, 4)}, 0 offen")
    a(f"s_lshl_b32 {s(sT0)}, {s(sWV)}, 6")
    a(f"v_add_u32 {v(e0 + 7)}, {s(sT0)}, {v(vLN)}")
    a(f"v_cmp_gt_u32 vcc, 120, {v(e0 + 7)}")
    a(f"s_mul_i32 {s(sT0)}, s2, 240")
    a(f"v_lshl_add_u32 {v(e0 + 8)}, {v(e0 + 7)}, 1, {s(sT0)}")
    a(f"v_cndmask_b32 {v(e0 + 8)}, {v(e0 + 6)}, {v(e0 + 8)}, vcc")
    a(f"buffer_load_ushort {v(e0 + 9)}, {v(e0 + 8)}, {s(S_POS, 4)}, 0 offen")
    a(f"v_mul_u32_u24 {v(e0 + 10)}, 21846, {v(e0 + 7)}")
    a(f"v_lshrrev_b32 {v(e0 + 10)}, 16, {v(e0 + 10)}")
    a(f"v_mul_u32_u24 {v(e0 + 11)}, 3, {v(e0 + 10)}")
    a(f"v_sub_u32 {v(e0 + 11)}, {v(e0 + 7)}, {v(e0 + 11)}")
    a(f"v_lshrrev_b32 {v(e0 + 7)}, 3, {v(e0 + 10)}")
    a(f"v_lshlrev_b32 {v(e0 + 7)}, 5, {v(e0 + 7)}")
    a(f"v_lshl_add_u32 {v(e0 + 7)}, {v(e0 + 11)}, 3, {v(e0 + 7)}")
    a(f"v_and_b32 {v(e0 + 10)}, 7, {v(e0 + 10)}")
    a(f"v_add_lshl_u32 {v(e0 + 7)}, {v(e0 + 7)}, {v(e0 + 10)}, 2")
    a(f"v_add_u32 {v(e0 + 7)}, {LPOS + 32}, {v(e0 + 7)}")
    a(f"v_mul_u32_u24 {v(e0 + 12)}, {MROW}, {v(e0)}")
    a(f"v_add_u32 {v(e0 + 12)}, {v(e0 + 12)}, {v(e0 + 2)}")
    a(f"v_add_u32 {v(e0 + 12)}, {LM}, {v(e0 + 12)}")
    a(f"s_mov_b32 {s(sT1)}, 0xffff0000")
    for p in range(12):
        a(f"v_lshlrev_b32 {v(FA + 2 * p)}, 16, {v(CP + p)}")
        a(f"v_and_b32 {v(FA + 2 * p + 1)}, {s(sT1)}, {v(CP + p)}")
    a("s_barrier")

    def mreads(kk):
        for nt in range(3):
            a(f"ds_read_b128 {v(MF + 12 * (kk & 1) + 4 * nt, 4)}, {v(e0 + 12)} offset:{16 * MROW * nt + 64 * kk}")
    mreads(0)
    a(f"ds_read_b32 {v(e0 + 13)}, {v(e0 + 7)}")
    for kk in range(8):
        a("s_waitcnt lgkmcnt(0)")
        if kk < 7:
            mreads(kk + 1)
        for nt in range(3):
            for ct in range(2):
                d = FA + 8 * nt + 4 * ct
                a(f"v_mfma_f32_16x16x32_bf16 {v(d, 4)}, {v(WH2 + 4 * (8 * ct + kk), 4)}, {v(MF + 12 * (kk & 1) + 4 * nt, 4)}, {v(d, 4)}")
    a(f"s_mov_b32 {s(sC0)}, {LN2}")
    a(f"s_mov_b32 {s(sC0 + 1)}, {LN2}")
    a("s_waitcnt vmcnt(0)")
    a(f"v_lshlrev_b32 {v(e0 + 9)}, 16, {v(e0 + 9)}")
    a(f"v_fma_f32 {v(e0 + 9)}, {v(e0 + 13)}, {s(sC0)}, {v(e0 + 9)}")
    a(f"v_cvt_pk_bf16_f32 {v(e0 + 9)}, {v(e0 + 9)}, {v(e0 + 9)}")
    a(f"s_mov_b32 {s(sT0)}, {N * 512}")
    a(f"buffer_store_short {v(e0 + 9)}, {v(e0 + 8)}, {s(S_OUT, 4)}, {s(sT0)} offen")
    G, HU, O = 80, 104, 112
    for nt in range(3):
        z = FA + 8 * nt
        g = G + 8 * nt
        for i in range(8):
            a(f"v_exp_f32 {v(g + i)}, -{v(z + i)}")
        for p in range(4):
            a(f"v_lshlrev_b32 {v(HU + 2 * p)}, 16, {v(HR + 4 * nt + p)}")
            a(f"v_and_b32 {v(HU + 2 * p + 1)}, {s(sT1)}, {v(HR + 4 * nt + p)}")
        for p in range(4):
            a(f"v_pk_add_f32 {v(g + 2 * p, 2)}, {v(g + 2 * p, 2)}, 1.0 op_sel_hi:[1,0]")
        for i in range(8):
            a(f"v_rcp_f32 {v(g + i)}, {v(g + i)}")
        a("s_nop 0")
        for p in range(4):
            a(f"v_pk_mul_f32 {v(g + 2 * p, 2)}, {v(g + 2 * p, 2)}, {v(z + 2 * p, 2)}")
        for p in range(4):
            a(f"v_pk_fma_f32 {v(g + 2 * p, 2)}, {v(g + 2 * p, 2)}, {s(sC0, 2)}, {v(HU + 2 * p, 2)}")
        for p in range(4):
            a(f"v_cvt_pk_bf16_f32 {v(O + 4 * nt + p)}, {v(g + 2 * p)}, {v(g + 2 * p + 1)}")
        a(f"buffer_store_dwordx4 {v(O + 4 * nt, 4)}, {v(e0 + 3 + nt)}, {s(S_OUT, 4)}, 0 offen")
    a.label("K2_END")
    a("s_endpgm")

    for ln in out_of_line:
        a(ln)

    a.label("K2_OVER")
    a(f"s_mov_b32 {s(sSLOW)}, 1")
    a(f"s_mov_b32 {s(sLO)}, 0")
    a(f"s_mov_b32 {s(sTOT)}, {s(sBT)}")
    a(f"v_add_u32 {v(tT)}, {s(sTL)}, {v(tT)}")
    a(f"v_and_b32 {v(t0)}, 31, {v(vLN)}")
    a(f"s_lshl_b32 {s(sT0)}, {s(sWV)}, 7")
    a(f"s_add_u32 {s(sT0)}, {s(sT0)}, {LTI}")
    a(f"v_lshl_add_u32 {v(t0)}, {v(t0)}, 2, {s(sT0)}")
    a(f"ds_write_b32 {v(t0)}, {v(tT)}")
    a("s_waitcnt vmcnt(0) lgkmcnt(0)")
    a("s_barrier")
    a("s_branch K2_SETUP")
    a.label("K2_NEXT")
    a(f"s_add_u32 {s(sLO)}, {s(sLO)}, {s(sBT)}")
    a(f"s_cmp_ge_u32 {s(sLO)}, {s(sTOT)}")
    a("s_cbranch_scc1 K2_FINAL")
    a(f"s_cmp_eq_u32 {s(sBT)}, 0")
    a("s_cbranch_scc1 K2_FINAL")
    a("s_barrier")
    a(f"s_lshl_b32 {s(sT0)}, {s(sWV)}, 6")
    a(f"v_add_u32 {v(tTID)}, {s(sT0)}, {v(vLN)}")
    lds_init(False)
    a.label("K2_SETUP")
    a(f"v_and_b32 {v(t0)}, 31, {v(vLN)}")
    a(f"s_lshl_b32 {s(sT0)}, {s(sWV)}, 5")
    a(f"v_add_u32 {v(tRA)}, {s(sT0)}, {v(t0)}")
    a(f"v_lshlrev_b32 {v(t1)}, 3, {v(tRA)}")
    a(f"buffer_load_dwordx2 {v(tDL, 2)}, {v(t1)}, {s(S_DESC, 4)}, 0 offen")
    a(f"v_lshlrev_b32 {v(t1)}, 2, {v(tRA)}")
    a(f"v_add_u32 {v(t1)}, {LTI}, {v(t1)}")
    a(f"ds_read_b32 {v(t2)}, {v(t1)}")
    a(f"v_mul_u32_u24 {v(tRA)}, {CH}, {v(tRA)}")
    a(f"v_lshrrev_b32 {v(tP2)}, 5, {v(vLN)}")
    a(f"v_lshlrev_b32 {v(tP2)}, 1, {v(tP2)}")
    a("s_waitcnt vmcnt(0) lgkmcnt(0)")
    a(f"v_and_b32 {v(t0)}, 1023, {v(tDL)}")
    a(f"v_lshrrev_b32 {v(t1)}, 20, {v(tDH)}")
    a(f"v_sub_u32 {v(t0)}, {v(t1)}, {v(t0)}")
    a(f"v_sub_u32 {v(t0)}, {v(t2)}, {v(t0)}")
    a(f"s_add_u32 {s(sT0)}, {s(sLO)}, {LIMIT}")
    a(f"v_cmp_le_u32 vcc, {s(sLO)}, {v(t0)}")
    a(f"v_cmp_ge_u32 {s(sT2, 2)}, {s(sT0)}, {v(t2)}")
    a("s_nop 1")
    a(f"s_and_b64 vcc, vcc, {s(sT2, 2)}")
    a("s_nop 1")
    a(f"v_cndmask_b32 {v(tDL)}, 0, {v(tDL)}, vcc")
    a(f"v_cndmask_b32 {v(tDH)}, 0, {v(tDH)}, vcc")
    a("s_branch K2_BATCH")
    return dict(name="edge_kernel", vgpr=256, sgpr=96, grid=NB, block=512, lds=K2_LDS)
```

```python
import sys
from asmlib import Asm, check_hazards
from k1 import gen_k1
from k2 import gen_k2

HEAD = open("standalone__cheap_equivariant_egnn__graph.s.ref").read().split("; Override launch")[0]


def build(gens):
    bodies, infos = [], []
    for g in gens:
        a = Asm()
        infos.append(g(a))
        bodies.append(a.text())
    out = HEAD
    for k in infos:
        out += f"; @launch kernel={k['name']} grid=({k['grid']},1,1) block=({k['block']},1,1) lds={k['lds']}\n"
    out += '.amdgcn_target "amdgcn-amd-amdhsa--gfx950"\n.text\n'
    for k, b in zip(infos, bodies):
        out += f".globl {k['name']}\n.p2align 8\n.type {k['name']},@function\n" + b
    out += '.section .rodata,"a"\n'
    for k in infos:
        acc = (k["vgpr"] + 3) // 4 * 4
        out += f""".p2align 6
.amdhsa_kernel {k['name']}
  .amdhsa_next_free_vgpr {k['vgpr']}
  .amdhsa_next_free_sgpr {k['sgpr']}
  .amdhsa_accum_offset {acc}
  .amdhsa_group_segment_fixed_size 0
  .amdhsa_kernarg_size 88
  .amdhsa_user_sgpr_count 2
  .amdhsa_user_sgpr_kernarg_segment_ptr 1
  .amdhsa_system_sgpr_workgroup_id_x 1
.end_amdhsa_kernel
"""
    for k, b in zip(infos, bodies):
        for p in check_hazards(b):
            print("HAZARD", k["name"], p)
    return out


if __name__ == "__main__":
    dst = sys.argv[1] if len(sys.argv) > 1 else "standalone__cheap_equivariant_egnn__graph.s"
    open(dst, "w").write(build([gen_k1, gen_k2]))
    print("wrote", dst)
```

```python
import re


class Asm:
    def __init__(self):
        self.lines = []

    def __call__(self, text):
        for ln in text.split("\n"):
            ln = ln.strip()
            if ln:
                self.lines.append(ln)

    def label(self, name):
        self.lines.append(name + ":")

    def comment(self, text):
        self.lines.append("; " + text)

    stamps = None

    def stamp(self, real=False):
        if self.stamps is None:
            return
        tmp, slots = self.stamps
        i = getattr(self, "_nst", 0)
        self._nst = i + 1
        self(f"s_memrealtime s[{tmp}:{tmp + 1}]" if real else f"s_memtime s[{tmp}:{tmp + 1}]")
        self("s_waitcnt lgkmcnt(0)")
        self(f"s_mov_b32 s{slots[i]}, s{tmp}")

    def dump_stamps(self, srd, base, vt, wave_sgpr, tmp_s):
        if self.stamps is None:
            return
        _, slots = self.stamps
        self(f"s_lshl_b32 s{tmp_s}, s2, 4")
        self(f"s_add_u32 s{tmp_s}, s{tmp_s}, s{wave_sgpr}")
        self(f"s_lshl_b32 s{tmp_s}, s{tmp_s}, 7")
        self(f"s_add_u32 s{tmp_s}, s{tmp_s}, {base}")
        self(f"v_mov_b32 v{vt}, 0")
        for i in range(self._nst):
            self(f"v_mov_b32 v{vt + 1}, s{slots[i]}")
            self(f"buffer_store_dword v{vt + 1}, v{vt}, s[{srd}:{srd + 3}], s{tmp_s} offen offset:{4 * i}")

    def text(self):
        out = []
        for ln in self.lines:
            if ln.endswith(":") or ln.startswith(".") or ln.startswith(";"):
                out.append(ln)
            else:
                out.append("    " + ln)
        return "\n".join(out) + "\n"


def v(n, cnt=1):
    return f"v{n}" if cnt == 1 else f"v[{n}:{n + cnt - 1}]"


def s(n, cnt=1):
    return f"s{n}" if cnt == 1 else f"s[{n}:{n + cnt - 1}]"


def interleave(main, extra, first=0, every=None):
    main = list(main)
    extra = list(extra)
    if not extra:
        return main
    if every is None:
        every = max(1, (len(main) - first) // len(extra))
    out = []
    k = 0
    for i, ins in enumerate(main):
        while k < len(extra) and i >= first and (i - first) == k * every:
            item = extra[k]
            out.extend(item if isinstance(item, list) else [item])
            k += 1
        out.append(ins)
    while k < len(extra):
        item = extra[k]
        out.extend(item if isinstance(item, list) else [item])
        k += 1
    return out


TRANS = ("v_exp_f32", "v_log_f32", "v_rcp_f32", "v_rsq_f32", "v_sqrt_f32", "v_sin_f32", "v_cos_f32")
_REG = re.compile(r"^-?(?:abs\()?([vsa])(?:(\d+)|\[(\d+):(\d+)\])\)?$")


def regs_of(op):
    op = op.strip()
    if op in ("vcc", "exec", "m0", "scc"):
        return {op}
    if op in ("vcc_lo", "vcc_hi"):
        return {"vcc"}
    m = _REG.match(op)
    if not m:
        return set()
    k = m.group(1)
    if m.group(2) is not None:
        return {k + m.group(2)}
    return {k + str(i) for i in range(int(m.group(3)), int(m.group(4)) + 1)}


class Ins:
    def __init__(self, text, idx):
        self.text = text
        self.idx = idx
        body = text.split(";")[0].strip()
        parts = body.split(None, 1)
        self.op = parts[0]
        rest = parts[1] if len(parts) > 1 else ""
        ops = []
        for tok in rest.split(","):
            tok = tok.strip()
            if tok:
                ops.append(tok.split()[0])
        self.ops = ops
        self.mods = rest
        op = self.op
        self.is_mfma = op.startswith("v_mfma")
        self.is_valu = op.startswith("v_") and not self.is_mfma
        self.is_trans = any(op.startswith(t) for t in TRANS)
        self.is_ds = op.startswith("ds_")
        self.is_vmem = op.startswith("buffer_") or op.startswith("global_")
        self.is_salu = op.startswith("s_")
        self.is_dpp = "_dpp" in op or "row_" in rest or "quad_perm" in rest
        self.defs, self.uses = set(), set()
        self.srcA = self.srcB = self.srcC = set()
        R = [regs_of(o) for o in ops]
        if self.is_mfma:
            self.defs = R[0]
            self.srcA, self.srcB = R[1], R[2]
            self.srcC = R[3] if len(R) > 3 else set()
            self.uses = self.srcA | self.srcB | self.srcC
            self.passes = 8 if "32x32x16" in op else 4
        elif self.is_valu:
            if op.startswith("v_cmp"):
                self.defs = R[0]
                self.uses = set().union(*R[1:])
                if op.startswith("v_cmpx"):
                    self.defs |= {"exec"}
            elif op.startswith("v_permlane32_swap") or op.startswith("v_permlane16_swap"):
                self.defs = R[0] | R[1]
                self.uses = R[0] | R[1]
            elif op.startswith("v_add_co") or op.startswith("v_addc_co") or op.startswith("v_sub_co"):
                self.defs = R[0] | R[1]
                self.uses = set().union(*R[2:])
            else:
                self.defs = R[0]
                self.uses = set().union(*R[1:]) if len(R) > 1 else set()
                if op.startswith("v_fmac") or self.is_dpp or op.startswith("v_writelane"):
                    self.uses |= R[0]
        elif self.is_ds:
            if op.startswith("ds_read") or "_rtn" in op or op.startswith("ds_bpermute") or op.startswith("ds_swizzle"):
                self.defs = R[0]
                self.uses = set().union(*R[1:]) if len(R) > 1 else set()
            else:
                self.uses = set().union(*R)
        elif self.is_vmem:
            lds = re.search(r"\blds\b", rest) is not None
            if "load" in op and not lds:
                self.defs = R[0]
                self.uses = set().union(*R[1:])
            else:
                self.uses = set().union(*R)
                if lds:
                    self.uses |= {"m0"}
            self.wide_store_data = R[0] if ("store_dwordx4" in op or "store_dwordx3" in op) else set()
        elif self.is_salu:
            if op.startswith("s_cmp") or op.startswith("s_bitcmp") or op.startswith("s_cbranch") or op in (
                    "s_waitcnt", "s_nop", "s_barrier", "s_endpgm", "s_branch", "s_setprio", "s_sleep",
                    "s_set_gpr_idx_off", "s_set_gpr_idx_on", "s_setpc_b64"):
                self.uses = set().union(*R) if R else set()
            else:
                self.defs = R[0] if R else set()
                self.uses = set().union(*R[1:]) if len(R) > 1 else set()
                if "saveexec" in op:
                    self.defs |= {"exec"}
        self.states = 1
        if op == "s_nop":
            self.states = int(ops[0], 0) + 1


def required(p, c):
    need = 0
    vdefs = {r for r in p.defs if r[0] in "va" and r not in ("vcc",)}
    sdefs = {r for r in p.defs if r[0] == "s" or r == "vcc"}
    if p.is_mfma:
        long_ = {8: 12, 4: 8}[p.passes]
        if c.is_mfma:
            if vdefs & (c.srcA | c.srcB):
                need = max(need, long_)
            if vdefs & c.srcC:
                if not (c.srcC == p.defs and c.passes == p.passes):
                    need = max(need, {8: 10, 4: 6}[p.passes])
            elif vdefs & c.defs and c.passes != p.passes:
                need = max(need, long_)
        elif c.is_valu or c.is_ds or c.is_vmem:
            if vdefs & (c.uses | c.defs):
                need = max(need, long_)
            if c.is_valu and (p.srcC & c.defs):
                need = max(need, {8: 7, 4: 3}[p.passes])
            if (c.is_ds or c.is_vmem) and (p.srcC & c.defs):
                need = max(need, {8: 7, 4: 3}[p.passes])
    if p.is_valu:
        if c.is_mfma and vdefs & c.uses:
            need = max(need, 2)
        if c.is_mfma and "exec" in p.defs:
            need = max(need, 4)
        if c.is_valu:
            if c.is_dpp and vdefs & c.uses:
                need = max(need, 2)
            if c.is_dpp and "exec" in p.defs:
                need = max(need, 5)
            if c.op.startswith("v_permlane") and vdefs & c.uses:
                need = max(need, 2)
            if (c.op.startswith("v_readlane") or c.op.startswith("v_readfirstlane")) and vdefs & c.uses:
                need = max(need, 1)
            if sdefs & c.uses:
                need = max(need, 2)
            if (c.op.startswith("v_readlane") or c.op.startswith("v_writelane")) and sdefs & regs_of(c.ops[-1]):
                need = max(need, 4)
            if p.is_trans and not c.is_trans and vdefs & c.uses:
                need = max(need, 1)
        if c.is_vmem and sdefs & c.uses:
            need = max(need, 5)
        if c.is_salu and sdefs & c.uses:
            need = max(need, 1)
    if p.is_salu and "m0" in p.defs and (c.is_vmem and "m0" in c.uses):
        need = max(need, 1)
    if p.is_vmem and getattr(p, "wide_store_data", set()) & c.defs:
        need = max(need, 2 if c.is_valu else 1)
    return need


def check_hazards(text, horizon=14):
    ins, labels = [], {}
    for ln in text.split("\n"):
        t = ln.split(";")[0].strip()
        if not t or t.startswith("."):
            continue
        if t.endswith(":"):
            labels[t[:-1]] = len(ins)
            continue
        ins.append(Ins(t, len(ins)))

    def succ(i):
        x = ins[i]
        if x.op == "s_endpgm" or x.op == "s_setpc_b64":
            return []
        if x.op == "s_branch":
            return [labels[x.ops[0]]]
        out = [i + 1] if i + 1 < len(ins) else []
        if x.op.startswith("s_cbranch"):
            out.append(labels[x.ops[0]])
        return out

    problems = []
    for p in ins:
        if not (p.is_mfma or p.is_valu or p.is_salu or p.is_vmem):
            continue
        seen = set()
        stack = [(j, 0) for j in succ(p.idx)]
        while stack:
            j, d = stack.pop()
            if j >= len(ins) or (j, d) in seen or d >= horizon:
                continue
            seen.add((j, d))
            c = ins[j]
            need = required(p, c)
            if need > d:
                problems.append(f"need {need} have {d}: [{p.idx}] {p.text}  ->  [{c.idx}] {c.text}")
            for k in succ(j):
                stack.append((k, d + c.states))
    return sorted(set(problems))
```

```python
N, E, D = 10000, 160000, 256
NB = 250
NC = 250
CH = 640
LOG2E = 0x3fb8aa3b
LN2 = 0x3f317218

BP_OFF, BP_SIZE = 4096, N * 512
REC_OFF, REC_SIZE = 5124096, E * 8
DESC_OFF, DESC_ROW = 6404096, 2048
DESC_SIZE = NB * DESC_ROW
FR_OFF, FR_ONE = 6918144, 131072
WS_USED = FR_OFF + 3 * FR_ONE
SLOW_OFF, SLOW_ROW = 16 << 20, 42 * 1024

H_SIZE = N * 512
POS_SIZE = N * 6
WE_SIZE = 514 * 512
WH_SIZE = 512 * 512
OUT_SIZE = N * 512 + N * 6


def colmap(x):
    b = [(x >> i) & 1 for i in range(6)]
    return (b[5] << 5) | (b[2] << 4) | (b[4] << 3) | (b[3] << 2) | (b[1] << 1) | b[0]


def pos2col(p):
    return (p & ~63) | colmap(p & 63)

STAMP1_OFF = 14 << 20
STAMP2_OFF = 15 << 20
```

```python
from asmlib import Asm, v, s
from cfg import *

HALF_H, HALF_W = 80 * 256, 128 * 256
LH, LW = 0, 2 * HALF_H
LBINS = LW + 2 * HALF_W
K1_LDS = LBINS + 1280 * 4
SCAN_WAVE, FRAG_WAVE = 2, 6


def srd(a, d, base, size):
    a(f"s_mov_b32 {s(d)}, {s(base)}")
    a(f"s_and_b32 {s(d + 1)}, {s(base + 1)}, 0xffff")
    a(f"s_mov_b32 {s(d + 2)}, {size}")
    a(f"s_mov_b32 {s(d + 3)}, 0x20000")


def srd_off(a, d, base, off, size):
    a(f"s_add_u32 {s(d)}, {s(base)}, {off}")
    a(f"s_addc_u32 {s(d + 1)}, {s(base + 1)}, 0")
    a(f"s_and_b32 {s(d + 1)}, {s(d + 1)}, 0xffff")
    a(f"s_mov_b32 {s(d + 2)}, {size}")
    a(f"s_mov_b32 {s(d + 3)}, 0x20000")


def wave_scan(a, r):
    for sh in (1, 2, 4, 8):
        a("s_nop 1")
        a(f"v_add_u32_dpp {v(r)}, {v(r)}, {v(r)} row_shr:{sh} row_mask:0xf bank_mask:0xf bound_ctrl:0")
    a("s_nop 1")
    a(f"v_add_u32_dpp {v(r)}, {v(r)}, {v(r)} row_bcast:15 row_mask:0xa bank_mask:0xf")
    a("s_nop 1")
    a(f"v_add_u32_dpp {v(r)}, {v(r)}, {v(r)} row_bcast:31 row_mask:0xc bank_mask:0xf")


def gen_k1(a, stamps=False):
    if stamps:
        a.stamps = (70, list(range(72, 90)))
    S_H, S_WE, S_DST, S_SRC, S_EA, S_WS, S_WH, S_DESC = 24, 28, 32, 36, 40, 44, 48, 52
    S_OUT = S_DST
    sWV, sRB, sCB, sFRAG, sT0, sT1, sT2, sSO, sHO, sWO = 56, 57, 58, 59, 60, 61, 62, 63, 64, 65
    sC = 66
    vLANE, vDST, vSRC, vEA, vBIN, vRANK, vREC = 1, 2, 3, 4, 5, 6, 8
    vT0, vT1, vT2, vT3 = 10, 11, 25, 26
    vFL, vFP, vFA = 12, 20, 24
    vDH, vDW = 28, 30
    vA, vQ, vDESC, vDA = 32, 52, 74, 82
    vACC, vHF, vWF, vHB, vWB, vOA = 88, 104, 32, 112, 116, 120
    vOUT = 32

    a.label("prep_kernel")
    a("s_cmp_ge_u32 s2, 256")
    a("s_cbranch_scc1 K1_END")
    a.stamp(True)
    a.stamp()
    a("s_load_dwordx16 s[4:19], s[0:1], 0")
    a("s_load_dwordx2 s[20:21], s[0:1], 80")
    a(f"v_lshrrev_b32 {v(vT0)}, 6, v0")
    a(f"v_and_b32 {v(vLANE)}, 63, v0")
    a(f"v_readfirstlane_b32 {s(sWV)}, {v(vT0)}")
    a(f"v_mov_b32 {v(vREC)}, 0")
    a(f"v_mov_b32 {v(vREC + 1)}, 0")
    a(f"v_lshlrev_b32 {v(vT0)}, 3, v0")
    a(f"v_add_u32 {v(vT0)}, {LBINS}, {v(vT0)}")
    a(f"ds_write_b64 {v(vT0)}, {v(vREC, 2)}")
    a(f"s_and_b32 {s(sT0)}, s2, 7")
    a(f"s_lshl_b32 {s(sT0)}, {s(sT0)}, 4")
    a(f"s_lshr_b32 {s(sT1)}, s2, 4")
    a(f"s_add_u32 {s(sRB)}, {s(sT0)}, {s(sT1)}")
    a(f"s_bfe_u32 {s(sCB)}, s2, 0x10003")
    a(f"s_mul_i32 {s(sT0)}, s2, {CH}")
    a(f"v_add_u32 {v(vT0)}, {s(sT0)}, v0")
    a(f"v_lshlrev_b32 {v(vT1)}, 2, {v(vT0)}")
    a(f"v_lshlrev_b32 {v(vT0)}, 1, {v(vT0)}")
    a(f"v_lshrrev_b32 {v(vT2)}, 4, {v(vLANE)}")
    a(f"v_and_b32 {v(vT3)}, 15, {v(vLANE)}")
    a(f"v_xor_b32 {v(vDH)}, {v(vT3)}, {v(vT2)}")
    a(f"v_lshlrev_b32 {v(vDH)}, 4, {v(vDH)}")
    a(f"v_lshl_or_b32 {v(vDH)}, {v(vT2)}, 9, {v(vDH)}")
    a(f"v_lshlrev_b32 {v(vDW)}, 1, {v(vT2)}")
    a(f"v_xor_b32 {v(vDW)}, {v(vT3)}, {v(vDW)}")
    a(f"v_lshlrev_b32 {v(vDW)}, 4, {v(vDW)}")
    a(f"v_lshl_or_b32 {v(vDW)}, {v(vT2)}, 9, {v(vDW)}")
    a(f"s_lshl_b32 {s(sT0)}, {s(sWV)}, 6")
    a(f"s_and_b32 {s(sT1)}, {s(sT0)}, 192")
    a(f"v_xor_b32 {v(vDH)}, {s(sT1)}, {v(vDH)}")
    a(f"v_xor_b32 {v(vDH + 1)}, 128, {v(vDH)}")
    a(f"s_and_b32 {s(sT1)}, {s(sT0)}, 128")
    a(f"v_xor_b32 {v(vDW)}, {s(sT1)}, {v(vDW)}")
    a(f"v_xor_b32 {v(vDW + 1)}, 128, {v(vDW)}")
    a(f"s_mul_i32 {s(sHO)}, {s(sRB)}, {80 * 512}")
    a(f"s_lshl_b32 {s(sT0)}, {s(sWV)}, 11")
    a(f"s_add_u32 {s(sHO)}, {s(sHO)}, {s(sT0)}")
    a(f"s_lshl_b32 {s(sWO)}, {s(sCB)}, 8")
    a(f"s_add_u32 {s(sWO)}, {s(sWO)}, {256 * 512}")
    a(f"s_add_u32 {s(sWO)}, {s(sWO)}, {s(sT0)}")
    a("s_waitcnt lgkmcnt(0)")
    a.stamp()
    srd(a, S_DST, 12, E * 4)
    a(f"buffer_load_dword {v(vDST)}, {v(vT1)}, {s(S_DST, 4)}, 0 offen")
    srd(a, S_SRC, 10, E * 4)
    a(f"buffer_load_dword {v(vSRC)}, {v(vT1)}, {s(S_SRC, 4)}, 0 offen")
    srd(a, S_EA, 8, E * 2)
    a(f"buffer_load_ushort {v(vEA)}, {v(vT0)}, {s(S_EA, 4)}, 0 offen")
    srd(a, S_H, 4, H_SIZE)
    srd(a, S_WE, 14, WE_SIZE)
    a("s_barrier")

    def dma_half(kh):
        a(f"s_lshl_b32 {s(sT0)}, {s(sWV)}, 10")
        for j in range(2):
            a(f"s_add_u32 m0, {s(sT0)}, {LH + HALF_H * kh + 10240 * j}")
            a(f"s_add_u32 {s(sT1)}, {s(sHO)}, {20480 * j + 256 * kh}")
            a(f"buffer_load_dwordx4 {v(vDH + (j & 1))}, {s(S_H, 4)}, {s(sT1)} offen lds")
        for j in range(4):
            if j == 3:
                a(f"s_cmp_ge_u32 {s(sWV)}, 2")
                a(f"s_cbranch_scc1 K1_ND{kh}")
            a(f"s_add_u32 m0, {s(sT0)}, {LW + HALF_W * kh + 10240 * j}")
            a(f"s_add_u32 {s(sT1)}, {s(sWO)}, {20480 * j + 65536 * kh}")
            a(f"buffer_load_dwordx4 {v(vDW + (j & 1))}, {s(S_WE, 4)}, {s(sT1)} offen lds")
        a.label(f"K1_ND{kh}")

    dma_half(0)
    a.stamp()
    a("s_waitcnt vmcnt(5)")
    a.stamp()
    a(f"v_lshrrev_b32 {v(vT0)}, 3, {v(vDST)}")
    a(f"v_lshlrev_b32 {v(vBIN)}, 2, {v(vT0)}")
    a(f"v_add_u32 {v(vBIN)}, {LBINS}, {v(vBIN)}")
    a(f"s_cmp_lt_u32 s2, {NC}")
    a(f"s_cselect_b32 {s(sT0)}, 1, 0")
    a(f"v_mov_b32 {v(vT1)}, {s(sT0)}")
    a(f"ds_add_rtn_u32 {v(vRANK)}, {v(vBIN)}, {v(vT1)}")
    dma_half(1)

    srd(a, S_WS, 20, WS_USED)
    a(f"s_lshl_b32 {s(sT1)}, s2, 11")
    a(f"s_add_u32 {s(sT1)}, {s(sT1)}, {FR_OFF - FRAG_WAVE * 1024}")
    a(f"v_lshl_add_u32 {v(vFA)}, v0, 4, {s(sT1)}")
    a(f"s_sub_u32 {s(sT0)}, {s(sWV)}, {FRAG_WAVE}")
    a(f"s_cmp_lt_u32 {s(sT0)}, 2")
    a(f"s_cselect_b32 {s(sFRAG)}, 1, 0")
    a(f"s_cmp_lt_u32 s2, 192")
    a(f"s_cselect_b32 {s(sFRAG)}, {s(sFRAG)}, 0")
    a(f"s_cmp_eq_u32 {s(sFRAG)}, 0")
    a("s_cbranch_scc1 K1_NOFRAG")
    a(f"s_cmp_lt_u32 s2, 64")
    a(f"s_cselect_b32 {s(S_WH)}, s14, s18")
    a(f"s_cselect_b32 {s(S_WH + 1)}, s15, s19")
    a(f"s_cselect_b32 {s(sT2)}, 1, 0")
    a(f"s_and_b32 {s(S_WH + 1)}, {s(S_WH + 1)}, 0xffff")
    a(f"s_mov_b32 {s(S_WH + 2)}, {WH_SIZE}")
    a(f"s_mov_b32 {s(S_WH + 3)}, 0x20000")
    a(f"s_and_b32 {s(sT1)}, s2, 63")
    a(f"s_lshl_b32 {s(sT1)}, {s(sT1)}, 1")
    a(f"s_add_u32 {s(sT0)}, {s(sT0)}, {s(sT1)}")
    a(f"s_and_b32 {s(sT1)}, {s(sT0)}, 8")
    a(f"s_lshl_b32 {s(sT2)}, {s(sT1)}, {s(sT2)}")
    a(f"s_lshr_b32 {s(sT1)}, {s(sT0)}, 4")
    a(f"s_lshl_b32 {s(sT1)}, {s(sT1)}, 6")
    a(f"s_add_u32 {s(sT1)}, {s(sT1)}, {s(sT2)}")
    a(f"s_and_b32 {s(sT0)}, {s(sT0)}, 7")
    a(f"s_lshl_b32 {s(sT0)}, {s(sT0)}, 14")
    a(f"s_add_u32 {s(sT1)}, {s(sT1)}, {s(sT0)}")
    a(f"v_and_b32 {v(vT1)}, 3, {v(vLANE)}")
    a(f"v_bfe_u32 {v(vT2)}, {v(vLANE)}, 2, 2")
    a(f"v_lshl_or_b32 {v(vT3)}, {v(vT2)}, 3, {v(vT1)}")
    a(f"s_cmp_ge_u32 s2, 64")
    a("s_cbranch_scc1 K1_FCOL")
    a(f"v_bfe_u32 {v(vT2)}, {v(vLANE)}, 2, 1")
    a(f"v_lshl_or_b32 {v(vT1)}, {v(vT2)}, 4, {v(vT1)}")
    a(f"v_bfe_u32 {v(vT2)}, {v(vLANE)}, 3, 1")
    a(f"v_lshl_or_b32 {v(vT3)}, {v(vT2)}, 2, {v(vT1)}")
    a.label("K1_FCOL")
    a(f"v_lshlrev_b32 {v(vT1)}, 1, {v(vT3)}")
    a(f"v_lshrrev_b32 {v(vT2)}, 4, {v(vLANE)}")
    a(f"s_cmp_ge_u32 s2, 128")
    a(f"s_cselect_b32 {s(sT2)}, 11, 12")
    a(f"s_cselect_b32 {s(sSO)}, 6144, 0")
    a(f"s_cselect_b32 {s(sT0)}, {256 * 512}, 0")
    a(f"s_add_u32 {s(sT1)}, {s(sT1)}, {s(sT0)}")
    a(f"v_lshlrev_b32 {v(vT2)}, {s(sT2)}, {v(vT2)}")
    a(f"v_add3_u32 {v(vT1)}, {v(vT1)}, {v(vT2)}, {s(sT1)}")
    for t in range(8):
        so = "0" if t < 4 else s(sSO)
        a(f"buffer_load_ushort {v(vFL + t)}, {v(vT1)}, {s(S_WH, 4)}, {so} offen offset:{t * 512}")
    a("s_waitcnt vmcnt(13)")
    a("s_branch K1_FRAGD")
    a.label("K1_NOFRAG")
    a("s_waitcnt vmcnt(5)")
    a.label("K1_FRAGD")

    a(f"v_mul_u32_u24 {v(vT1)}, 52429, {v(vT0)}")
    a(f"v_lshrrev_b32 {v(vT1)}, 18, {v(vT1)}")
    a(f"v_mul_u32_u24 {v(vT1)}, 5, {v(vT1)}")
    a(f"v_sub_u32 {v(vT0)}, {v(vT0)}, {v(vT1)}")
    a(f"v_and_b32 {v(vT1)}, 7, {v(vDST)}")
    a(f"v_lshl_or_b32 {v(vT1)}, {v(vT0)}, 3, {v(vT1)}")
    a(f"v_lshlrev_b32 {v(vREC)}, 9, {v(vSRC)}")
    a(f"v_lshl_or_b32 {v(vEA)}, {v(vT1)}, 16, {v(vEA)}")
    a(f"s_cmp_ge_u32 {s(sWV)}, 5")
    a(f"s_cselect_b32 {s(sT0)}, 1, 0")
    a(f"s_cselect_b32 {s(sT1)}, 5, 0")
    a(f"s_sub_u32 {s(sT1)}, {s(sWV)}, {s(sT1)}")
    a(f"v_and_b32 {v(vT0)}, 15, {v(vLANE)}")
    a(f"v_lshrrev_b32 {v(vT1)}, 4, {v(vLANE)}")
    a(f"v_xor_b32 {v(vT2)}, {v(vT0)}, {v(vT1)}")
    a(f"v_lshlrev_b32 {v(vT2)}, 4, {v(vT2)}")
    a(f"v_lshl_or_b32 {v(vT2)}, {v(vT0)}, 8, {v(vT2)}")
    a(f"s_lshl_b32 {s(sT2)}, {s(sT1)}, 12")
    a(f"v_add_u32 {v(vHB)}, {s(sT2)}, {v(vT2)}")
    for k in range(1, 4):
        a(f"v_xor_b32 {v(vHB + k)}, {64 * k}, {v(vHB)}")
    a(f"v_bfe_u32 {v(vT0)}, {v(vLANE)}, 2, 2")
    a(f"v_lshl_or_b32 {v(vT2)}, {v(vT1)}, 3, {v(vT0)}")
    a(f"v_lshlrev_b32 {v(vT2)}, 8, {v(vT2)}")
    a(f"v_and_b32 {v(vT1)}, 1, {v(vT1)}")
    a(f"v_xor_b32 {v(vT1)}, {s(sT0)}, {v(vT1)}")
    a(f"v_lshl_or_b32 {v(vT0)}, {v(vT1)}, 2, {v(vT0)}")
    a(f"v_lshl_or_b32 {v(vT2)}, {v(vT0)}, 5, {v(vT2)}")
    a(f"v_and_b32 {v(vT0)}, 3, {v(vLANE)}")
    a(f"v_lshl_or_b32 {v(vT2)}, {v(vT0)}, 3, {v(vT2)}")
    a(f"v_add_u32 {v(vWB)}, {LW}, {v(vT2)}")
    for ti in range(1, 4):
        a(f"v_xor_b32 {v(vWB + ti)}, {32 * ti}, {v(vWB)}")
    a(f"s_mul_i32 {s(sSO)}, {s(sRB)}, 80")
    a(f"s_lshl_b32 {s(sT1)}, {s(sT1)}, 4")
    a(f"s_add_u32 {s(sSO)}, {s(sSO)}, {s(sT1)}")
    a(f"s_lshl_b32 {s(sSO)}, {s(sSO)}, 9")
    a(f"s_lshl_b32 {s(sT1)}, {s(sCB)}, 1")
    a(f"s_add_u32 {s(sT0)}, {s(sT0)}, {s(sT1)}")
    a(f"s_lshl_b32 {s(sT0)}, {s(sT0)}, 7")
    a(f"s_add_u32 {s(sSO)}, {s(sSO)}, {s(sT0)}")
    a(f"v_and_b32 {v(vT0)}, 15, {v(vLANE)}")
    a(f"v_and_b32 {v(vT1)}, 48, {v(vLANE)}")
    a(f"v_lshl_or_b32 {v(vOA)}, {v(vT0)}, 9, {v(vT1)}")
    a(f"s_and_b32 {s(sT0)}, s2, 7")
    a(f"s_lshl_b32 {s(sT0)}, {s(sT0)}, 8")
    a(f"s_and_b32 {s(sT1)}, s2, 0xf8")
    a(f"s_add_u32 {s(sT0)}, {s(sT0)}, {s(sT1)}")
    a(f"v_lshl_add_u32 {v(vDA)}, {v(vLANE)}, 13, {s(sT0)}")
    a("s_waitcnt lgkmcnt(0)")
    a(f"v_lshl_or_b32 {v(vREC + 1)}, {v(vRANK)}, 22, {v(vEA)}")
    a("s_barrier")
    a.stamp()
    a(f"s_cmp_lg_u32 {s(sWV)}, {SCAN_WAVE}")
    a("s_cbranch_scc1 K1_NOSCAN")
    a(f"v_mul_u32_u24 {v(vT0)}, 80, {v(vLANE)}")
    a(f"v_add_u32 {v(vT0)}, {LBINS}, {v(vT0)}")
    for i in range(5):
        a(f"ds_read_b128 {v(vA + 4 * i, 4)}, {v(vT0)} offset:{16 * i}")
    a("s_waitcnt lgkmcnt(0)")
    for i in range(1, 20):
        a(f"v_add_u32 {v(vA + i)}, {v(vA + i - 1)}, {v(vA + i)}")
    a(f"v_mov_b32 {v(vT1)}, {v(vA + 19)}")
    wave_scan(a, vT1)
    a(f"v_sub_u32 {v(vQ)}, {v(vT1)}, {v(vA + 19)}")
    for i in range(1, 21):
        a(f"v_add_u32 {v(vQ + i)}, {v(vQ)}, {v(vA + i - 1)}")
    for i in range(5):
        a(f"ds_write_b128 {v(vT0)}, {v(vQ + 4 * i, 4)} offset:{16 * i}")
    for j in range(4):
        for hl in range(2):
            r = vQ + 5 * j + 3 * hl
            d = vDESC + 2 * j + hl
            a(f"v_lshl_or_b32 {v(d)}, {v(r + 1)}, 10, {v(r)}")
            a(f"v_lshl_or_b32 {v(d)}, {v(r + 2)}, 20, {v(d)}")
    a("s_waitcnt lgkmcnt(0)")
    a.label("K1_NOSCAN")
    a.stamp()

    def reads(kk):
        b, kh, k4 = kk & 1, kk >> 2, kk & 3
        out = [f"ds_read_b128 {v(vHF + 4 * b, 4)}, {v(vHB + k4)} offset:{HALF_H * kh}"]
        for ti in range(4):
            for half in range(2):
                out.append(f"ds_read_b64_tr_b16 {v(vWF + 16 * b + 4 * ti + 2 * half, 2)}, {v(vWB + ti)} offset:{HALF_W * kh + 8192 * k4 + 1024 * half}")
        return out

    def gemm_half(kh):
        for ln in reads(4 * kh):
            a(ln)
        for kk in range(4 * kh, 4 * kh + 4):
            b = kk & 1
            a("s_waitcnt lgkmcnt(0)")
            nxt = reads(kk + 1) if (kk & 3) < 3 else []
            for ti in range(4):
                d = vACC + 4 * ti
                for _ in range(3):
                    if nxt:
                        a(nxt.pop(0))
                a(f"v_mfma_f32_16x16x32_bf16 {v(d, 4)}, {v(vWF + 16 * b + 4 * ti, 4)}, {v(vHF + 4 * b, 4)}, {'0' if kk == 0 else v(d, 4)}")

    def middle(tag):
        a("s_waitcnt vmcnt(0)")
        a("s_barrier")
        a.stamp()
        a(f"ds_read_b32 {v(vT0)}, {v(vBIN)}")
        srd_off(a, S_SRC, 20, REC_OFF, REC_SIZE)
        a(f"s_mul_i32 {s(sT0)}, s2, {CH * 8}")
        a("s_waitcnt lgkmcnt(0)")
        a(f"v_add_lshl_u32 {v(vT0)}, {v(vT0)}, {v(vRANK)}, 3")
        a(f"buffer_store_dwordx2 {v(vREC, 2)}, {v(vT0)}, {s(S_SRC, 4)}, {s(sT0)} offen")
        a(f"s_cmp_lg_u32 {s(sWV)}, {SCAN_WAVE}")
        a(f"s_cbranch_scc1 K1_NOREC{tag}")
        srd_off(a, S_DESC, 20, DESC_OFF, DESC_SIZE)
        for j in range(4):
            a(f"s_mov_b32 {s(sT0)}, {j * DESC_ROW}")
            a(f"buffer_store_dwordx2 {v(vDESC + 2 * j, 2)}, {v(vDA)}, {s(S_DESC, 4)}, {s(sT0)} offen")
        a.label(f"K1_NOREC{tag}")
        a(f"s_cmp_eq_u32 {s(sFRAG)}, 0")
        a(f"s_cbranch_scc1 K1_NOFST{tag}")
        for p in range(4):
            a(f"v_lshl_or_b32 {v(vFP + p)}, {v(vFL + 2 * p + 1)}, 16, {v(vFL + 2 * p)}")
        a(f"buffer_store_dwordx4 {v(vFP, 4)}, {v(vFA)}, {s(S_WS, 4)}, 0 offen")
        a.label(f"K1_NOFST{tag}")
        a.stamp()

    def scale_pack():
        a(f"s_mov_b32 {s(sC)}, {LOG2E}")
        a(f"s_mov_b32 {s(sC + 1)}, {LOG2E}")
        for p in range(8):
            a(f"v_pk_mul_f32 {v(vACC + 2 * p, 2)}, {v(vACC + 2 * p, 2)}, {s(sC, 2)}")
        for p in range(8):
            a(f"v_cvt_pk_bf16_f32 {v(vOUT + p)}, {v(vACC + 2 * p)}, {v(vACC + 2 * p + 1)}")

    def finish():
        a.stamp()
        if a.stamps:
            a("s_waitcnt vmcnt(0)")
        a.stamp()
        a.stamp(True)
        if a.stamps:
            srd(a, S_WS, 20, 16 << 20)
        a.dump_stamps(S_WS, STAMP1_OFF, 0, sWV, sT0)

    gemm_half(0)
    middle("")
    srd(a, S_EA, 6, POS_SIZE)
    a(f"s_lshr_b32 {s(sT0)}, s2, 3")
    a(f"s_lshl_b32 {s(sT0)}, {s(sT0)}, 11")
    a(f"v_lshlrev_b32 {v(vT1)}, 2, v0")
    a(f"buffer_load_dword {v(vT2)}, {v(vT1)}, {s(S_EA, 4)}, {s(sT0)} offen")
    gemm_half(1)
    a.stamp()
    srd_off(a, S_OUT, 20, BP_OFF, BP_SIZE)
    a("s_nop 0")
    scale_pack()
    for tp in range(2):
        a(f"buffer_store_dwordx4 {v(vOUT + 4 * tp, 4)}, {v(vOA)}, {s(S_OUT, 4)}, {s(sSO)} offen offset:{64 * tp}")
    finish()
    a.label("K1_END")
    a("s_endpgm")
    return dict(name="prep_kernel", vgpr=124, sgpr=96, grid=256, block=640, lds=K1_LDS)
```

```python
import os
from asmlib import Asm, v, s
from cfg import *
from k1 import srd, srd_off

NTMAX = 52
CAP = NTMAX * 16
LIMIT = CAP - 75
XT = 384
LS = 0
LX = LS + NTMAX * 1024
LL = LX + NTMAX * XT
LE = LL + (CAP + 64) * 4
LZ = LE + CAP * 4
LPOS = LZ + 512
LWX = LPOS + 6 * 512
LTOT = LWX + 512
LPD = LTOT + 128
LM = LPD + 256
MROW = 528
LH = (LM + 48 * MROW + 255) // 256 * 256
LR = LH + 40 * 512
RING = 4096
K2_LDS = LR + 8 * RING
assert LM % 16 == 0 and LR % 64 == 0 and LZ % 16 == 0 and K2_LDS <= 163840
MARK = 0x40000000
SPLIT_NUM = int(os.environ.get("SPLIT", "42"))

YA, YB, EA_, EB = 0, 16, 32, 48
ACC, MP, AF, X2, SP, LST = 64, 96, 104, 112, 120, 124
Y2Q, Y2C, Y2K, ID, QUA, ZER = 128, 148, 152, 156, 164, 168
vS, vL, vX1, vX2, vXS, vR0, vG, vR1, vMA, vWXA, vT0, vT1, vLN, vTID = range(172, 186)
vHB = 186
WH2 = 192
T = WH2
S_BP, S_REC, S_DESC, S_FR, S_H, S_POS, S_OUT, S_TMP = 24, 28, 32, 36, 40, 44, 48, 52
sK3, sK2, sK1, sIT = 56, 57, 58, 59
sWV, sQ, sST, sFIRST, sSLOW, sLO, sTOT = 60, 61, 62, 63, 64, 65, 66
sTB = 67
sINIT = 73
sMASK = 74
sREM, sPEND, sGA, sRB, sT0, sT1, sT2, sT3 = 76, 77, 78, 79, 80, 81, 82, 83
sC0 = 84
sWB, sTL, sBT, sPS = 86, 87, 88, 89
sE0, sE1 = 90, 92
sWRT, sGX, sW1 = 23, 21, 99
sSTR = 100

uid = [0]


def fresh():
    uid[0] += 1
    return uid[0]


def emit(a, lines):
    for ln in lines:
        a(ln)


def group_of(a, dst, tile):
    a(f"s_mov_b32 {s(dst)}, 0")
    for g in range(1, 5):
        a(f"s_cmp_ge_u32 {s(tile)}, {s(sTB + g)}")
        a(f"s_addc_u32 {s(dst)}, {s(dst)}, 0")


def tile_index(a, off):
    a(f"s_sub_u32 {s(sTL)}, {s(sPEND)}, {s(sREM)}")
    a(f"s_lshl_b32 {s(sTL)}, {s(sTL)}, 1")
    a(f"s_add_u32 {s(sTL)}, {s(sTL)}, {(off - 2) & 0xffffffff}")


def mf32(d, x, y, c):
    return f"v_mfma_f32_32x32x16_bf16 {v(d, 16)}, {v(x, 4)}, {v(y, 4)}, {c if c == '0' else v(c, 16)}"


def mf16(d, x, y, c):
    return f"v_mfma_f32_16x16x32_bf16 {v(d, 4)}, {v(x, 4)}, {v(y, 4)}, {c if c == '0' else v(c, 4)}"


def p_mfmas(Y):
    return [mf32(Y, AF, ID, "0"), mf32(Y, AF + 4, ID + 4, Y), mf32(Y, X2, Y2C, Y), mf32(Y, X2 + 4, Y2K, Y)]


S1, S2 = mf32(ACC, MP, SP, ACC), mf32(ACC + 16, MP + 4, SP, ACC + 16)


def flush(b, F):
    n = fresh()
    b(f"s_cmp_lg_u32 {s(sSLOW)}, 0")
    b(f"s_cbranch_scc1 K2_FA{n}")
    b.label(f"K2_FB{n}")
    b(f"s_mul_i32 {s(sT0)}, {s(sGA)}, {8 * MROW}")
    b(f"s_lshl_b32 {s(sT1)}, {s(sGA)}, 9")
    b(f"s_lshl_b32 {s(sT2)}, {s(sQ)}, 7")
    b(f"s_add_u32 {s(sT1)}, {s(sT1)}, {s(sT2)}")
    b(f"s_add_u32 {s(sT1)}, {s(sT1)}, {LPOS}")
    for st in range(2):
        for p in range(8):
            b(f"v_cvt_pk_bf16_f32 {v(F + 8 * st + p)}, {v(ACC + 16 * st + 2 * p)}, {v(ACC + 16 * st + 2 * p + 1)}")
        if st == 0:
            for k in range(4):
                b(f"ds_read_b128 {v(ACC + 4 * k, 4)}, {v(vWXA)} offset:{32 * k}")
    b(f"v_add_u32 {v(vT0)}, {s(sT0)}, {v(vMA)}")
    b(f"v_lshl_add_u32 {v(vT1)}, {v(vLN)}, 2, {s(sT1)}")
    b("s_waitcnt lgkmcnt(0)")
    for k in range(4):
        b(mf32(ACC + 16, ACC + 4 * k, F + 4 * k, "0" if k == 0 else ACC + 16))
    b(f"s_mov_b64 exec, {s(sE0, 2)}")
    for st in range(2):
        for p in range(4):
            b(f"ds_write_b64 {v(vT0)}, {v(F + 8 * st + 2 * p, 2)} offset:{64 * st + 16 * p}")
    b(f"s_mov_b64 exec, {s(sE1, 2)}")
    b(f"s_cmp_lg_u32 {s(sSLOW)}, 0")
    b(f"s_cbranch_scc1 K2_FC{n}")
    b(f"ds_write_b32 {v(vT1)}, {v(ACC + 16)}")
    b.label(f"K2_FD{n}")
    b("s_mov_b64 exec, -1")
    o = Asm()
    o.label(f"K2_FA{n}")
    o(f"s_lshl_b32 {s(sT0)}, {s(sGA)}, 13")
    o(f"s_lshl_b32 {s(sT1)}, {s(sQ)}, 8")
    o(f"s_add_u32 {s(sT0)}, {s(sT0)}, {s(sT1)}")
    o(f"v_and_b32 {v(vT0)}, 7, {v(vLN)}")
    o(f"v_lshrrev_b32 {v(vT1)}, 5, {v(vLN)}")
    o(f"v_lshlrev_b32 {v(vT1)}, 4, {v(vT1)}")
    o(f"v_lshl_or_b32 {v(vT0)}, {v(vT0)}, 10, {v(vT1)}")
    o(f"s_mov_b64 exec, {s(sE0, 2)}")
    for st in range(2):
        for k in range(4):
            o(f"buffer_load_dwordx4 {v(F + 4 * k, 4)}, {v(vT0)}, {s(S_TMP, 4)}, {s(sT0)} offen offset:{128 * st + 32 * k} sc1")
        o("s_waitcnt vmcnt(0)")
        for p in range(8):
            o(f"v_pk_add_f32 {v(F + 2 * p, 2)}, {v(F + 2 * p, 2)}, {v(ACC + 16 * st + 2 * p, 2)}")
        for k in range(4):
            o(f"buffer_store_dwordx4 {v(F + 4 * k, 4)}, {v(vT0)}, {s(S_TMP, 4)}, {s(sT0)} offen offset:{128 * st + 32 * k}")
        o("s_waitcnt vmcnt(0)")
    o("s_mov_b64 exec, -1")
    o(f"s_branch K2_FB{n}")
    o.label(f"K2_FC{n}")
    o(f"ds_add_f32 {v(vT1)}, {v(ACC + 16)}")
    o(f"s_branch K2_FD{n}")
    return o.lines


def wh2_part(o, n, done):
    o(f"v_lshlrev_b32 {v(vT0)}, 4, {v(vLN)}")
    o(f"s_lshl_b32 {s(sT0)}, {s(sIT)}, 12")
    o(f"s_add_u32 {s(sT0)}, {s(sT0)}, {s(sWB)}")
    o(f"s_add_u32 {s(sIT)}, {s(sIT)}, 1")
    for part in range(4):
        if part < 3:
            o(f"s_cmp_lg_u32 {s(sIT)}, {part + 1}")
            o(f"s_cbranch_scc1 K2_W{n}_{part + 1}")
        for f in range(4):
            o(f"buffer_load_dwordx4 {v(WH2 + 16 * part + 4 * f, 4)}, {v(vT0)}, {s(S_FR, 4)}, {s(sT0)} offen offset:{1024 * f}")
        o(f"s_branch {done}")
        if part < 3:
            o.label(f"K2_W{n}_{part + 1}")


def site(off_s, off_p, F):
    n = fresh()
    bits = (0 if off_s is None else 1 << (off_s + 1)) | (0 if off_p is None else 1 << (off_p + 1))
    chk = [f"s_and_b32 {s(sT0)}, {s(sMASK)}, {bits}", f"s_cbranch_scc1 K2_H{n}", f"K2_R{n}:"]
    o = Asm()
    far = []
    o.label(f"K2_H{n}")
    if off_s is not None:
        if off_p is not None:
            o(f"s_bitcmp1_b32 {s(sMASK)}, {off_s + 1}")
            o(f"s_cbranch_scc0 K2_HP{n}")
        o(f"s_cmp_eq_u32 {s(sGA)}, -1")
        o(f"s_cbranch_scc1 K2_H0{n}")
        far = flush(o, F)
        tile_index(o, off_s)
        group_of(o, sGA, sTL)
        o.label(f"K2_HZ{n}")
        o(mf32(ACC, QUA, ZER, "0"))
        o(mf32(ACC + 16, QUA, ZER, "0"))
    if off_p is not None:
        if off_s is not None:
            o(f"s_bitcmp1_b32 {s(sMASK)}, {off_p + 1}")
            o(f"s_cbranch_scc0 K2_HD{n}")
        o.label(f"K2_HP{n}")
        tile_index(o, off_p)
        group_of(o, sT0, sTL)
        o(f"s_lshl_b32 {s(sT0)}, {s(sT0)}, 2")
        o(f"s_set_gpr_idx_on {s(sT0)}, gpr_idx(SRC0)")
        for i in range(4):
            o(f"v_mov_b32 {v(Y2C + i)}, {v(Y2Q + i)}")
        o("s_set_gpr_idx_off")
        o(f"s_mov_b32 m0, {s(sRB)}")
    o.label(f"K2_HD{n}")
    if "x" in os.environ.get("ABL", ""):
        o(f"s_branch K2_R{n}")
    o(f"s_cmp_ge_u32 {s(sIT)}, 4")
    o(f"s_cbranch_scc1 K2_R{n}")
    wh2_part(o, n, f"K2_R{n}")
    if off_s is not None:
        o.label(f"K2_H0{n}")
        o(f"s_mov_b32 {s(sGA)}, {s(sINIT)}")
        o(f"s_branch K2_HZ{n}")
    return chk, o.lines + far


def dma(slot):
    so = [s(sK3), s(sK2), s(sK1), "0"]
    return [f"buffer_load_dwordx4 {v(LST + 2 * slot + i)}, {s(S_BP, 4)}, {so[2 * slot + i]} offen offset:{2048 * slot + 1024 * i} lds" for i in range(2)]


LST_ADD = [f"v_pk_add_f32 {v(LST + 2 * i, 2)}, {v(LST + 2 * i, 2)}, {v(vG, 2)} op_sel_hi:[1,0]" for i in range(2)]


def frag_reads(slot):
    return [f"ds_read_b128 {v(AF, 4)}, {v(vR0)} offset:{slot * 2048}",
            f"ds_read_b128 {v(AF + 4, 4)}, {v(vR1)} offset:{slot * 2048}",
            f"ds_read_b128 {v(X2, 4)}, {v(vX1)} offset:{slot * XT}",
            f"ds_read_b64 {v(X2 + 4, 2)}, {v(vX2)} offset:{slot * XT}"]


def list_read(ahead):
    return f"ds_read2_b64 {v(LST, 4)}, {v(vL)} offset0:{16 * ahead} offset1:{16 * ahead + 8}"


ADV_X = f"v_pk_add_f32 {v(vX1, 2)}, {v(vX1, 2)}, {v(vXS, 2)} op_sel_hi:[1,0]"
ADV_S = f"v_pk_add_f32 {v(vS, 2)}, {v(vS, 2)}, {s(sSTR, 2)}"


def exps(Y, Ex):
    return [f"v_exp_f32 {v(Ex + i)}, -{v(Y + i)}" for i in range(16)]


def rcps(Ex):
    return [f"v_rcp_f32 {v(Ex + i)}, {v(Ex + i)}" for i in range(16)]


def pkmuls(Y, Ex):
    return [f"v_pk_mul_f32 {v(Ex + 2 * i, 2)}, {v(Ex + 2 * i, 2)}, {v(Y + 2 * i, 2)}" for i in range(8)]


def cvts(Ex):
    return [f"v_cvt_pk_bf16_f32 {v(MP + i)}, {v(Ex + 2 * i)}, {v(Ex + 2 * i + 1)}" for i in range(8)]


def plus_one(Ex):
    return mf32(Ex, QUA, QUA, Ex)


def place(main, items):
    out = []
    for i, ins in enumerate(main + [None]):
        for pos, lines in items:
            if pos == i:
                out.extend(lines if isinstance(lines, list) else [lines])
        if ins is not None:
            out.append(ins)
    return out


def loop_body(far, mm=(0, 6, 10, 13, 16, 19), dm=(2, 4), op=2, r0=7, r1=14, pw=11, prio=True):
    hi = ["s_setprio 3"] if prio else []
    lo = ["s_setprio 0"] if prio else []
    chk, o = site(-1, 1, YB)
    far.extend(o)
    m, d = p_mfmas(YB) + [S1, S2], dma(1)
    blk = place(cvts(EB) + exps(YA, EA_) + exps(YB, EB), [(0, lo + ["s_waitcnt lgkmcnt(0)"] + chk)] +
                [(mm[i], m[i]) for i in range(6)] + [(dm[0], d[0]), (dm[1], d[1])] +
                [(mm[5] + 1, [f"ds_read_b128 {v(SP, 4)}, {v(vS)}", list_read(2)]), (24 + op, plus_one(EA_))])
    blk += place(rcps(EA_) + pkmuls(YA, EA_) + LST_ADD, [
        (op, plus_one(EB)), (r0, ["s_waitcnt vmcnt(2) lgkmcnt(0)"] + frag_reads(0)), (pw, hi)])
    chk, o = site(0, 2, YA)
    far.extend(o)
    m, d = p_mfmas(YA) + [S1, S2], dma(0)
    blk += place(cvts(EA_) + rcps(EB) + pkmuls(YB, EB) + [ADV_S, ADV_X], [(0, lo + ["s_waitcnt lgkmcnt(0)"] + chk)] +
                 [(mm[i], m[i]) for i in range(6)] + [(dm[0], d[0]), (dm[1], d[1])] +
                 [(r1, ["s_waitcnt vmcnt(2)"] + frag_reads(1)),
                  (r1 + 3, [f"s_lshr_b64 {s(sMASK, 2)}, {s(sMASK, 2)}, 2", f"s_sub_u32 {s(sREM)}, {s(sREM)}, 1"]),
                  (mm[5] + 1, [f"ds_read_b128 {v(SP, 4)}, {v(vS)} offset:1024"] + hi)])
    return blk


def spread(main, extra):
    n, k = len(main), len(extra)
    return place(main, [(min(n, (i * n) // k + (n // k) // 2), x) for i, x in enumerate(extra)])


def capture(fn):
    b = Asm()
    fn(b)
    return b.lines


def colmap_v(a, dst, src, tmp):
    a(f"v_and_b32 {v(dst)}, 0x23, {v(src)}")
    a(f"v_bfe_u32 {v(tmp)}, {v(src)}, 2, 1")
    a(f"v_lshl_or_b32 {v(dst)}, {v(tmp)}, 4, {v(dst)}")
    a(f"v_bfe_u32 {v(tmp)}, {v(src)}, 3, 2")
    a(f"v_lshl_or_b32 {v(dst)}, {v(tmp)}, 2, {v(dst)}")


def gen_k2(a, stamps=False):
    if stamps:
        a.stamps = (94, [96, 97, 98] + list(range(4, 20)))
    tDL, tDH, tN, tO0, tP2, tRA = T, T + 1, T + 2, T + 3, T + 4, T + 5
    tA, tB, tT = T + 6, T + 7, T + 8
    tF = T + 9
    tV = T + 10
    tR = T + 12
    tWD, tWE, tWX, tPP = T + 20, T + 21, T + 22, T + 23
    t0, t1, t2, t3, t4, t5 = range(T + 24, T + 30)
    tW, tM = T + 36, T + 38
    tPS, tPD = T + 40, T + 44
    tAS, tAX, tI = T + 48, T + 49, T + 51
    AG, HF = ACC, ACC + 24
    far = []

    def lane_setup():
        a(f"v_and_b32 {v(t0)}, 31, {v(vLN)}")
        a(f"s_lshl_b32 {s(sT0)}, {s(sWV)}, 8")
        a(f"v_lshl_add_u32 {v(t2)}, {v(t0)}, 3, {s(sT0)}")
        a(f"v_lshl_add_u32 {v(tRA)}, {v(t0)}, 3, {s(sWV)}")

    def lane_setup2():
        a(f"v_mul_u32_u24 {v(tRA)}, {CH}, {v(tRA)}")
        a(f"v_lshrrev_b32 {v(tP2)}, 5, {v(vLN)}")
        a(f"v_lshlrev_b32 {v(tP2)}, 1, {v(tP2)}")
        a(f"v_lshlrev_b32 {v(tF)}, 4, {v(vLN)}")

    def w1_load(kk, ct):
        page = 2 * ct + (kk >> 2)
        return f"buffer_load_dwordx4 {v(8 * kk + 4 * ct, 4)}, {v(tF if page == 0 else T + 52 + page)}, {s(S_FR, 4)}, {s(sW1)} offen offset:{1024 * (kk & 3)}"

    def w1_pages():
        for page in range(1, 4):
            a(f"v_add_u32 {v(T + 52 + page)}, {4096 * page}, {v(tF)}")

    W1L = [w1_load(kk, ct) for kk in range(8) for ct in range(2)]

    a.label("edge_kernel")
    a("s_cmp_ge_u32 s2, 256")
    a("s_cbranch_scc1 K2_END")
    a("s_and_b32 s3, s2, 7")
    a("s_lshl_b32 s3, s3, 5")
    a("s_lshr_b32 s2, s2, 3")
    a("s_add_u32 s2, s2, s3")
    a(f"s_cmp_ge_u32 s2, {NB}")
    a("s_cbranch_scc1 K2_END")
    a.stamp(True)
    a.stamp()
    a("s_load_dwordx2 s[22:23], s[0:1], 80")
    a("s_load_dwordx16 s[4:19], s[0:1], 0")
    a("s_load_dwordx2 s[20:21], s[0:1], 64")
    a(f"v_lshrrev_b32 {v(t0)}, 6, v0")
    a(f"v_and_b32 {v(vLN)}, 63, v0")
    a(f"v_readfirstlane_b32 {s(sWV)}, {v(t0)}")
    a(f"v_mov_b32 {v(vTID)}, v0")
    a(f"s_mul_i32 {s(sT1)}, s2, {DESC_ROW}")
    a(f"s_add_u32 {s(sT1)}, {s(sT1)}, {DESC_OFF}")
    a(f"s_mov_b32 {s(S_DESC + 2)}, {DESC_ROW}")
    a(f"s_mov_b32 {s(S_DESC + 3)}, 0x20000")
    lane_setup()
    a(f"v_lshrrev_b32 {v(t3)}, 5, {v(vLN)}")
    a(f"v_xor_b32 {v(t1)}, {v(t0)}, {v(t3)}")
    a(f"s_lshl_b32 {s(sT2)}, {s(sWV)}, 1")
    a(f"v_xor_b32 {v(t1)}, {s(sT2)}, {v(t1)}")
    a(f"v_lshlrev_b32 {v(t1)}, 4, {v(t1)}")
    a(f"v_lshl_or_b32 {v(t1)}, {v(t3)}, 9, {v(t1)}")
    lane_setup2()
    w1_pages()
    a(f"s_and_b32 {s(sQ)}, {s(sWV)}, 3")
    a(f"s_lshr_b32 {s(sST)}, {s(sWV)}, 2")
    a(f"s_lshl_b32 {s(sW1)}, {s(sWV)}, 14")
    a(f"s_mov_b32 {s(sFIRST)}, 1")
    a(f"s_mov_b32 {s(sSLOW)}, 0")
    a(f"s_lshl_b32 {s(sRB)}, {s(sWV)}, 12")
    a(f"s_add_u32 {s(sRB)}, {s(sRB)}, {LR}")
    for i in range(4):
        a(f"v_mov_b32 {v(ZER + i)}, 0")
    a("s_waitcnt lgkmcnt(0)")
    a.stamp()
    a(f"s_add_u32 {s(S_DESC)}, s22, {s(sT1)}")
    a(f"s_addc_u32 {s(S_DESC + 1)}, s23, 0")
    a(f"s_and_b32 {s(S_DESC + 1)}, {s(S_DESC + 1)}, 0xffff")
    a(f"buffer_load_dwordx2 {v(tDL, 2)}, {v(t2)}, {s(S_DESC, 4)}, 0 offen")
    srd(a, S_H, 4, H_SIZE)
    a(f"s_mul_i32 {s(sT0)}, s2, {40 * 512}")
    a(f"s_lshl_b32 {s(sT1)}, {s(sWV)}, 10")
    a(f"s_add_u32 {s(sT0)}, {s(sT0)}, {s(sT1)}")
    for j in range(3):
        if j == 2:
            a(f"s_cmp_ge_u32 {s(sWV)}, 4")
            a("s_cbranch_scc1 K2_NOH")
        a(f"s_add_u32 m0, {s(sT1)}, {LH + 8192 * j}")
        a("s_nop 0")
        a(f"buffer_load_dwordx4 {v(t1)}, {s(S_H, 4)}, {s(sT0)} offen lds")
        a(f"s_add_u32 {s(sT0)}, {s(sT0)}, 8192")
    a.label("K2_NOH")
    srd_off(a, S_FR, 22, FR_OFF, 3 * FR_ONE)

    def lds_init(b, first):
        b(f"v_lshlrev_b32 {v(t4)}, 4, {v(vTID)}")
        b(f"v_add_u32 {v(t5)}, 65536, {v(t4)}")
        total = LL // 16
        assert total // 512 == 8 and (LWX - LZ) // 16 == 224 and (CAP + 64) // 4 == 224
        for r in range(8):
            b(f"ds_write_b128 {v(t4)}, {v(ZER, 4)} offset:{8192 * r}")
        b(f"v_cmp_gt_u32 vcc, {total - 4096}, {v(vTID)}")
        for i in range(4):
            b(f"v_mov_b32 {v(T + 56 + i)}, {MARK}")
        tail = ["s_mov_b64 exec, vcc", f"v_cmp_gt_u32 vcc, 224, {v(vTID)}", f"ds_write_b128 {v(t5)}, {v(ZER, 4)}", "s_mov_b64 exec, vcc"]
        if first:
            tail.append(f"ds_write_b128 {v(t5)}, {v(ZER, 4)} offset:{LZ - 65536}")
        tail += [f"ds_write_b128 {v(t5)}, {v(T + 56, 4)} offset:{LL - 65536}", "s_mov_b64 exec, -1"]
        return tail

    def small_loads(b):
        colmap_v(b, t0, vLN, t1)
        srd(b, S_TMP, 14, WE_SIZE)
        b(f"s_lshl_b32 {s(sT0)}, {s(sQ)}, 7")
        b(f"s_add_u32 {s(sT0)}, {s(sT0)}, {512 * 512}")
        b(f"v_lshlrev_b32 {v(t0)}, 1, {v(t0)}")
        b(f"buffer_load_ushort {v(tWD)}, {v(t0)}, {s(S_TMP, 4)}, {s(sT0)} offen")
        b(f"buffer_load_ushort {v(tWE)}, {v(t0)}, {s(S_TMP, 4)}, {s(sT0)} offen offset:512")
        b(f"v_and_b32 {v(t0)}, 0xe7, {v(vTID)}")
        b(f"v_bfe_u32 {v(t1)}, {v(vTID)}, 3, 1")
        b(f"v_lshl_or_b32 {v(t0)}, {v(t1)}, 4, {v(t0)}")
        b(f"v_bfe_u32 {v(t1)}, {v(vTID)}, 4, 1")
        b(f"v_lshl_or_b32 {v(t0)}, {v(t1)}, 3, {v(t0)}")
        b(f"v_lshlrev_b32 {v(t0)}, 1, {v(t0)}")
        srd(b, S_TMP, 16, 512)
        b(f"buffer_load_ushort {v(tWX)}, {v(t0)}, {s(S_TMP, 4)}, 0 offen")
        srd(b, S_POS, 6, POS_SIZE)
        b(f"s_mul_i32 {s(sT0)}, s2, 240")
        b(f"v_lshlrev_b32 {v(t0)}, 2, {v(vLN)}")
        b(f"buffer_load_dword {v(tPP)}, {v(t0)}, {s(S_POS, 4)}, {s(sT0)} offen")
        srd_off(b, S_REC, 22, REC_OFF, REC_SIZE)
        srd_off(b, S_BP, 22, BP_OFF - 3072, BP_SIZE + 3072)
        srd(b, S_OUT, 20, OUT_SIZE)
        b(f"s_mul_i32 {s(sT0)}, s2, {SLOW_ROW}")
        b(f"s_add_u32 {s(sT0)}, {s(sT0)}, {SLOW_OFF}")
        b(f"s_add_u32 {s(S_TMP)}, s22, {s(sT0)}")
        b(f"s_addc_u32 {s(S_TMP + 1)}, s23, 0")
        b(f"s_and_b32 {s(S_TMP + 1)}, {s(S_TMP + 1)}, 0xffff")
        b(f"s_mov_b32 {s(S_TMP + 2)}, {SLOW_ROW}")
        b(f"s_mov_b32 {s(S_TMP + 3)}, 0x20000")
        b(f"s_mov_b32 {s(sK3)}, 3072")
        b(f"s_mov_b32 {s(sK2)}, 2048")
        b(f"s_mov_b32 {s(sK1)}, 1024")
        b(f"v_bfe_u32 {v(t3)}, {v(vLN)}, 4, 2")
        b(f"v_and_b32 {v(t2)}, 7, {v(vLN)}")
        b(f"v_xor_b32 {v(t3)}, {v(t3)}, {v(t2)}")
        b(f"s_lshl_b32 {s(sT0)}, {s(sQ)}, 7")
        b(f"v_lshl_add_u32 {v(vG)}, {v(t3)}, 4, {s(sT0)}")
        b(f"v_and_b32 {v(t0)}, 15, {v(vLN)}")
        b(f"v_lshrrev_b32 {v(t1)}, 4, {v(vLN)}")
        b(f"v_xor_b32 {v(t1)}, {v(t1)}, {v(t0)}")
        b(f"v_lshlrev_b32 {v(t1)}, 4, {v(t1)}")
        b(f"v_lshl_or_b32 {v(t1)}, {v(t0)}, 9, {v(t1)}")
        b(f"v_add_u32 {v(vHB)}, {LH}, {v(t1)}")
        for k in range(1, 4):
            b(f"v_xor_b32 {v(vHB + k)}, {64 * k}, {v(vHB)}")

    NW1, NW2, NW3 = 6, 4, 6
    b = Asm()
    tail = lds_init(b, True)
    small_loads(b)
    emit(a, spread(b.lines, W1L[:NW1]) + tail)
    a(f"s_waitcnt vmcnt({2 + 4 + NW1})")
    a.stamp()

    a.label("K2_BATCH")
    a(f"v_and_b32 {v(tO0)}, 1023, {v(tDL)}")
    a(f"v_lshrrev_b32 {v(tT)}, 20, {v(tDH)}")
    a(f"v_sub_u32 {v(tT)}, {v(tT)}, {v(tO0)}")
    a(f"v_add3_u32 {v(tO0)}, {v(tRA)}, {v(tO0)}, {v(tP2)}")
    a(f"v_sub_u32 {v(tN)}, {v(tT)}, {v(tP2)}")
    a(f"v_lshlrev_b32 {v(tO0)}, 3, {v(tO0)}")
    a(f"v_cmp_lt_i32 vcc, 0, {v(tN)}")
    a(f"v_cmp_lt_i32 {s(sT2, 2)}, 4, {v(tN)}")
    a(f"v_mov_b32 {v(t2)}, {MARK}")
    a(f"v_cndmask_b32 {v(t1)}, {v(t2)}, {v(tO0)}, vcc")
    a(f"v_cndmask_b32 {v(t2)}, {v(t2)}, {v(tO0)}, {s(sT2, 2)}")
    a(f"buffer_load_dwordx4 {v(tR, 4)}, {v(t1)}, {s(S_REC, 4)}, 0 offen")
    a(f"buffer_load_dwordx4 {v(tR + 4, 4)}, {v(t2)}, {s(S_REC, 4)}, 0 offen offset:32")
    main, a = a, Asm()
    a(f"v_lshrrev_b32 {v(t0)}, 10, {v(tDL)}")
    a(f"v_lshl_or_b32 {v(t0)}, {v(tDH)}, 20, {v(t0)}")
    a(f"v_and_b32 {v(t0)}, 0x3fffffff, {v(t0)}")
    a(f"v_sub_u32 {v(t0)}, {v(t0)}, {v(tDL)}")
    a(f"v_lshrrev_b32 {v(t1)}, 10, {v(tDH)}")
    a(f"v_and_b32 {v(t2)}, 0xfffff, {v(tDH)}")
    a(f"v_mov_b32 {v(tA)}, {v(t0)}")
    a(f"v_sub_u32 {v(t1)}, {v(t1)}, {v(t2)}")
    a(f"v_mov_b32 {v(tB)}, {v(t1)}")
    order = [tT, tA, tB]
    for sh in ("row_shr:1", "row_shr:2", "row_shr:4", "row_shr:8"):
        for r in order:
            a(f"v_add_u32_dpp {v(r)}, {v(r)}, {v(r)} {sh} row_mask:0xf bank_mask:0xf bound_ctrl:0")
    for r in order:
        a(f"v_add_u32_dpp {v(r)}, {v(r)}, {v(r)} row_bcast:15 row_mask:0xa bank_mask:0xf")
    a(f"s_lshl_b32 {s(sT0)}, {s(sWV)}, 2")
    a(f"s_add_u32 {s(sT0)}, {s(sT0)}, {LTOT}")
    a(f"v_mov_b32 {v(t3)}, {s(sT0)}")
    emit(main, spread(a.lines, W1L[NW1:NW1 + 2]))
    a = main
    a("s_mov_b32 exec_lo, 0x80000000")
    a("s_mov_b32 exec_hi, 0")
    for i in range(3):
        a(f"ds_write_b32 {v(t3)}, {v(tA + i)} offset:{32 * i}")
    a("s_mov_b64 exec, -1")
    a(f"v_sub_u32 {v(tA)}, {v(tA)}, {v(t0)}")
    a(f"v_sub_u32 {v(tB)}, {v(tB)}, {v(t1)}")
    a(f"v_and_b32 {v(t3)}, 7, {v(vLN)}")
    a(f"v_lshlrev_b32 {v(t3)}, 2, {v(t3)}")
    a(f"v_add_u32 {v(t3)}, {LTOT}, {v(t3)}")
    a("s_waitcnt lgkmcnt(0)")
    a("s_barrier")
    a.stamp()
    for i in range(3):
        a(f"ds_read_b32 {v(t0 + i)}, {v(t3)} offset:{32 * i}")
    emit(a, W1L[NW1 + 2:NW1 + NW2])
    a(f"s_mov_b32 {s(sTB)}, 0")
    a("s_waitcnt lgkmcnt(0)")
    for i in range(3):
        a(f"v_mov_b32 {v(t3 + i)}, {v(t0 + i)}")
    for sh in ("row_shr:1", "row_shr:2", "row_shr:4"):
        for i in range(3):
            a(f"v_add_u32_dpp {v(t0 + i)}, {v(t0 + i)}, {v(t0 + i)} {sh} row_mask:0xf bank_mask:0xf bound_ctrl:0")
    for i in range(3):
        a(f"v_sub_u32 {v(t3 + i)}, {v(t0 + i)}, {v(t3 + i)}")
    a(f"v_readlane_b32 {s(sT0)}, {v(t0)}, 7")
    a(f"v_readlane_b32 {s(sT1)}, {v(t1)}, 7")
    a(f"v_readlane_b32 {s(sBT)}, {v(t2)}, 7")
    a(f"v_readlane_b32 {s(sT2)}, {v(t3)}, {s(sWV)}")
    a(f"v_readlane_b32 {s(sT3)}, {v(t4)}, {s(sWV)}")
    a(f"v_readlane_b32 {s(sTL)}, {v(t5)}, {s(sWV)}")
    a(f"s_add_u32 {s(sT0)}, {s(sT0)}, {15 | 15 << 10 | 15 << 20}")
    a(f"s_add_u32 {s(sT1)}, {s(sT1)}, {15 | 15 << 10}")
    for g in range(5):
        src = sT0 if g < 3 else sT1
        a(f"s_bfe_u32 {s(sPS)}, {s(src)}, {hex((6 << 16) | (10 * (g % 3) + 4))}")
        a(f"s_add_u32 {s(sTB + g + 1)}, {s(sTB + g)}, {s(sPS)}")
    a(f"s_cmp_gt_u32 {s(sBT)}, {CAP}")
    a(f"s_cselect_b32 {s(sT0)}, 255, {s(sTB + 5)}")
    a(f"s_cmp_gt_u32 {s(sT0)}, {NTMAX}")
    a("s_cbranch_scc1 K2_OVER")
    a.label("K2_FITS")
    a(f"s_lshl_b32 {s(sT0)}, {s(sTB + 1)}, 14")
    a(f"s_lshl_b32 {s(sT1)}, {s(sTB + 2)}, 24")
    a(f"s_add_u32 {s(sT2)}, {s(sT2)}, {s(sT0)}")
    a(f"s_add_u32 {s(sT2)}, {s(sT2)}, {s(sT1)}")
    a(f"s_lshl_b32 {s(sT0)}, {s(sTB + 3)}, 4")
    a(f"s_lshl_b32 {s(sT1)}, {s(sTB + 4)}, 14")
    a(f"s_add_u32 {s(sT3)}, {s(sT3)}, {s(sT0)}")
    a(f"s_add_u32 {s(sT3)}, {s(sT3)}, {s(sT1)}")
    a(f"v_add_u32 {v(tA)}, {s(sT2)}, {v(tA)}")
    a(f"v_add_u32 {v(tB)}, {s(sT3)}, {v(tB)}")
    a(f"v_lshl_or_b32 {v(tV)}, {v(tB)}, 30, {v(tA)}")
    a(f"v_lshrrev_b32 {v(tV + 1)}, 2, {v(tB)}")
    a(f"s_add_u32 {s(sT0)}, {s(sTB + 5)}, 1")
    a(f"s_lshr_b32 {s(sT0)}, {s(sT0)}, 1")
    a(f"s_mul_i32 {s(sPS)}, {s(sT0)}, {SPLIT_NUM}")
    a(f"s_add_u32 {s(sPS)}, {s(sPS)}, 32")
    a(f"s_lshr_b32 {s(sPS)}, {s(sPS)}, 6")
    a(f"s_cmp_lg_u32 {s(sSLOW)}, 0")
    a(f"s_cselect_b32 {s(sPS)}, {s(sT0)}, {s(sPS)}")
    a(f"s_cmp_eq_u32 {s(sST)}, 0")
    a(f"s_cselect_b32 {s(sREM)}, 0, {s(sPS)}")
    a(f"s_cselect_b32 {s(sPEND)}, {s(sPS)}, {s(sT0)}")
    a(f"s_lshl_b32 {s(sT0)}, {s(sREM)}, 7")
    a(f"s_add_u32 {s(sT0)}, {s(sT0)}, {LL}")
    a(f"v_lshrrev_b32 {v(t0)}, 3, {v(vLN)}")
    a(f"v_lshl_add_u32 {v(vL)}, {v(t0)}, 3, {s(sT0)}")
    a(f"v_lshlrev_b32 {v(tI)}, 2, {v(vTID)}")
    a(f"v_add_u32 {v(tI)}, {LL}, {v(tI)}")
    a(f"s_mov_b32 m0, {s(sRB)}")

    def batch_consts(b):
        b(f"s_mov_b32 {s(sGA)}, -1")
        b(f"s_mov_b32 {s(sIT)}, 0")
        b(f"s_mov_b64 {s(sMASK, 2)}, 0")
        for g in range(1, 5):
            b(f"s_bitset1_b64 {s(sMASK, 2)}, {s(sTB + g)}")
        b(f"s_lshl_b32 {s(sTL)}, {s(sREM)}, 1")
        b(f"s_lshr_b64 {s(sMASK, 2)}, {s(sMASK, 2)}, {s(sTL)}")
        b(f"s_or_b32 {s(sMASK)}, {s(sMASK)}, 1")
        b(f"s_lshl_b64 {s(sMASK, 2)}, {s(sMASK, 2)}, 1")
        b(f"s_mul_i32 {s(sINIT)}, {s(sST)}, 5")
        for g in range(1, 5):
            b(f"s_cmp_eq_u32 {s(sTB + g)}, {s(sST)}")
            b(f"s_cselect_b32 {s(sT0)}, {g}, 0")
            b(f"s_max_u32 {s(sINIT)}, {s(sINIT)}, {s(sT0)}")
        b(f"s_lshl_b32 {s(sT0)}, {s(sREM)}, 11")
        b(f"v_add_u32 {v(vS)}, {s(sT0)}, {v(tF)}")
        b(f"s_mul_i32 {s(sT0)}, {s(sREM)}, {2 * XT}")
        b(f"s_add_u32 {s(sT0)}, {s(sT0)}, {LX}")
        b(f"s_add_u32 {s(sT1)}, {s(sT0)}, 256")
        b(f"v_and_b32 {v(t0)}, 15, {v(vLN)}")
        b(f"v_cmp_eq_u32 vcc, 0, {v(vXS)}")
        b(f"v_lshl_add_u32 {v(t4)}, {v(t0)}, 4, {s(sT0)}")
        b(f"v_lshl_add_u32 {v(t5)}, {v(t0)}, 3, {s(sT1)}")
        b(f"v_mov_b32 {v(t1)}, {LZ}")
        b(f"v_cndmask_b32 {v(vX1)}, {v(t4)}, {v(t1)}, vcc")
        b(f"v_cndmask_b32 {v(vX2)}, {v(t5)}, {v(t1)}, vcc")
        b(f"s_sub_u32 {s(sREM)}, {s(sPEND)}, {s(sREM)}")
        b(f"s_sub_u32 {s(sREM)}, {s(sREM)}, 1")
        b(f"s_lshl_b32 {s(sTL)}, {s(sPS)}, 1")
        b(f"s_mov_b32 {s(sWRT)}, 0")
        for g in range(5):
            b(f"s_cmp_lg_u32 {s(sTB + g)}, {s(sTB + g + 1)}")
            b(f"s_cselect_b32 {s(sT0)}, {1 << g}, 0")
            b(f"s_cmp_lg_u32 {s(sTB + g)}, {s(sTL)}")
            b(f"s_cselect_b32 {s(sT0)}, {s(sT0)}, 0")
            b(f"s_or_b32 {s(sWRT)}, {s(sWRT)}, {s(sT0)}")
        b(f"s_cmp_lt_u32 {s(sTL)}, {s(sTB + 5)}")
        b(f"s_cselect_b32 {s(sT0)}, 32, 0")
        b(f"s_or_b32 {s(sWRT)}, {s(sWRT)}, {s(sT0)}")
        b(f"s_cmp_lg_u32 {s(sSLOW)}, 0")
        b(f"s_cselect_b32 {s(sWRT)}, 31, {s(sWRT)}")
        group_of(b, sGX, sTL)

    def once_consts(b):
        b(f"s_mov_b32 {s(sE0)}, 0xff")
        b(f"s_mov_b32 {s(sE0 + 1)}, 0xff")
        b(f"s_mov_b32 {s(sE1)}, -1")
        b(f"s_mov_b32 {s(sE1 + 1)}, 0")
        b(f"s_mov_b32 {s(sSTR)}, 2048")
        b(f"s_mov_b32 {s(sSTR + 1)}, 128")
        b(f"s_add_u32 {s(sWB)}, {s(sW1)}, {2 * FR_ONE}")
        b(f"v_and_b32 {v(t0)}, 15, {v(vLN)}")
        b(f"v_bfe_u32 {v(t1)}, {v(vLN)}, 4, 1")
        b(f"v_lshrrev_b32 {v(t2)}, 5, {v(vLN)}")
        b(f"v_lshl_or_b32 {v(t3)}, {v(t1)}, 2, {v(t2)}")
        b(f"v_bfe_u32 {v(t4)}, {v(vLN)}, 1, 2")
        b(f"v_xor_b32 {v(t3)}, {v(t3)}, {v(t4)}")
        b(f"v_lshlrev_b32 {v(t3)}, 4, {v(t3)}")
        b(f"v_lshl_or_b32 {v(t3)}, {v(t0)}, 7, {v(t3)}")
        b(f"v_add_u32 {v(vR0)}, {s(sRB)}, {v(t3)}")
        b(f"v_xor_b32 {v(vR1)}, 32, {v(vR0)}")
        b(f"v_cmp_eq_u32 vcc, {v(t1)}, {v(t2)}")
        b(f"v_mov_b32 {v(t3)}, {2 * XT}")
        b(f"v_and_b32 {v(t4)}, 7, {v(vLN)}")
        b(f"v_cndmask_b32 {v(vXS)}, 0, {v(t3)}, vcc")
        b(f"s_lshl_b32 {s(sT0)}, {s(sQ)}, 7")
        b(f"v_mul_u32_u24 {v(t3)}, {MROW}, {v(t4)}")
        b(f"v_lshl_add_u32 {v(t3)}, {v(t2)}, 3, {v(t3)}")
        b(f"s_add_u32 {s(sT1)}, {s(sT0)}, {LM}")
        b(f"v_add_u32 {v(vMA)}, {s(sT1)}, {v(t3)}")
        b(f"s_add_u32 {s(sT1)}, {s(sT0)}, {LWX}")
        b(f"v_lshl_add_u32 {v(vWXA)}, {v(t2)}, 4, {s(sT1)}")
        b(f"v_mov_b32 {v(X2 + 6)}, 0")
        b(f"v_mov_b32 {v(X2 + 7)}, 0")
        b(f"v_and_b32 {v(t0)}, 1, {v(vLN)}")
        b(f"v_lshlrev_b32 {v(t0)}, 4, {v(t0)}")
        b(f"v_mov_b32 {v(t1)}, 0x3f80")
        b(f"v_lshlrev_b32 {v(t0)}, {v(t0)}, {v(t1)}")
        b(f"v_bfe_u32 {v(t1)}, {v(vLN)}, 1, 4")
        b(f"v_lshlrev_b32 {v(t2)}, 2, {v(t2)}")
        b(f"v_sub_u32 {v(t1)}, {v(t1)}, {v(t2)}")
        for p in range(4):
            b(f"v_cmp_eq_u32 vcc, {p}, {v(t1)}")
            b(f"v_cmp_eq_u32 {s(sT2, 2)}, {8 + p}, {v(t1)}")
            b(f"v_mov_b32 {v(QUA + p)}, 0x3e803e80")
            b(f"v_cndmask_b32 {v(ID + p)}, 0, {v(t0)}, vcc")
            b(f"v_cndmask_b32 {v(ID + 4 + p)}, 0, {v(t0)}, {s(sT2, 2)}")
        b(f"s_mov_b32 {s(sC0)}, {LOG2E}")
        b(f"s_mov_b32 {s(sC0 + 1)}, {LOG2E}")
        for i, w in enumerate((tWD, tWE)):
            b(f"v_lshlrev_b32 {v(t0)}, 16, {v(w)}")
            b(f"v_mul_f32 {v(t0)}, {s(sC0)}, {v(t0)}")
            b(f"v_cvt_pk_bf16_f32 {v(t1)}, {v(t0)}, {v(t0)}")
            b(f"v_lshlrev_b32 {v(t1)}, 16, {v(t1)}")
            b(f"v_sub_f32 {v(t1)}, {v(t0)}, {v(t1)}")
            b(f"v_cvt_pk_bf16_f32 {v(Y2K + i)}, {v(t0)}, {v(t1)}")
        b(f"v_mov_b32 {v(Y2K + 2)}, 0")
        b(f"v_mov_b32 {v(Y2K + 3)}, 0")

    def scatter(r, slot):
        a(f"v_bfe_u32 {v(t0)}, {v(r + 1)}, 19, 3")
        a(f"v_cmp_lt_i32 vcc, {slot}, {v(tN)}")
        a(f"v_mul_u32_u24 {v(t0)}, 10, {v(t0)}")
        a(f"v_lshrrev_b32 {v(t1)}, 22, {v(r + 1)}")
        a(f"v_lshrrev_b64 {v(t2, 2)}, {v(t0)}, {v(tV, 2)}")
        a(f"v_and_b32 {v(t2)}, 1023, {v(t2)}")
        a(f"v_add_lshl_u32 {v(t2)}, {v(t2)}, {v(t1)}, 2")
        a(f"v_add_u32 {v(t2)}, {LL}, {v(t2)}")
        a("s_mov_b64 exec, vcc")
        a(f"ds_write_b32 {v(t2)}, {v(r)}")
        a(f"ds_write_b32 {v(t2)}, {v(r + 1)} offset:{LE - LL}")
        a("s_mov_b64 exec, -1")

    a(f"s_waitcnt vmcnt({NW2})")
    a.stamp()
    rest = W1L[NW1 + NW2:]
    for i, slot in enumerate((0, 1, 4, 5)):
        scatter(tR + 2 * i, slot)
        emit(a, rest[(i * NW3) // 4:((i + 1) * NW3) // 4])
    a(f"v_cmp_lt_i32 vcc, 8, {v(tN)}")
    a(f"s_cmp_eq_u32 {s(sFIRST)}, 0")
    a("s_cbranch_scc1 K2_NOTAB")
    a(f"v_and_b32 {v(t0)}, 255, {v(vTID)}")
    a(f"v_lshlrev_b32 {v(t0)}, 1, {v(t0)}")
    a(f"v_add_u32 {v(t0)}, {LWX}, {v(t0)}")
    a(f"ds_write_b16 {v(t0)}, {v(tWX)}")
    a(f"v_lshlrev_b32 {v(t0)}, 2, {v(vLN)}")
    a(f"v_add_u32 {v(t0)}, {LPD}, {v(t0)}")
    a(f"ds_write_b32 {v(t0)}, {v(tPP)}")
    a.label("K2_NOTAB")
    a("s_cbranch_vccnz K2_MORE")
    a.label("K2_NOMORE")
    main, a = a, Asm()
    a.label("K2_MORE")
    a(f"v_add_u32 {v(tO0)}, 32, {v(tO0)}")
    a(f"v_subrev_u32 {v(tN)}, 4, {v(tN)}")
    a(f"buffer_load_dwordx4 {v(tR, 4)}, {v(tO0)}, {s(S_REC, 4)}, 0 offen offset:32")
    a("s_waitcnt vmcnt(0)")
    scatter(tR, 4)
    scatter(tR + 2, 5)
    a(f"v_cmp_lt_i32 vcc, 8, {v(tN)}")
    a("s_nop 4")
    a("s_cbranch_vccnz K2_MORE")
    a("s_branch K2_NOMORE")
    far += a.lines
    a = main
    a("s_waitcnt lgkmcnt(0)")
    a("s_barrier")
    a.stamp()

    a(list_read(0))
    a(f"ds_read2st64_b32 {v(tW, 2)}, {v(tI)} offset1:8")
    a(f"v_add_u32 {v(tI)}, {LE - LL}, {v(tI)}")
    a(f"ds_read2st64_b32 {v(tM, 2)}, {v(tI)} offset1:8")
    a(f"v_cmp_gt_u32 vcc, {CAP - 512}, {v(vTID)}")
    a(f"v_mov_b32 {v(t0)}, {MARK}")
    a("s_waitcnt lgkmcnt(1)")
    a(f"v_cndmask_b32 {v(tW + 1)}, {v(t0)}, {v(tW + 1)}, vcc")
    for r in range(2):
        a(f"v_lshrrev_b32 {v(t0)}, 9, {v(tW + r)}")
        a(f"v_mul_u32_u24 {v(t0)}, 6, {v(t0)}")
        a(f"v_and_b32 {v(t0)}, -4, {v(t0)}")
        a(f"buffer_load_dwordx2 {v(tPS + 2 * r, 2)}, {v(t0)}, {s(S_POS, 4)}, 0 offen")
    emit(a, LST_ADD + dma(0) + dma(1))
    a("s_waitcnt lgkmcnt(0)")
    for r in range(2):
        a(f"v_bfe_u32 {v(t1)}, {v(tM + r)}, 16, 6")
        a(f"v_mul_u32_u24 {v(t1)}, 6, {v(t1)}")
        a(f"v_and_b32 {v(t1)}, -4, {v(t1)}")
        a(f"v_add_u32 {v(t1)}, {LPD}, {v(t1)}")
        a(f"ds_read2_b32 {v(tPD + 2 * r, 2)}, {v(t1)} offset1:1")

    def dense_addr(b):
        b(f"v_lshrrev_b32 {v(t0)}, 3, {v(vTID)}")
        b(f"v_lshlrev_b32 {v(tAS)}, 9, {v(t0)}")
        b(f"v_and_b32 {v(t1)}, 1, {v(vTID)}")
        b(f"v_lshl_or_b32 {v(tAS)}, {v(t1)}, 3, {v(tAS)}")
        b(f"v_and_b32 {v(t2)}, 6, {v(vTID)}")
        b(f"v_or_b32 {v(tAS)}, {v(tAS)}, {v(t2)}")
        b(f"v_lshrrev_b32 {v(t0)}, 4, {v(vTID)}")
        b(f"v_mul_u32_u24 {v(t0)}, {XT}, {v(t0)}")
        b(f"v_bfe_u32 {v(t3)}, {v(vTID)}, 1, 3")
        b(f"v_lshl_or_b32 {v(t3)}, {v(t1)}, 3, {v(t3)}")
        b(f"v_add_u32 {v(t0)}, {LX}, {v(t0)}")
        b(f"v_lshl_add_u32 {v(tAX)}, {v(t3)}, 4, {v(t0)}")
        b(f"v_lshl_add_u32 {v(tAX + 1)}, {v(t3)}, 3, {v(t0)}")

    def dense(b, r):
        ps, pd, w, m = tPS + 2 * r, tPD + 2 * r, tW + r, tM + r
        b(f"v_mov_b32 {v(t5)}, 0x3f80")
        b(f"s_mov_b32 {s(sT1)}, 0xffff0000")
        b(f"s_mov_b32 {s(sT2)}, 0x01000100")
        b(f"v_bfe_u32 {v(t0)}, {v(w)}, 9, 1")
        b(f"v_bfe_u32 {v(t1)}, {v(m)}, 16, 1")
        b(f"v_lshlrev_b32 {v(t0)}, 4, {v(t0)}")
        b(f"v_lshlrev_b32 {v(t1)}, 4, {v(t1)}")
        b(f"v_alignbit_b32 {v(ps)}, {v(ps + 1)}, {v(ps)}, {v(t0)}")
        b(f"v_lshrrev_b32 {v(ps + 1)}, {v(t0)}, {v(ps + 1)}")
        b(f"v_alignbit_b32 {v(pd)}, {v(pd + 1)}, {v(pd)}, {v(t1)}")
        b(f"v_lshrrev_b32 {v(pd + 1)}, {v(t1)}, {v(pd + 1)}")
        b(f"v_lshlrev_b32 {v(t0)}, 16, {v(pd)}")
        b(f"v_lshlrev_b32 {v(t2)}, 16, {v(ps)}")
        b(f"v_and_b32 {v(t1)}, {s(sT1)}, {v(pd)}")
        b(f"v_and_b32 {v(t3)}, {s(sT1)}, {v(ps)}")
        b(f"v_sub_f32 {v(t0)}, {v(t0)}, {v(t2)}")
        b(f"v_sub_f32 {v(t1)}, {v(t1)}, {v(t3)}")
        b(f"v_lshlrev_b32 {v(t2)}, 16, {v(pd + 1)}")
        b(f"v_lshlrev_b32 {v(t3)}, 16, {v(ps + 1)}")
        b(f"v_sub_f32 {v(t2)}, {v(t2)}, {v(t3)}")
        b(f"v_cvt_pk_bf16_f32 {v(ps)}, {v(t0)}, {v(t1)}")
        b(f"v_cvt_pk_bf16_f32 {v(ps + 1)}, {v(t2)}, {v(t2)}")
        b(f"v_lshlrev_b32 {v(t0)}, 16, {v(ps)}")
        b(f"v_and_b32 {v(t1)}, {s(sT1)}, {v(ps)}")
        b(f"v_and_b32 {v(t2)}, {s(sT1)}, {v(ps + 1)}")
        for k in range(3):
            b(f"v_mul_f32 {v(t0 + k)}, {v(t0 + k)}, {v(t0 + k)}")
        b(f"v_cvt_pk_bf16_f32 {v(t0)}, {v(t0)}, {v(t1)}")
        b(f"v_cvt_pk_bf16_f32 {v(t2)}, {v(t2)}, {v(t2)}")
        b(f"v_and_b32 {v(t1)}, {s(sT1)}, {v(t0)}")
        b(f"v_lshlrev_b32 {v(t0)}, 16, {v(t0)}")
        b(f"v_and_b32 {v(t2)}, {s(sT1)}, {v(t2)}")
        b(f"v_add_f32 {v(t0)}, {v(t0)}, {v(t1)}")
        b(f"v_add_f32 {v(t0)}, {v(t0)}, {v(t2)}")
        b(f"v_cmp_gt_u32 vcc, {MARK}, {v(w)}")
        b(f"v_cvt_pk_bf16_f32 {v(pd)}, {v(t0)}, {v(t0)}")
        b(f"v_perm_b32 {v(pd + 1)}, {v(m)}, {v(m)}, {s(sT2)}")
        b(f"v_bfe_u32 {v(t1)}, {v(m)}, 16, 3")
        b(f"v_lshl_add_u32 {v(t0)}, {v(t1)}, 4, {v(tAS)}")
        b(f"v_lshl_add_u32 {v(t1)}, {v(t1)}, 1, {v(tAX)}")
        return ["s_mov_b64 exec, vcc",
                f"ds_write_b16 {v(t0)}, {v(t5)} offset:{32768 * r}",
                f"ds_write_b16 {v(t0)}, {v(ps)} offset:{32768 * r + 128}",
                f"ds_write_b16_d16_hi {v(t0)}, {v(ps)} offset:{32768 * r + 256}",
                f"ds_write_b16 {v(t0)}, {v(ps + 1)} offset:{32768 * r + 384}",
                f"ds_write_b16 {v(t1)}, {v(t5)} offset:{32 * XT * r}",
                f"ds_write_b64 {v(tAX + 1)}, {v(pd, 2)} offset:{256 + 32 * XT * r}",
                "s_mov_b64 exec, -1"]

    def dense_second():
        n = fresh()
        a(f"s_lshl_b32 {s(sT0)}, {s(sWV)}, 2")
        a(f"s_add_u32 {s(sT0)}, {s(sT0)}, 32")
        a(f"s_cmp_ge_u32 {s(sT0)}, {s(sTB + 5)}")
        a(f"s_cbranch_scc1 K2_ND{n}")
        emit(a, dense(a, 1))
        a.label(f"K2_ND{n}")

    a(f"s_cmp_eq_u32 {s(sFIRST)}, 0")
    a("s_cbranch_scc1 K2_NOA")

    def hreads(hf, kk):
        return [f"ds_read_b128 {v(hf + 12 * (kk & 1) + 4 * nt, 4)}, {v(vHB + (kk & 3))} offset:{8192 * nt + 256 * (kk >> 2)}" for nt in range(3)]

    def a_steps(kks, fill):
        per = (len(fill) + len(kks) - 1) // len(kks)
        for i, kk in enumerate(kks):
            a("s_waitcnt vmcnt(6) lgkmcnt(0)" if kk == 0 else "s_waitcnt lgkmcnt(0)")
            if kk < 7:
                emit(a, hreads(HF, kk + 1))
            mf = []
            for nt in range(3):
                for ct in range(2):
                    d = AG + 8 * nt + 4 * ct
                    mf.append(mf16(d, HF + 12 * (kk & 1) + 4 * nt, 8 * kk + 4 * ct, "0" if kk == 0 else d))
            mine = fill[i * per:(i + 1) * per]
            emit(a, place(mine, [((j * len(mine)) // 6, mf[j]) for j in range(6)]))

    emit(a, hreads(HF, 0))
    a_steps([0, 1, 2, 3, 4], capture(once_consts) + capture(batch_consts) + capture(dense_addr))
    a.stamp()
    a("s_waitcnt vmcnt(4)")
    a.stamp()
    b = Asm()
    tail = dense(b, 0)
    a_steps([5, 6, 7], b.lines)
    emit(a, tail)
    dense_second()
    a.stamp()
    a(f"s_lshl_b32 {s(sT0)}, {s(sWV)}, 9")
    a(f"s_add_u32 {s(sT0)}, {s(sT0)}, {LM}")
    a(f"v_and_b32 {v(t0)}, 15, {v(vLN)}")
    a(f"v_lshlrev_b32 {v(t0)}, 4, {v(t0)}")
    a(f"v_bfe_u32 {v(t1)}, {v(vLN)}, 4, 1")
    a(f"v_lshl_or_b32 {v(t0)}, {v(t1)}, 3, {v(t0)}")
    a(f"v_lshrrev_b32 {v(t1)}, 5, {v(vLN)}")
    a(f"v_lshl_or_b32 {v(t0)}, {v(t1)}, 12, {v(t0)}")
    a(f"v_add_u32 {v(t0)}, {s(sT0)}, {v(t0)}")
    for nt in range(3):
        for p in range(4):
            a(f"v_pk_mul_f32 {v(AG + 8 * nt + 2 * p, 2)}, {v(AG + 8 * nt + 2 * p, 2)}, {s(sC0, 2)}")
        for p in range(4):
            a(f"v_cvt_pk_bf16_f32 {v(HF + 4 * nt + p)}, {v(AG + 8 * nt + 2 * p)}, {v(AG + 8 * nt + 2 * p + 1)}")
        for ct in range(2):
            a(f"ds_write_b64 {v(t0)}, {v(HF + 4 * nt + 2 * ct, 2)} offset:{8192 * nt + 256 * ct}")
    a(f"s_lshl_b32 {s(sT0)}, {s(sQ)}, 10")
    a(f"s_add_u32 {s(sT0)}, {s(sT0)}, {LM}")
    a(f"v_add_u32 {v(t0)}, {s(sT0)}, {v(tF)}")
    a("s_waitcnt vmcnt(0) lgkmcnt(0)")
    a("s_barrier")
    a.stamp()
    for g in range(5):
        a(f"ds_read_b128 {v(Y2Q + 4 * g, 4)}, {v(t0)} offset:{4096 * g}")
    a.label("K2_READY")
    emit(a, frag_reads(0))
    a(list_read(1))
    a("s_waitcnt lgkmcnt(0)")
    a("s_barrier")
    a.stamp()
    a(f"s_cmp_lt_i32 {s(sREM)}, 0")
    a("s_cbranch_scc1 K2_DONE")
    emit(a, LST_ADD + dma(0))
    chk, o = site(None, 0, None)
    far += o
    emit(a, chk + p_mfmas(YA))
    emit(a, frag_reads(1))
    a(f"v_add_u32 {v(vX1)}, {v(vXS)}, {v(vX1)}")
    a(f"v_add_u32 {v(vX2)}, {v(vXS)}, {v(vX2)}")
    a(".p2align 6")
    a.label("K2_LOOP")
    abl = os.environ.get("ABL", "")
    for ln in loop_body(far):
        if ("w" in abl and ln.startswith("s_waitcnt vmcnt")) or ("d" in abl and ln.startswith("buffer_load")) or \
           ("l" in abl and ln.startswith("ds_read")) or ("m" in abl and ln.startswith("v_mfma")) or \
           ("t" in abl and (ln.startswith("v_exp") or ln.startswith("v_rcp"))) or \
           ("f" in abl and ln.startswith("s_cbranch_scc1 K2_H")):
            continue
        a(ln)
    a("s_cbranch_scc0 K2_LOOP")
    chk, o = site(-1, None, YB)
    far += o
    a("s_setprio 0")
    a("s_waitcnt lgkmcnt(0)")
    emit(a, chk + cvts(EB) + ["s_nop 1", S1, S2, "s_nop 9"])
    far += flush(a, YB)
    a.label("K2_DONE")
    a.stamp()
    a(f"s_cmp_lg_u32 {s(sSLOW)}, 0")
    a("s_cbranch_scc1 K2_NEXT")

    a.label("K2_FINAL")
    a(f"s_cmp_ge_u32 {s(sIT)}, 4")
    a("s_cbranch_scc0 K2_WREST")
    MA, CA, HR, W1, MF, XR, G = 0, 24, 48, 64, 128, 152, 160
    eO, eM, eF, e0 = 172, 175, 178, 179

    def w_load(ct, kk):
        return f"buffer_load_dwordx4 {v(W1 + 32 * ct + 4 * kk, 4)}, {v(eF)}, {s(S_FR, 4)}, {s(S_TMP + 2 * ct + (kk >> 2))} offen offset:{1024 * (kk & 3)}"

    a(f"v_lshlrev_b32 {v(eF)}, 4, {v(vLN)}")
    a(f"s_sub_u32 {s(S_TMP)}, {s(sWB)}, {FR_ONE}")
    for i in range(1, 4):
        a(f"s_add_u32 {s(S_TMP + i)}, {s(S_TMP)}, {4096 * i}")
    a(f"v_and_b32 {v(XR)}, 15, {v(vLN)}")
    a(f"v_and_b32 {v(XR + 2)}, 48, {v(vLN)}")
    a(f"v_mul_u32_u24 {v(XR + 3)}, {MROW}, {v(XR)}")
    a(f"v_add_u32 {v(XR + 3)}, {v(XR + 3)}, {v(XR + 2)}")
    a(f"v_lshrrev_b32 {v(XR + 1)}, 3, {v(XR)}")
    a(f"v_lshrrev_b32 {v(XR + 1)}, {v(XR + 1)}, {s(sWRT)}")
    a(f"v_mov_b32 {v(XR + 4)}, {LZ}")
    for nt in range(3):
        a(f"v_and_b32 {v(XR + 5)}, {1 << (2 * nt)}, {v(XR + 1)}")
        a(f"v_cmp_ne_u32 vcc, 0, {v(XR + 5)}")
        a(f"v_add_u32 {v(XR + 6)}, {LM + 16 * MROW * nt}, {v(XR + 3)}")
        a("s_waitcnt lgkmcnt(0)" if nt == 0 else w_load(0, nt - 1))
        a(f"v_cndmask_b32 {v(eM + nt)}, {v(XR + 4)}, {v(XR + 6)}, vcc")
    a(w_load(0, 2))
    a(w_load(0, 3))
    a.stamp()
    a("s_barrier")
    a.stamp()

    def mreads(kk):
        return [f"ds_read_b128 {v(MF + 12 * (kk & 1) + 4 * nt, 4)}, {v(eM + nt)} offset:{64 * kk}" for nt in range(3)]

    def late_setup(b):
        b(f"s_lshl_b32 {s(sT0)}, {s(sWV)}, 6")
        b(f"s_and_b32 {s(sT1)}, {s(sT0)}, 192")
        b(f"s_and_b32 {s(sT2)}, {s(sT0)}, 256")
        b(f"v_xor_b32 {v(e0)}, {s(sT1)}, {v(vHB)}")
        b(f"v_add_u32 {v(e0)}, {s(sT2)}, {v(e0)}")
        for nt in range(3):
            b(f"ds_read_b128 {v(HR + 4 * nt, 4)}, {v(e0)} offset:{8192 * nt}")
        b(f"s_mul_i32 {s(sT1)}, s2, {40 * 512}")
        b(f"s_add_u32 {s(sT0)}, {s(sT0)}, {s(sT1)}")
        b(f"v_lshl_or_b32 {v(eO)}, {v(XR)}, 9, {v(XR + 2)}")
        b(f"v_add_u32 {v(eO)}, {s(sT0)}, {v(eO)}")
        b(f"v_add_u32 {v(eO + 1)}, 8192, {v(eO)}")
        b(f"v_cmp_gt_u32 vcc, 8, {v(XR)}")
        b(f"v_add_u32 {v(eO + 2)}, 16384, {v(eO)}")
        b(f"v_mov_b32 {v(XR + 3)}, {MARK}")
        b(f"v_cndmask_b32 {v(eO + 2)}, {v(XR + 3)}, {v(eO + 2)}, vcc")
        b(f"s_mov_b32 {s(sE0)}, 0x00ff00ff")
        b(f"s_bitcmp1_b32 {s(sGX)}, 0")
        b(f"s_cselect_b32 {s(sE0)}, 0xff00ff00, {s(sE0)}")
        b(f"s_mov_b32 {s(sE0 + 1)}, {s(sE0)}")
        b(f"s_mov_b32 {s(sC0)}, {LOG2E}")
        b(f"s_mov_b32 {s(sC0 + 1)}, {LOG2E}")
        b(f"s_mov_b32 {s(sE1)}, {LN2}")
        b(f"s_mov_b32 {s(sE1 + 1)}, {LN2}")
        b(f"s_mov_b32 {s(sT1)}, 0xffff0000")

    rest = [(0, 4), (0, 5), (0, 6), (0, 7)] + [(1, kk) for kk in range(8)]
    per = [2, 2, 2, 2, 1, 1, 1, 1]
    fill = capture(late_setup)
    emit(a, mreads(0))
    for kk in range(8):
        a("s_waitcnt vmcnt(4) lgkmcnt(0)" if kk == 0 else "s_waitcnt lgkmcnt(0)")
        emit(a, mreads(kk + 1) if kk < 7 else hreads(MF, 0))
        mine = fill[4 * kk:4 * kk + 4] + [w_load(*rest.pop(0)) for _ in range(per[kk])]
        mf = [mf16(MA + 8 * nt + 4 * ct, WH2 + 32 * ct + 4 * kk, MF + 12 * (kk & 1) + 4 * nt, "0" if kk == 0 else MA + 8 * nt + 4 * ct)
              for nt in range(3) for ct in range(2)]
        emit(a, place(mine, [((j * len(mine)) // 6, mf[j]) for j in range(6)]))
    assert len(fill) <= 32

    def c_step(ct, kk):
        out = [f"s_waitcnt vmcnt({(8 if kk == 0 else 63) if ct == 0 else 7 - kk}) lgkmcnt(0)".replace("vmcnt(63) ", "")]
        if kk < 7:
            out += hreads(MF, kk + 1)
        elif ct == 0:
            out += hreads(MF, 0)
        for nt in range(3):
            d = CA + 8 * nt + 4 * ct
            out.append(mf16(d, W1 + 32 * ct + 4 * kk, MF + 12 * (kk & 1) + 4 * nt, "0" if kk == 0 else d))
        return out

    emit(a, c_step(0, 0) + c_step(0, 1))
    a(f"s_bitcmp1_b32 {s(sGX)}, 0")
    a("s_cbranch_scc1 K2_XODD")
    for i in range(8):
        a(f"v_mov_b32_dpp {v(XR + i)}, {v(MA + 16 + i)} row_ror:8 row_mask:0xf bank_mask:0xf")
    a.label("K2_XDONE")
    emit(a, c_step(0, 2))
    a(f"s_lshr_b32 {s(sT0)}, {s(sGX)}, 1")
    a(f"s_lshl_b32 {s(sT0)}, {s(sT0)}, 3")
    a(f"s_mov_b64 exec, {s(sE0, 2)}")
    a(f"s_set_gpr_idx_on {s(sT0)}, gpr_idx(SRC1,DST)")
    for i in range(8):
        a(f"v_add_f32 {v(MA + i)}, {v(XR + i)}, {v(MA + i)}")
    a("s_set_gpr_idx_off")
    a("s_mov_b64 exec, -1")
    far.append("K2_XODD:")
    far += [f"v_mov_b32 {v(XR + i)}, {v(MA + 16 + i)}" for i in range(8)] + ["s_branch K2_XDONE"]
    for kk in range(3, 8):
        emit(a, c_step(0, kk))
    a.stamp()

    def silu(ct, packed):
        regs = [(nt, p) for nt in range(3) for p in range(2)]
        z = lambda nt, p: MA + 8 * nt + 4 * ct + 2 * p
        c = lambda nt, p: CA + 8 * nt + 4 * ct + 2 * p
        g = lambda nt, p: G + 4 * nt + 2 * p
        out = []

        def two(pk, plain):
            for nt, p in regs:
                if packed:
                    out.append(pk(z(nt, p), c(nt, p), g(nt, p)))
                else:
                    out.extend(plain(z(nt, p) + i, c(nt, p) + i, g(nt, p) + i) for i in range(2))
        two(lambda z_, c_, g_: f"v_pk_fma_f32 {v(z_, 2)}, {v(c_, 2)}, {s(sC0, 2)}, {v(z_, 2)}",
            lambda z_, c_, g_: f"v_fmac_f32 {v(z_)}, {s(sC0)}, {v(c_)}")
        for nt, p in regs:
            out += [f"v_exp_f32 {v(g(nt, p) + i)}, -{v(z(nt, p) + i)}" for i in range(2)]
        two(lambda z_, c_, g_: f"v_pk_add_f32 {v(g_, 2)}, {v(g_, 2)}, 1.0 op_sel_hi:[1,0]",
            lambda z_, c_, g_: f"v_add_f32 {v(g_)}, 1.0, {v(g_)}")
        for nt, p in regs:
            out += [f"v_rcp_f32 {v(g(nt, p) + i)}, {v(g(nt, p) + i)}" for i in range(2)]
        two(lambda z_, c_, g_: f"v_pk_mul_f32 {v(g_, 2)}, {v(g_, 2)}, {v(z_, 2)}",
            lambda z_, c_, g_: f"v_mul_f32 {v(g_)}, {v(g_)}, {v(z_)}")
        for nt, p in regs:
            out.append(f"v_lshlrev_b32 {v(z(nt, p))}, 16, {v(HR + 4 * nt + 2 * ct + p)}")
            out.append(f"v_and_b32 {v(z(nt, p) + 1)}, {s(sT1)}, {v(HR + 4 * nt + 2 * ct + p)}")
        two(lambda z_, c_, g_: f"v_pk_fma_f32 {v(g_, 2)}, {v(g_, 2)}, {s(sE1, 2)}, {v(z_, 2)}",
            lambda z_, c_, g_: f"v_fma_f32 {v(g_)}, {v(g_)}, {s(sE1)}, {v(z_)}")
        for nt, p in regs:
            out.append(f"v_cvt_pk_bf16_f32 {v(HR + 4 * nt + 2 * ct + p)}, {v(g(nt, p))}, {v(g(nt, p) + 1)}")
        return out

    sl = silu(0, False)
    emit(a, c_step(1, 0) + ["s_nop 0"] + place(sl, [(9 * kk - 6, c_step(1, kk)) for kk in range(1, 8)]))
    emit(a, silu(1, True))
    for nt in range(3):
        a(f"buffer_store_dwordx4 {v(HR + 4 * nt, 4)}, {v(eO + nt)}, {s(S_OUT, 4)}, 0 offen")
    a(f"s_cmp_ge_u32 {s(sWV)}, 2")
    a("s_cbranch_scc1 K2_EXIT")
    a(f"v_mul_u32_u24 v4, 21846, {v(vTID)}")
    a(f"v_lshrrev_b32 v4, 16, v4")
    a(f"v_mul_u32_u24 v5, 3, v4")
    a(f"v_sub_u32 v5, {v(vTID)}, v5")
    a(f"v_and_b32 v6, 7, v4")
    a(f"v_lshl_add_u32 v5, v5, 3, v6")
    a(f"v_lshlrev_b32 v5, 2, v5")
    a(f"v_add_u32 v5, {LPOS + 32}, v5")
    a(f"v_lshrrev_b32 v4, 3, v4")
    a(f"v_lshl_add_u32 v6, v4, 9, v5")
    a(f"v_add_u32 v5, {5 * 512}, v5")
    a("ds_read2_b32 v[8:9], v6 offset1:32")
    a("ds_read2_b32 v[10:11], v6 offset0:64 offset1:96")
    a("ds_read2_b32 v[12:13], v5 offset1:32")
    a("ds_read2_b32 v[14:15], v5 offset0:64 offset1:96")
    a(f"v_lshlrev_b32 v2, 1, {v(vTID)}")
    a(f"v_add_u32 v7, {LPD}, v2")
    a(f"ds_read_u16 v3, v7")
    a(f"v_cmp_gt_u32 vcc, 120, {v(vTID)}")
    a(f"s_mul_i32 {s(sT0)}, s2, 240")
    a(f"s_add_u32 {s(sT0)}, {s(sT0)}, {N * 512}")
    a(f"v_mov_b32 v1, {MARK}")
    a(f"v_cndmask_b32 v1, v1, v2, vcc")
    a(f"v_cmp_eq_u32 vcc, {s(sGX)}, v4")
    a("s_waitcnt lgkmcnt(0)")
    a("v_pk_add_f32 v[8:9], v[8:9], v[10:11]")
    a("v_pk_add_f32 v[12:13], v[12:13], v[14:15]")
    a("v_lshlrev_b32 v3, 16, v3")
    a("v_add_f32 v8, v8, v9")
    a("v_add_f32 v12, v12, v13")
    a("v_cndmask_b32 v12, 0, v12, vcc")
    a("v_add_f32 v8, v8, v12")
    a(f"v_fma_f32 v3, v8, {s(sE1)}, v3")
    a("v_cvt_pk_bf16_f32 v3, v3, v3")
    a(f"buffer_store_short v3, v1, {s(S_OUT, 4)}, {s(sT0)} offen")
    a.label("K2_EXIT")
    a.stamp()
    a.stamp(True)
    if a.stamps:
        a(f"s_mov_b32 {s(S_BP + 2)}, {16 << 20}")
    a.dump_stamps(S_BP, STAMP2_OFF - BP_OFF + 3072, 0, sWV, sT0)
    a.label("K2_END")
    a("s_endpgm")

    emit(a, far)
    a.label("K2_WREST")
    wh2_part(a, fresh(), "K2_FINAL")

    a.label("K2_NOA")
    batch_consts(a)
    dense_addr(a)
    a("s_waitcnt vmcnt(0) lgkmcnt(0)")
    emit(a, dense(a, 0))
    dense_second()
    a("s_waitcnt lgkmcnt(0)")
    a("s_barrier")
    a("s_branch K2_READY")
    a.label("K2_OVER")
    a(f"s_cmp_lg_u32 {s(sSLOW)}, 0")
    a("s_cbranch_scc1 K2_FITS")
    a(f"s_mov_b32 {s(sSLOW)}, 1")
    a(f"s_mov_b32 {s(sLO)}, 0")
    a(f"s_mov_b32 {s(sTOT)}, {s(sBT)}")
    a(f"v_add_u32 {v(tT)}, {s(sTL)}, {v(tT)}")
    lane_setup()
    a(f"v_lshrrev_b32 {v(t2)}, 1, {v(t2)}")
    a(f"v_add_u32 {v(t2)}, 40960, {v(t2)}")
    a(f"buffer_store_dword {v(tT)}, {v(t2)}, {s(S_TMP, 4)}, 0 offen")
    a(f"v_lshlrev_b32 {v(t0)}, 4, {v(vTID)}")
    for r in range(5):
        a(f"buffer_store_dwordx4 {v(ZER, 4)}, {v(t0)}, {s(S_TMP, 4)}, 0 offen")
        a(f"v_add_u32 {v(t0)}, 8192, {v(t0)}")
    a("s_waitcnt vmcnt(0) lgkmcnt(0)")
    a("s_barrier")
    a("s_branch K2_SETUP")
    a.label("K2_NEXT")
    a("s_waitcnt vmcnt(0) lgkmcnt(0)")
    a("s_barrier")
    a(f"s_mov_b32 {s(sFIRST)}, 0")
    a(f"s_add_u32 {s(sLO)}, {s(sLO)}, {s(sBT)}")
    a(f"s_cmp_ge_u32 {s(sLO)}, {s(sTOT)}")
    a("s_cbranch_scc1 K2_LAST")
    a(f"s_cmp_eq_u32 {s(sBT)}, 0")
    a("s_cbranch_scc1 K2_LAST")
    emit(a, lds_init(a, False))
    a.label("K2_SETUP")
    lane_setup()
    a(f"buffer_load_dwordx2 {v(tDL, 2)}, {v(t2)}, {s(S_DESC, 4)}, 0 offen")
    a(f"v_lshrrev_b32 {v(t2)}, 1, {v(t2)}")
    a(f"v_add_u32 {v(t2)}, 40960, {v(t2)}")
    a(f"buffer_load_dword {v(t2)}, {v(t2)}, {s(S_TMP, 4)}, 0 offen sc1")
    lane_setup2()
    w1_pages()
    a("s_waitcnt vmcnt(0) lgkmcnt(0)")
    a(f"v_and_b32 {v(t0)}, 1023, {v(tDL)}")
    a(f"v_lshrrev_b32 {v(t1)}, 20, {v(tDH)}")
    a(f"v_sub_u32 {v(t0)}, {v(t1)}, {v(t0)}")
    a(f"v_sub_u32 {v(t0)}, {v(t2)}, {v(t0)}")
    a(f"s_add_u32 {s(sT0)}, {s(sLO)}, {LIMIT}")
    a(f"v_cmp_le_u32 vcc, {s(sLO)}, {v(t0)}")
    a(f"v_cmp_ge_u32 {s(sT2, 2)}, {s(sT0)}, {v(t2)}")
    a("s_nop 1")
    a(f"s_and_b64 vcc, vcc, {s(sT2, 2)}")
    a("s_nop 1")
    a(f"v_cndmask_b32 {v(tDL)}, 0, {v(tDL)}, vcc")
    a(f"v_cndmask_b32 {v(tDH)}, 0, {v(tDH)}, vcc")
    a("s_branch K2_BATCH")
    a.label("K2_LAST")
    a(f"v_lshlrev_b32 v0, 6, {v(vTID)}")
    a(f"v_lshrrev_b32 v1, 4, {v(vTID)}")
    a(f"v_mul_u32_u24 v1, {MROW}, v1")
    a(f"v_and_b32 v2, 15, {v(vTID)}")
    a(f"v_lshl_add_u32 v1, v2, 5, v1")
    a(f"v_add_u32 v1, {LM}, v1")
    for r in range(2):
        for k in range(4):
            a(f"buffer_load_dwordx4 {v(4 + 4 * k, 4)}, v0, {s(S_TMP, 4)}, 0 offen offset:{16 * k} sc1")
        a("s_waitcnt vmcnt(0)")
        for p in range(8):
            a(f"v_cvt_pk_bf16_f32 {v(20 + p)}, {v(4 + 2 * p)}, {v(5 + 2 * p)}")
        a(f"ds_write_b128 v1, v[20:23] offset:{32 * MROW * r}")
        a(f"ds_write_b128 v1, v[24:27] offset:{32 * MROW * r + 16}")
        if r == 0:
            a(f"v_cmp_gt_u32 vcc, 128, {v(vTID)}")
            a("v_add_u32 v0, 32768, v0")
            a("s_waitcnt lgkmcnt(0)")
            a("s_and_saveexec_b64 s[4:5], vcc")
            a("s_cbranch_execz K2_LAST2")
    a.label("K2_LAST2")
    a("s_mov_b64 exec, -1")
    a("s_branch K2_FINAL")
    return dict(name="edge_kernel", vgpr=256, sgpr=102, grid=256, block=512, lds=K2_LDS)
```

```python
import sys
from asmlib import Asm, check_hazards
from k1 import gen_k1
from k2 import gen_k2

HEAD = open("standalone__cheap_equivariant_egnn__graph.s.ref").read().split("; Override launch")[0]


def build(gens, stamps=False):
    bodies, infos = [], []
    for g in gens:
        a = Asm()
        infos.append(g(a, stamps))
        bodies.append(a.text())
    out = HEAD
    for k in infos:
        out += f"; @launch kernel={k['name']} grid=({k['grid']},1,1) block=({k['block']},1,1) lds={k['lds']}\n"
    out += '.amdgcn_target "amdgcn-amd-amdhsa--gfx950"\n.text\n'
    for k, b in zip(infos, bodies):
        out += f".globl {k['name']}\n.p2align 8\n.type {k['name']},@function\n" + b
    out += 'CODE_END:\n    s_endpgm\n.section .rodata,"a"\n'
    for k in infos:
        acc = (k["vgpr"] + 3) // 4 * 4
        out += f""".p2align 6
.amdhsa_kernel {k['name']}
  .amdhsa_next_free_vgpr {k['vgpr']}
  .amdhsa_next_free_sgpr {k['sgpr']}
  .amdhsa_accum_offset {acc}
  .amdhsa_group_segment_fixed_size 0
  .amdhsa_kernarg_size 88
  .amdhsa_user_sgpr_count 2
  .amdhsa_user_sgpr_kernarg_segment_ptr 1
  .amdhsa_system_sgpr_workgroup_id_x 1
  .amdhsa_float_denorm_mode_32 3
.end_amdhsa_kernel
"""
    for k, b in zip(infos, bodies):
        for p in check_hazards(b):
            print("HAZARD", k["name"], p)
    return out


if __name__ == "__main__":
    dst = sys.argv[1] if len(sys.argv) > 1 else "standalone__cheap_equivariant_egnn__graph.s"
    open(dst, "w").write(build([gen_k1, gen_k2], "--stamps" in sys.argv))
    print("wrote", dst)
```

```python
import re


class Asm:
    def __init__(self):
        self.lines = []

    def __call__(self, text):
        for ln in text.split("\n"):
            ln = ln.strip()
            if ln:
                self.lines.append(ln)

    def label(self, name):
        self.lines.append(name + ":")

    def comment(self, text):
        self.lines.append("; " + text)

    stamps = None
    keep_env = "KEEP"

    def stamp(self, real=False):
        if self.stamps is None:
            return
        import os
        real = real or "REAL" in os.environ
        tmp, slots = self.stamps
        i = getattr(self, "_nst", 0)
        self._nst = i + 1
        keep = os.environ.get(self.keep_env, "")
        if keep and str(i) not in keep.split(","):
            self(f"s_mov_b32 s{slots[i]}, 0")
            return
        self(f"s_memrealtime s[{tmp}:{tmp + 1}]" if real else f"s_memtime s[{tmp}:{tmp + 1}]")
        self("s_waitcnt lgkmcnt(0)")
        self(f"s_mov_b32 s{slots[i]}, s{tmp}")

    def dump_stamps(self, srd, base, vt, wave_sgpr, tmp_s):
        if self.stamps is None:
            return
        _, slots = self.stamps
        self(f"s_lshl_b32 s{tmp_s}, s2, 4")
        self(f"s_add_u32 s{tmp_s}, s{tmp_s}, s{wave_sgpr}")
        self(f"s_lshl_b32 s{tmp_s}, s{tmp_s}, 7")
        self(f"s_add_u32 s{tmp_s}, s{tmp_s}, {base}")
        self(f"v_mov_b32 v{vt}, 0")
        for i in range(self._nst):
            self(f"v_mov_b32 v{vt + 1}, s{slots[i]}")
            self(f"buffer_store_dword v{vt + 1}, v{vt}, s[{srd}:{srd + 3}], s{tmp_s} offen offset:{4 * i}")

    def text(self):
        out = []
        for ln in self.lines:
            if ln.endswith(":") or ln.startswith(".") or ln.startswith(";"):
                out.append(ln)
            else:
                out.append("    " + ln)
        return "\n".join(out) + "\n"


def v(n, cnt=1):
    return f"v{n}" if cnt == 1 else f"v[{n}:{n + cnt - 1}]"


def s(n, cnt=1):
    return f"s{n}" if cnt == 1 else f"s[{n}:{n + cnt - 1}]"


def interleave(main, extra, first=0, every=None):
    main = list(main)
    extra = list(extra)
    if not extra:
        return main
    if every is None:
        every = max(1, (len(main) - first) // len(extra))
    out = []
    k = 0
    for i, ins in enumerate(main):
        while k < len(extra) and i >= first and (i - first) == k * every:
            item = extra[k]
            out.extend(item if isinstance(item, list) else [item])
            k += 1
        out.append(ins)
    while k < len(extra):
        item = extra[k]
        out.extend(item if isinstance(item, list) else [item])
        k += 1
    return out


TRANS = ("v_exp_f32", "v_log_f32", "v_rcp_f32", "v_rsq_f32", "v_sqrt_f32", "v_sin_f32", "v_cos_f32")
_REG = re.compile(r"^-?(?:abs\()?([vsa])(?:(\d+)|\[(\d+):(\d+)\])\)?$")


def regs_of(op):
    op = op.strip()
    if op in ("vcc", "exec", "m0", "scc"):
        return {op}
    if op in ("vcc_lo", "vcc_hi"):
        return {"vcc"}
    m = _REG.match(op)
    if not m:
        return set()
    k = m.group(1)
    if m.group(2) is not None:
        return {k + m.group(2)}
    return {k + str(i) for i in range(int(m.group(3)), int(m.group(4)) + 1)}


class Ins:
    def __init__(self, text, idx):
        self.text = text
        self.idx = idx
        body = text.split(";")[0].strip()
        parts = body.split(None, 1)
        self.op = parts[0]
        rest = parts[1] if len(parts) > 1 else ""
        ops = []
        for tok in rest.split(","):
            tok = tok.strip()
            if tok:
                ops.append(tok.split()[0])
        self.ops = ops
        self.mods = rest
        op = self.op
        self.is_mfma = op.startswith("v_mfma")
        self.is_valu = op.startswith("v_") and not self.is_mfma
        self.is_trans = any(op.startswith(t) for t in TRANS)
        self.is_ds = op.startswith("ds_")
        self.is_vmem = op.startswith("buffer_") or op.startswith("global_")
        self.is_salu = op.startswith("s_")
        self.is_dpp = "_dpp" in op or "row_" in rest or "quad_perm" in rest
        self.defs, self.uses = set(), set()
        self.srcA = self.srcB = self.srcC = set()
        R = [regs_of(o) for o in ops]
        if self.is_mfma:
            self.defs = R[0]
            self.srcA, self.srcB = R[1], R[2]
            self.srcC = R[3] if len(R) > 3 else set()
            self.uses = self.srcA | self.srcB | self.srcC
            self.passes = 8 if "32x32x" in op else 4
        elif self.is_valu:
            if op.startswith("v_cmp"):
                self.defs = R[0]
                self.uses = set().union(*R[1:])
                if op.startswith("v_cmpx"):
                    self.defs |= {"exec"}
            elif op.startswith("v_permlane32_swap") or op.startswith("v_permlane16_swap"):
                self.defs = R[0] | R[1]
                self.uses = R[0] | R[1]
            elif op.startswith("v_add_co") or op.startswith("v_addc_co") or op.startswith("v_sub_co"):
                self.defs = R[0] | R[1]
                self.uses = set().union(*R[2:])
            else:
                self.defs = R[0]
                self.uses = set().union(*R[1:]) if len(R) > 1 else set()
                if op.startswith("v_fmac") or self.is_dpp or op.startswith("v_writelane"):
                    self.uses |= R[0]
        elif self.is_ds:
            if op.startswith("ds_read") or "_rtn" in op or op.startswith("ds_bpermute") or op.startswith("ds_swizzle"):
                self.defs = R[0]
                self.uses = set().union(*R[1:]) if len(R) > 1 else set()
            else:
                self.uses = set().union(*R)
        elif self.is_vmem:
            lds = re.search(r"\blds\b", rest) is not None
            if "load" in op and not lds:
                self.defs = R[0]
                self.uses = set().union(*R[1:])
            else:
                self.uses = set().union(*R)
                if lds:
                    self.uses |= {"m0"}
            self.wide_store_data = R[0] if ("store_dwordx4" in op or "store_dwordx3" in op) else set()
        elif self.is_salu:
            if op.startswith("s_cmp") or op.startswith("s_bitcmp") or op.startswith("s_cbranch") or op in (
                    "s_waitcnt", "s_nop", "s_barrier", "s_endpgm", "s_branch", "s_setprio", "s_sleep",
                    "s_set_gpr_idx_off", "s_set_gpr_idx_on", "s_setpc_b64"):
                self.uses = set().union(*R) if R else set()
            else:
                self.defs = R[0] if R else set()
                self.uses = set().union(*R[1:]) if len(R) > 1 else set()
                if "saveexec" in op:
                    self.defs |= {"exec"}
        self.states = 1
        if op == "s_nop":
            self.states = int(ops[0], 0) + 1


def required(p, c):
    need = 0
    vdefs = {r for r in p.defs if r[0] in "va" and r not in ("vcc",)}
    sdefs = {r for r in p.defs if r[0] == "s" or r == "vcc"}
    if p.is_mfma:
        long_ = {8: 12, 4: 8}[p.passes]
        if c.is_mfma:
            if vdefs & (c.srcA | c.srcB):
                need = max(need, long_)
            if vdefs & c.srcC:
                if not (c.srcC == p.defs and c.passes == p.passes):
                    need = max(need, {8: 10, 4: 6}[p.passes])
            elif vdefs & c.defs and c.passes != p.passes:
                need = max(need, long_)
        elif c.is_valu or c.is_ds or c.is_vmem:
            if vdefs & (c.uses | c.defs):
                need = max(need, long_)
            if c.is_valu and (p.srcC & c.defs):
                need = max(need, {8: 7, 4: 3}[p.passes])
            if (c.is_ds or c.is_vmem) and (p.srcC & c.defs):
                need = max(need, {8: 7, 4: 3}[p.passes])
    if p.is_valu:
        if c.is_mfma and vdefs & c.uses:
            need = max(need, 2)
        if c.is_mfma and "exec" in p.defs:
            need = max(need, 4)
        if c.is_valu:
            if c.is_dpp and vdefs & c.uses:
                need = max(need, 2)
            if c.is_dpp and "exec" in p.defs:
                need = max(need, 5)
            if c.op.startswith("v_permlane") and vdefs & c.uses:
                need = max(need, 2)
            if (c.op.startswith("v_readlane") or c.op.startswith("v_readfirstlane")) and vdefs & c.uses:
                need = max(need, 1)
            if sdefs & c.uses:
                need = max(need, 2)
            if (c.op.startswith("v_readlane") or c.op.startswith("v_writelane")) and sdefs & regs_of(c.ops[-1]):
                need = max(need, 4)
            if p.is_trans and not c.is_trans and vdefs & c.uses:
                need = max(need, 1)
        if c.is_vmem and sdefs & c.uses:
            need = max(need, 5)
        if c.is_salu and sdefs & c.uses:
            need = max(need, 1)
    if p.is_salu and "m0" in p.defs and (c.is_vmem and "m0" in c.uses):
        need = max(need, 1)
    if p.is_vmem and getattr(p, "wide_store_data", set()) & c.defs:
        need = max(need, 2 if c.is_valu else 1)
    return need


def check_hazards(text, horizon=14):
    ins, labels = [], {}
    for ln in text.split("\n"):
        t = ln.split(";")[0].strip()
        if not t or t.startswith("."):
            continue
        if t.endswith(":"):
            labels[t[:-1]] = len(ins)
            continue
        ins.append(Ins(t, len(ins)))

    def succ(i):
        x = ins[i]
        if x.op == "s_endpgm" or x.op == "s_setpc_b64":
            return []
        if x.op == "s_branch":
            return [labels[x.ops[0]]]
        out = [i + 1] if i + 1 < len(ins) else []
        if x.op.startswith("s_cbranch"):
            out.append(labels[x.ops[0]])
        return out

    problems = []
    for p in ins:
        if not (p.is_mfma or p.is_valu or p.is_salu or p.is_vmem):
            continue
        seen = set()
        stack = [(j, 0) for j in succ(p.idx)]
        while stack:
            j, d = stack.pop()
            if j >= len(ins) or (j, d) in seen or d >= horizon:
                continue
            seen.add((j, d))
            c = ins[j]
            need = required(p, c)
            if need > d:
                problems.append(f"need {need} have {d}: [{p.idx}] {p.text}  ->  [{c.idx}] {c.text}")
            for k in succ(j):
                stack.append((k, d + c.states))
    return sorted(set(problems))
```

```python
import os
from asmlib import Asm, v, s
from cfg import *

HALF_H, HALF_W = 80 * 256, 128 * 256
LH, LW = 0, 2 * HALF_H
LBINS = LW + 2 * HALF_W
K1_LDS = LBINS + 1280 * 4
SCAN_WAVE, FRAG_WAVE = 2, 6


def srd(a, d, base, size):
    a(f"s_mov_b32 {s(d)}, {s(base)}")
    a(f"s_and_b32 {s(d + 1)}, {s(base + 1)}, 0xffff")
    a(f"s_mov_b32 {s(d + 2)}, {size}")
    a(f"s_mov_b32 {s(d + 3)}, 0x20000")


def srd_off(a, d, base, off, size):
    a(f"s_add_u32 {s(d)}, {s(base)}, {off}")
    a(f"s_addc_u32 {s(d + 1)}, {s(base + 1)}, 0")
    a(f"s_and_b32 {s(d + 1)}, {s(d + 1)}, 0xffff")
    a(f"s_mov_b32 {s(d + 2)}, {size}")
    a(f"s_mov_b32 {s(d + 3)}, 0x20000")


def wave_scan(a, r):
    for sh in (1, 2, 4, 8):
        a("s_nop 1")
        a(f"v_add_u32_dpp {v(r)}, {v(r)}, {v(r)} row_shr:{sh} row_mask:0xf bank_mask:0xf bound_ctrl:0")
    a("s_nop 1")
    a(f"v_add_u32_dpp {v(r)}, {v(r)}, {v(r)} row_bcast:15 row_mask:0xa bank_mask:0xf")
    a("s_nop 1")
    a(f"v_add_u32_dpp {v(r)}, {v(r)}, {v(r)} row_bcast:31 row_mask:0xc bank_mask:0xf")


def gen_k1(a, stamps=False):
    if stamps:
        a.stamps = (70, list(range(72, 90)))
        a.keep_env = "KEEP1"
    S_H, S_WE, S_DST, S_SRC, S_EA, S_WS, S_WH, S_DESC = 24, 28, 32, 36, 40, 44, 48, 52
    S_OUT = S_DST
    sWV, sRB, sCB, sFRAG, sT0, sT1, sT2, sSO, sHO, sWO = 56, 57, 58, 59, 60, 61, 62, 63, 64, 65
    sC = 66
    vLANE, vDST, vSRC, vEA, vBIN, vRANK, vREC = 1, 2, 3, 4, 5, 6, 8
    vT0, vT1, vT2, vT3 = 10, 11, 25, 26
    vFL, vFP, vFA = 12, 20, 24
    vDH, vDW = 28, 30
    vA, vQ, vDESC, vDA = 32, 52, 74, 82
    vACC, vHF, vWF, vHB, vWB, vOA = 88, 104, 32, 112, 116, 120
    vOUT = 32

    a.label("prep_kernel")
    a("s_cmp_ge_u32 s2, 256")
    a("s_cbranch_scc1 K1_END")
    a.stamp(True)
    a.stamp()
    a("s_load_dwordx16 s[4:19], s[0:1], 0")
    a("s_load_dwordx2 s[20:21], s[0:1], 80")
    if os.environ.get("PF", "1") == "1":
        a.comment("workgroups 0..7: read the code of both kernels once so that instruction fetch finds it in L2")
        a("s_cmp_ge_u32 s2, 8")
        a("s_cbranch_scc1 K1_NOPF")
        a("s_getpc_b64 s[22:23]")
        a("s_and_b32 s22, s22, 0xffffff80")
        a("v_lshlrev_b32 v2, 6, v0")
        a(f"v_min_u32 v2, CODE_END - prep_kernel - 256, v2")
        a("global_load_dword v122, v2, s[22:23]")
        a.label("K1_NOPF")
    a(f"v_lshrrev_b32 {v(vT0)}, 6, v0")
    a(f"v_and_b32 {v(vLANE)}, 63, v0")
    a(f"v_readfirstlane_b32 {s(sWV)}, {v(vT0)}")
    a(f"v_mov_b32 {v(vREC)}, 0")
    a(f"v_mov_b32 {v(vREC + 1)}, 0")
    a(f"v_lshlrev_b32 {v(vT0)}, 3, v0")
    a(f"v_add_u32 {v(vT0)}, {LBINS}, {v(vT0)}")
    a(f"ds_write_b64 {v(vT0)}, {v(vREC, 2)}")
    a(f"s_and_b32 {s(sT0)}, s2, 7")
    a(f"s_lshl_b32 {s(sT0)}, {s(sT0)}, 4")
    a(f"s_lshr_b32 {s(sT1)}, s2, 4")
    a(f"s_add_u32 {s(sRB)}, {s(sT0)}, {s(sT1)}")
    a(f"s_bfe_u32 {s(sCB)}, s2, 0x10003")
    a(f"s_mul_i32 {s(sT0)}, s2, {CH}")
    a(f"v_add_u32 {v(vT0)}, {s(sT0)}, v0")
    a(f"v_lshlrev_b32 {v(vT1)}, 2, {v(vT0)}")
    a(f"v_lshlrev_b32 {v(vT0)}, 1, {v(vT0)}")
    a(f"v_lshrrev_b32 {v(vT2)}, 4, {v(vLANE)}")
    a(f"v_and_b32 {v(vT3)}, 15, {v(vLANE)}")
    a(f"v_xor_b32 {v(vDH)}, {v(vT3)}, {v(vT2)}")
    a(f"v_lshlrev_b32 {v(vDH)}, 4, {v(vDH)}")
    a(f"v_lshl_or_b32 {v(vDH)}, {v(vT2)}, 9, {v(vDH)}")
    a(f"v_lshlrev_b32 {v(vDW)}, 1, {v(vT2)}")
    a(f"v_xor_b32 {v(vDW)}, {v(vT3)}, {v(vDW)}")
    a(f"v_lshlrev_b32 {v(vDW)}, 4, {v(vDW)}")
    a(f"v_lshl_or_b32 {v(vDW)}, {v(vT2)}, 9, {v(vDW)}")
    a(f"s_lshl_b32 {s(sT0)}, {s(sWV)}, 6")
    a(f"s_and_b32 {s(sT1)}, {s(sT0)}, 192")
    a(f"v_xor_b32 {v(vDH)}, {s(sT1)}, {v(vDH)}")
    a(f"v_xor_b32 {v(vDH + 1)}, 128, {v(vDH)}")
    a(f"s_and_b32 {s(sT1)}, {s(sT0)}, 128")
    a(f"v_xor_b32 {v(vDW)}, {s(sT1)}, {v(vDW)}")
    a(f"v_xor_b32 {v(vDW + 1)}, 128, {v(vDW)}")
    a(f"s_mul_i32 {s(sHO)}, {s(sRB)}, {80 * 512}")
    a(f"s_lshl_b32 {s(sT0)}, {s(sWV)}, 11")
    a(f"s_add_u32 {s(sHO)}, {s(sHO)}, {s(sT0)}")
    a(f"s_lshl_b32 {s(sWO)}, {s(sCB)}, 8")
    a(f"s_add_u32 {s(sWO)}, {s(sWO)}, {256 * 512}")
    a(f"s_add_u32 {s(sWO)}, {s(sWO)}, {s(sT0)}")
    a("s_waitcnt lgkmcnt(0)")
    a.stamp()
    srd(a, S_DST, 12, E * 4)
    a(f"buffer_load_dword {v(vDST)}, {v(vT1)}, {s(S_DST, 4)}, 0 offen")
    srd(a, S_SRC, 10, E * 4)
    a(f"buffer_load_dword {v(vSRC)}, {v(vT1)}, {s(S_SRC, 4)}, 0 offen")
    srd(a, S_EA, 8, E * 2)
    a(f"buffer_load_ushort {v(vEA)}, {v(vT0)}, {s(S_EA, 4)}, 0 offen")
    srd(a, S_H, 4, H_SIZE)
    srd(a, S_WE, 14, WE_SIZE)
    a("s_barrier")

    def dma_half(kh):
        a(f"s_lshl_b32 {s(sT0)}, {s(sWV)}, 10")
        for j in range(2):
            a(f"s_add_u32 m0, {s(sT0)}, {LH + HALF_H * kh + 10240 * j}")
            a(f"s_add_u32 {s(sT1)}, {s(sHO)}, {20480 * j + 256 * kh}")
            a(f"buffer_load_dwordx4 {v(vDH + (j & 1))}, {s(S_H, 4)}, {s(sT1)} offen lds")
        for j in range(4):
            if j == 3:
                a(f"s_cmp_ge_u32 {s(sWV)}, 2")
                a(f"s_cbranch_scc1 K1_ND{kh}")
            a(f"s_add_u32 m0, {s(sT0)}, {LW + HALF_W * kh + 10240 * j}")
            a(f"s_add_u32 {s(sT1)}, {s(sWO)}, {20480 * j + 65536 * kh}")
            a(f"buffer_load_dwordx4 {v(vDW + (j & 1))}, {s(S_WE, 4)}, {s(sT1)} offen lds")
        a.label(f"K1_ND{kh}")

    dma_half(0)
    a.stamp()
    a("s_waitcnt vmcnt(5)")
    a.stamp()
    a(f"v_lshrrev_b32 {v(vT0)}, 3, {v(vDST)}")
    a(f"v_lshlrev_b32 {v(vBIN)}, 2, {v(vT0)}")
    a(f"v_add_u32 {v(vBIN)}, {LBINS}, {v(vBIN)}")
    a(f"s_cmp_lt_u32 s2, {NC}")
    a(f"s_cselect_b32 {s(sT0)}, 1, 0")
    a(f"v_mov_b32 {v(vT1)}, {s(sT0)}")
    a(f"ds_add_rtn_u32 {v(vRANK)}, {v(vBIN)}, {v(vT1)}")
    dma_half(1)

    srd(a, S_WS, 20, WS_USED)
    a(f"s_lshl_b32 {s(sT1)}, s2, 11")
    a(f"s_add_u32 {s(sT1)}, {s(sT1)}, {FR_OFF - FRAG_WAVE * 1024}")
    a(f"v_lshl_add_u32 {v(vFA)}, v0, 4, {s(sT1)}")
    a(f"s_sub_u32 {s(sT0)}, {s(sWV)}, {FRAG_WAVE}")
    a(f"s_cmp_lt_u32 {s(sT0)}, 2")
    a(f"s_cselect_b32 {s(sFRAG)}, 1, 0")
    a(f"s_cmp_lt_u32 s2, 192")
    a(f"s_cselect_b32 {s(sFRAG)}, {s(sFRAG)}, 0")
    a(f"s_cmp_eq_u32 {s(sFRAG)}, 0")
    a("s_cbranch_scc1 K1_NOFRAG")
    a(f"s_cmp_lt_u32 s2, 64")
    a(f"s_cselect_b32 {s(S_WH)}, s14, s18")
    a(f"s_cselect_b32 {s(S_WH + 1)}, s15, s19")
    a(f"s_cselect_b32 {s(sT2)}, 1, 0")
    a(f"s_and_b32 {s(S_WH + 1)}, {s(S_WH + 1)}, 0xffff")
    a(f"s_mov_b32 {s(S_WH + 2)}, {WH_SIZE}")
    a(f"s_mov_b32 {s(S_WH + 3)}, 0x20000")
    a(f"s_and_b32 {s(sT1)}, s2, 63")
    a(f"s_lshl_b32 {s(sT1)}, {s(sT1)}, 1")
    a(f"s_add_u32 {s(sT0)}, {s(sT0)}, {s(sT1)}")
    a(f"s_and_b32 {s(sT1)}, {s(sT0)}, 8")
    a(f"s_lshl_b32 {s(sT2)}, {s(sT1)}, {s(sT2)}")
    a(f"s_lshr_b32 {s(sT1)}, {s(sT0)}, 4")
    a(f"s_lshl_b32 {s(sT1)}, {s(sT1)}, 6")
    a(f"s_add_u32 {s(sT1)}, {s(sT1)}, {s(sT2)}")
    a(f"s_and_b32 {s(sT0)}, {s(sT0)}, 7")
    a(f"s_lshl_b32 {s(sT0)}, {s(sT0)}, 14")
    a(f"s_add_u32 {s(sT1)}, {s(sT1)}, {s(sT0)}")
    a(f"v_and_b32 {v(vT1)}, 3, {v(vLANE)}")
    a(f"v_bfe_u32 {v(vT2)}, {v(vLANE)}, 2, 2")
    a(f"v_lshl_or_b32 {v(vT3)}, {v(vT2)}, 3, {v(vT1)}")
    a(f"s_cmp_ge_u32 s2, 64")
    a("s_cbranch_scc1 K1_FCOL")
    a(f"v_bfe_u32 {v(vT2)}, {v(vLANE)}, 2, 1")
    a(f"v_lshl_or_b32 {v(vT1)}, {v(vT2)}, 4, {v(vT1)}")
    a(f"v_bfe_u32 {v(vT2)}, {v(vLANE)}, 3, 1")
    a(f"v_lshl_or_b32 {v(vT3)}, {v(vT2)}, 2, {v(vT1)}")
    a.label("K1_FCOL")
    a(f"v_lshlrev_b32 {v(vT1)}, 1, {v(vT3)}")
    a(f"v_lshrrev_b32 {v(vT2)}, 4, {v(vLANE)}")
    a(f"s_cmp_ge_u32 s2, 128")
    a(f"s_cselect_b32 {s(sT2)}, 11, 12")
    a(f"s_cselect_b32 {s(sSO)}, 6144, 0")
    a(f"s_cselect_b32 {s(sT0)}, {256 * 512}, 0")
    a(f"s_add_u32 {s(sT1)}, {s(sT1)}, {s(sT0)}")
    a(f"v_lshlrev_b32 {v(vT2)}, {s(sT2)}, {v(vT2)}")
    a(f"v_add3_u32 {v(vT1)}, {v(vT1)}, {v(vT2)}, {s(sT1)}")
    for t in range(8):
        so = "0" if t < 4 else s(sSO)
        a(f"buffer_load_ushort {v(vFL + t)}, {v(vT1)}, {s(S_WH, 4)}, {so} offen offset:{t * 512}")
    a("s_waitcnt vmcnt(13)")
    a("s_branch K1_FRAGD")
    a.label("K1_NOFRAG")
    a("s_waitcnt vmcnt(5)")
    a.label("K1_FRAGD")

    a(f"v_mul_u32_u24 {v(vT1)}, 52429, {v(vT0)}")
    a(f"v_lshrrev_b32 {v(vT1)}, 18, {v(vT1)}")
    a(f"v_mul_u32_u24 {v(vT1)}, 5, {v(vT1)}")
    a(f"v_sub_u32 {v(vT0)}, {v(vT0)}, {v(vT1)}")
    a(f"v_and_b32 {v(vT1)}, 7, {v(vDST)}")
    a(f"v_lshl_or_b32 {v(vT1)}, {v(vT0)}, 3, {v(vT1)}")
    a(f"v_lshlrev_b32 {v(vREC)}, 9, {v(vSRC)}")
    a(f"v_lshl_or_b32 {v(vEA)}, {v(vT1)}, 16, {v(vEA)}")
    a(f"s_cmp_ge_u32 {s(sWV)}, 5")
    a(f"s_cselect_b32 {s(sT0)}, 1, 0")
    a(f"s_cselect_b32 {s(sT1)}, 5, 0")
    a(f"s_sub_u32 {s(sT1)}, {s(sWV)}, {s(sT1)}")
    a(f"v_and_b32 {v(vT0)}, 15, {v(vLANE)}")
    a(f"v_lshrrev_b32 {v(vT1)}, 4, {v(vLANE)}")
    a(f"v_xor_b32 {v(vT2)}, {v(vT0)}, {v(vT1)}")
    a(f"v_lshlrev_b32 {v(vT2)}, 4, {v(vT2)}")
    a(f"v_lshl_or_b32 {v(vT2)}, {v(vT0)}, 8, {v(vT2)}")
    a(f"s_lshl_b32 {s(sT2)}, {s(sT1)}, 12")
    a(f"v_add_u32 {v(vHB)}, {s(sT2)}, {v(vT2)}")
    for k in range(1, 4):
        a(f"v_xor_b32 {v(vHB + k)}, {64 * k}, {v(vHB)}")
    a(f"v_bfe_u32 {v(vT0)}, {v(vLANE)}, 2, 2")
    a(f"v_lshl_or_b32 {v(vT2)}, {v(vT1)}, 3, {v(vT0)}")
    a(f"v_lshlrev_b32 {v(vT2)}, 8, {v(vT2)}")
    a(f"v_and_b32 {v(vT1)}, 1, {v(vT1)}")
    a(f"v_xor_b32 {v(vT1)}, {s(sT0)}, {v(vT1)}")
    a(f"v_lshl_or_b32 {v(vT0)}, {v(vT1)}, 2, {v(vT0)}")
    a(f"v_lshl_or_b32 {v(vT2)}, {v(vT0)}, 5, {v(vT2)}")
    a(f"v_and_b32 {v(vT0)}, 3, {v(vLANE)}")
    a(f"v_lshl_or_b32 {v(vT2)}, {v(vT0)}, 3, {v(vT2)}")
    a(f"v_add_u32 {v(vWB)}, {LW}, {v(vT2)}")
    for ti in range(1, 4):
        a(f"v_xor_b32 {v(vWB + ti)}, {32 * ti}, {v(vWB)}")
    a(f"s_mul_i32 {s(sSO)}, {s(sRB)}, 80")
    a(f"s_lshl_b32 {s(sT1)}, {s(sT1)}, 4")
    a(f"s_add_u32 {s(sSO)}, {s(sSO)}, {s(sT1)}")
    a(f"s_lshl_b32 {s(sSO)}, {s(sSO)}, 9")
    a(f"s_lshl_b32 {s(sT1)}, {s(sCB)}, 1")
    a(f"s_add_u32 {s(sT0)}, {s(sT0)}, {s(sT1)}")
    a(f"s_lshl_b32 {s(sT0)}, {s(sT0)}, 7")
    a(f"s_add_u32 {s(sSO)}, {s(sSO)}, {s(sT0)}")
    a(f"v_and_b32 {v(vT0)}, 15, {v(vLANE)}")
    a(f"v_and_b32 {v(vT1)}, 48, {v(vLANE)}")
    a(f"v_lshl_or_b32 {v(vOA)}, {v(vT0)}, 9, {v(vT1)}")
    a(f"s_and_b32 {s(sT0)}, s2, 7")
    a(f"s_lshl_b32 {s(sT0)}, {s(sT0)}, 8")
    a(f"s_and_b32 {s(sT1)}, s2, 0xf8")
    a(f"s_add_u32 {s(sT0)}, {s(sT0)}, {s(sT1)}")
    a(f"v_lshl_add_u32 {v(vDA)}, {v(vLANE)}, 13, {s(sT0)}")
    a("s_waitcnt lgkmcnt(0)")
    a(f"v_lshl_or_b32 {v(vREC + 1)}, {v(vRANK)}, 22, {v(vEA)}")
    a("s_barrier")
    a.stamp()
    a(f"s_cmp_lg_u32 {s(sWV)}, {SCAN_WAVE}")
    a("s_cbranch_scc1 K1_NOSCAN")
    a(f"v_mul_u32_u24 {v(vT0)}, 80, {v(vLANE)}")
    a(f"v_add_u32 {v(vT0)}, {LBINS}, {v(vT0)}")
    for i in range(5):
        a(f"ds_read_b128 {v(vA + 4 * i, 4)}, {v(vT0)} offset:{16 * i}")
    a("s_waitcnt lgkmcnt(0)")
    for i in range(1, 20):
        a(f"v_add_u32 {v(vA + i)}, {v(vA + i - 1)}, {v(vA + i)}")
    a(f"v_mov_b32 {v(vT1)}, {v(vA + 19)}")
    wave_scan(a, vT1)
    a(f"v_sub_u32 {v(vQ)}, {v(vT1)}, {v(vA + 19)}")
    for i in range(1, 21):
        a(f"v_add_u32 {v(vQ + i)}, {v(vQ)}, {v(vA + i - 1)}")
    for i in range(5):
        a(f"ds_write_b128 {v(vT0)}, {v(vQ + 4 * i, 4)} offset:{16 * i}")
    for j in range(4):
        for hl in range(2):
            r = vQ + 5 * j + 3 * hl
            d = vDESC + 2 * j + hl
            a(f"v_lshl_or_b32 {v(d)}, {v(r + 1)}, 10, {v(r)}")
            a(f"v_lshl_or_b32 {v(d)}, {v(r + 2)}, 20, {v(d)}")
    a("s_waitcnt lgkmcnt(0)")
    a.label("K1_NOSCAN")
    a.stamp()

    def reads(kk):
        b, kh, k4 = kk & 1, kk >> 2, kk & 3
        out = [f"ds_read_b128 {v(vHF + 4 * b, 4)}, {v(vHB + k4)} offset:{HALF_H * kh}"]
        for ti in range(4):
            for half in range(2):
                out.append(f"ds_read_b64_tr_b16 {v(vWF + 16 * b + 4 * ti + 2 * half, 2)}, {v(vWB + ti)} offset:{HALF_W * kh + 8192 * k4 + 1024 * half}")
        return out

    def gemm_half(kh):
        for ln in reads(4 * kh):
            a(ln)
        for kk in range(4 * kh, 4 * kh + 4):
            b = kk & 1
            a("s_waitcnt lgkmcnt(0)")
            nxt = reads(kk + 1) if (kk & 3) < 3 else []
            for ti in range(4):
                d = vACC + 4 * ti
                for _ in range(3):
                    if nxt:
                        a(nxt.pop(0))
                a(f"v_mfma_f32_16x16x32_bf16 {v(d, 4)}, {v(vWF + 16 * b + 4 * ti, 4)}, {v(vHF + 4 * b, 4)}, {'0' if kk == 0 else v(d, 4)}")

    def middle(tag):
        a("s_waitcnt vmcnt(0)")
        a("s_barrier")
        a.stamp()
        a(f"ds_read_b32 {v(vT0)}, {v(vBIN)}")
        srd_off(a, S_SRC, 20, REC_OFF, REC_SIZE)
        a(f"s_mul_i32 {s(sT0)}, s2, {CH * 8}")
        a("s_waitcnt lgkmcnt(0)")
        a(f"v_add_lshl_u32 {v(vT0)}, {v(vT0)}, {v(vRANK)}, 3")
        a(f"buffer_store_dwordx2 {v(vREC, 2)}, {v(vT0)}, {s(S_SRC, 4)}, {s(sT0)} offen {os.environ.get('F2', '')}")
        a(f"s_cmp_lg_u32 {s(sWV)}, {SCAN_WAVE}")
        a(f"s_cbranch_scc1 K1_NOREC{tag}")
        srd_off(a, S_DESC, 20, DESC_OFF, DESC_SIZE)
        for j in range(4):
            a(f"s_mov_b32 {s(sT0)}, {j * DESC_ROW}")
            a(f"buffer_store_dwordx2 {v(vDESC + 2 * j, 2)}, {v(vDA)}, {s(S_DESC, 4)}, {s(sT0)} offen")
        a.label(f"K1_NOREC{tag}")
        a(f"s_cmp_eq_u32 {s(sFRAG)}, 0")
        a(f"s_cbranch_scc1 K1_NOFST{tag}")
        for p in range(4):
            a(f"v_lshl_or_b32 {v(vFP + p)}, {v(vFL + 2 * p + 1)}, 16, {v(vFL + 2 * p)}")
        a(f"buffer_store_dwordx4 {v(vFP, 4)}, {v(vFA)}, {s(S_WS, 4)}, 0 offen")
        a.label(f"K1_NOFST{tag}")
        a.stamp()

    def scale_pack():
        a(f"s_mov_b32 {s(sC)}, {LOG2E}")
        a(f"s_mov_b32 {s(sC + 1)}, {LOG2E}")
        for p in range(8):
            a(f"v_pk_mul_f32 {v(vACC + 2 * p, 2)}, {v(vACC + 2 * p, 2)}, {s(sC, 2)}")
        for p in range(8):
            a(f"v_cvt_pk_bf16_f32 {v(vOUT + p)}, {v(vACC + 2 * p)}, {v(vACC + 2 * p + 1)}")

    def finish():
        a.stamp()
        if a.stamps:
            a("s_waitcnt vmcnt(0)")
        a.stamp()
        a.stamp(True)
        if a.stamps:
            srd(a, S_WS, 20, 16 << 20)
        a.dump_stamps(S_WS, STAMP1_OFF, 0, sWV, sT0)

    gemm_half(0)
    middle("")
    srd(a, S_EA, 6, POS_SIZE)
    a(f"s_lshr_b32 {s(sT0)}, s2, 3")
    a(f"s_lshl_b32 {s(sT0)}, {s(sT0)}, 11")
    a(f"v_lshlrev_b32 {v(vT1)}, 2, v0")
    a(f"buffer_load_dword {v(vT2)}, {v(vT1)}, {s(S_EA, 4)}, {s(sT0)} offen")
    gemm_half(1)
    a.stamp()
    srd_off(a, S_OUT, 20, BP_OFF, BP_SIZE)
    a("s_nop 0")
    scale_pack()
    for tp in range(2):
        a(f"buffer_store_dwordx4 {v(vOUT + 4 * tp, 4)}, {v(vOA)}, {s(S_OUT, 4)}, {s(sSO)} offen offset:{64 * tp} {os.environ.get('F1', '')}")
    finish()
    a.label("K1_END")
    a("s_endpgm")
    return dict(name="prep_kernel", vgpr=124, sgpr=96, grid=256, block=640, lds=K1_LDS)
```

```python
import os
from asmlib import Asm, v, s
from cfg import *
from k1 import srd, srd_off

NTMAX = 52
CAP = NTMAX * 16
LIMIT = CAP - 75
XT = 384
LS = 0
LX = LS + NTMAX * 1024
LL = LX + NTMAX * XT
LE = LL + (CAP + 64) * 4
LZ = LE + CAP * 4
LPOS = LZ + 512
LWX = LPOS + 6 * 512
LTOT = LWX + 512
LPD = LTOT + 128
LM = LPD + 256
MROW = 528
LH = (LM + 48 * MROW + 255) // 256 * 256
LR = LH + 40 * 512
RING = 4096
K2_LDS = LR + 8 * RING
assert LM % 16 == 0 and LR % 64 == 0 and LZ % 16 == 0 and K2_LDS <= 163840
MARK = 0x40000000
SPLIT_NUM = int(os.environ.get("SPLIT", "42"))

YA, YB, EA_, EB = 0, 16, 32, 48
ACC, MP, AF, X2, SP, LST = 64, 96, 104, 112, 120, 124
Y2Q, Y2C, Y2K, ID, QUA, ZER = 128, 148, 152, 156, 164, 168
vS, vL, vX1, vX2, vXS, vR0, vG, vR1, vMA, vWXA, vT0, vT1, vLN, vTID = range(172, 186)
vHB = 186
WH2 = 192
T = WH2
S_BP, S_REC, S_DESC, S_FR, S_H, S_POS, S_OUT, S_TMP = 24, 28, 32, 36, 40, 44, 48, 52
sK3, sK2, sK1, sIT = 56, 57, 58, 59
sWV, sQ, sST, sFIRST, sSLOW, sLO, sTOT = 60, 61, 62, 63, 64, 65, 66
sTB = 67
sINIT = 73
sMASK = 74
sREM, sPEND, sGA, sRB, sT0, sT1, sT2, sT3 = 76, 77, 78, 79, 80, 81, 82, 83
sC0 = 84
sWB, sTL, sBT, sPS = 86, 87, 88, 89
sE0, sE1 = 90, 92
sWRT, sGX, sW1 = 23, 21, 99
sSTR = 100

uid = [0]


def fresh():
    uid[0] += 1
    return uid[0]


def emit(a, lines):
    for ln in lines:
        a(ln)


def group_of(a, dst, tile):
    a(f"s_mov_b32 {s(dst)}, 0")
    for g in range(1, 5):
        a(f"s_cmp_ge_u32 {s(tile)}, {s(sTB + g)}")
        a(f"s_addc_u32 {s(dst)}, {s(dst)}, 0")


def tile_index(a, off):
    a(f"s_sub_u32 {s(sTL)}, {s(sPEND)}, {s(sREM)}")
    a(f"s_lshl_b32 {s(sTL)}, {s(sTL)}, 1")
    a(f"s_add_u32 {s(sTL)}, {s(sTL)}, {(off - 2) & 0xffffffff}")


def mf32(d, x, y, c):
    return f"v_mfma_f32_32x32x16_bf16 {v(d, 16)}, {v(x, 4)}, {v(y, 4)}, {c if c == '0' else v(c, 16)}"


def mf16(d, x, y, c):
    return f"v_mfma_f32_16x16x32_bf16 {v(d, 4)}, {v(x, 4)}, {v(y, 4)}, {c if c == '0' else v(c, 4)}"


def p_mfmas(Y):
    return [mf32(Y, AF, ID, "0"), mf32(Y, AF + 4, ID + 4, Y), mf32(Y, X2, Y2C, Y), mf32(Y, X2 + 4, Y2K, Y)]


S1, S2 = mf32(ACC, MP, SP, ACC), mf32(ACC + 16, MP + 4, SP, ACC + 16)


def flush(b, F):
    n = fresh()
    b(f"s_cmp_lg_u32 {s(sSLOW)}, 0")
    b(f"s_cbranch_scc1 K2_FA{n}")
    b.label(f"K2_FB{n}")
    b(f"s_mul_i32 {s(sT0)}, {s(sGA)}, {8 * MROW}")
    b(f"s_lshl_b32 {s(sT1)}, {s(sGA)}, 9")
    b(f"s_lshl_b32 {s(sT2)}, {s(sQ)}, 7")
    b(f"s_add_u32 {s(sT1)}, {s(sT1)}, {s(sT2)}")
    b(f"s_add_u32 {s(sT1)}, {s(sT1)}, {LPOS}")
    for st in range(2):
        for p in range(8):
            b(f"v_cvt_pk_bf16_f32 {v(F + 8 * st + p)}, {v(ACC + 16 * st + 2 * p)}, {v(ACC + 16 * st + 2 * p + 1)}")
        if st == 0:
            for k in range(4):
                b(f"ds_read_b128 {v(ACC + 4 * k, 4)}, {v(vWXA)} offset:{32 * k}")
    b(f"v_add_u32 {v(vT0)}, {s(sT0)}, {v(vMA)}")
    b(f"v_lshl_add_u32 {v(vT1)}, {v(vLN)}, 2, {s(sT1)}")
    b("s_waitcnt lgkmcnt(0)")
    for k in range(4):
        b(mf32(ACC + 16, ACC + 4 * k, F + 4 * k, "0" if k == 0 else ACC + 16))
    b(f"s_mov_b64 exec, {s(sE0, 2)}")
    for st in range(2):
        for p in range(4):
            b(f"ds_write_b64 {v(vT0)}, {v(F + 8 * st + 2 * p, 2)} offset:{64 * st + 16 * p}")
    b(f"s_mov_b64 exec, {s(sE1, 2)}")
    b(f"s_cmp_lg_u32 {s(sSLOW)}, 0")
    b(f"s_cbranch_scc1 K2_FC{n}")
    b(f"ds_write_b32 {v(vT1)}, {v(ACC + 16)}")
    b.label(f"K2_FD{n}")
    b("s_mov_b64 exec, -1")
    o = Asm()
    o.label(f"K2_FA{n}")
    o(f"s_lshl_b32 {s(sT0)}, {s(sGA)}, 13")
    o(f"s_lshl_b32 {s(sT1)}, {s(sQ)}, 8")
    o(f"s_add_u32 {s(sT0)}, {s(sT0)}, {s(sT1)}")
    o(f"v_and_b32 {v(vT0)}, 7, {v(vLN)}")
    o(f"v_lshrrev_b32 {v(vT1)}, 5, {v(vLN)}")
    o(f"v_lshlrev_b32 {v(vT1)}, 4, {v(vT1)}")
    o(f"v_lshl_or_b32 {v(vT0)}, {v(vT0)}, 10, {v(vT1)}")
    o(f"s_mov_b64 exec, {s(sE0, 2)}")
    for st in range(2):
        for k in range(4):
            o(f"buffer_load_dwordx4 {v(F + 4 * k, 4)}, {v(vT0)}, {s(S_TMP, 4)}, {s(sT0)} offen offset:{128 * st + 32 * k} sc1")
        o("s_waitcnt vmcnt(0)")
        for p in range(8):
            o(f"v_pk_add_f32 {v(F + 2 * p, 2)}, {v(F + 2 * p, 2)}, {v(ACC + 16 * st + 2 * p, 2)}")
        for k in range(4):
            o(f"buffer_store_dwordx4 {v(F + 4 * k, 4)}, {v(vT0)}, {s(S_TMP, 4)}, {s(sT0)} offen offset:{128 * st + 32 * k}")
        o("s_waitcnt vmcnt(0)")
    o("s_mov_b64 exec, -1")
    o(f"s_branch K2_FB{n}")
    o.label(f"K2_FC{n}")
    o(f"ds_add_f32 {v(vT1)}, {v(ACC + 16)}")
    o(f"s_branch K2_FD{n}")
    return o.lines


def wh2_part(o, n, done):
    o(f"v_lshlrev_b32 {v(vT0)}, 4, {v(vLN)}")
    o(f"s_lshl_b32 {s(sT0)}, {s(sIT)}, 12")
    o(f"s_add_u32 {s(sT0)}, {s(sT0)}, {s(sWB)}")
    o(f"s_add_u32 {s(sIT)}, {s(sIT)}, 1")
    for part in range(4):
        if part < 3:
            o(f"s_cmp_lg_u32 {s(sIT)}, {part + 1}")
            o(f"s_cbranch_scc1 K2_W{n}_{part + 1}")
        for f in range(4):
            o(f"buffer_load_dwordx4 {v(WH2 + 16 * part + 4 * f, 4)}, {v(vT0)}, {s(S_FR, 4)}, {s(sT0)} offen offset:{1024 * f}")
        o(f"s_branch {done}")
        if part < 3:
            o.label(f"K2_W{n}_{part + 1}")


def site(off_s, off_p, F):
    n = fresh()
    bits = (0 if off_s is None else 1 << (off_s + 1)) | (0 if off_p is None else 1 << (off_p + 1))
    chk = [f"s_and_b32 {s(sT0)}, {s(sMASK)}, {bits}", f"s_cbranch_scc1 K2_H{n}", f"K2_R{n}:"]
    o = Asm()
    far = []
    o.label(f"K2_H{n}")
    if off_s is not None:
        if off_p is not None:
            o(f"s_bitcmp1_b32 {s(sMASK)}, {off_s + 1}")
            o(f"s_cbranch_scc0 K2_HP{n}")
        o(f"s_cmp_eq_u32 {s(sGA)}, -1")
        o(f"s_cbranch_scc1 K2_H0{n}")
        far = flush(o, F)
        tile_index(o, off_s)
        group_of(o, sGA, sTL)
        o.label(f"K2_HZ{n}")
        o(mf32(ACC, QUA, ZER, "0"))
        o(mf32(ACC + 16, QUA, ZER, "0"))
    if off_p is not None:
        if off_s is not None:
            o(f"s_bitcmp1_b32 {s(sMASK)}, {off_p + 1}")
            o(f"s_cbranch_scc0 K2_HD{n}")
        o.label(f"K2_HP{n}")
        tile_index(o, off_p)
        group_of(o, sT0, sTL)
        o(f"s_lshl_b32 {s(sT0)}, {s(sT0)}, 2")
        o(f"s_set_gpr_idx_on {s(sT0)}, gpr_idx(SRC0)")
        for i in range(4):
            o(f"v_mov_b32 {v(Y2C + i)}, {v(Y2Q + i)}")
        o("s_set_gpr_idx_off")
        o(f"s_mov_b32 m0, {s(sRB)}")
    o.label(f"K2_HD{n}")
    if "x" in os.environ.get("ABL", ""):
        o(f"s_branch K2_R{n}")
    o(f"s_cmp_ge_u32 {s(sIT)}, 4")
    o(f"s_cbranch_scc1 K2_R{n}")
    wh2_part(o, n, f"K2_R{n}")
    if off_s is not None:
        o.label(f"K2_H0{n}")
        o(f"s_mov_b32 {s(sGA)}, {s(sINIT)}")
        o(f"s_branch K2_HZ{n}")
    return chk, o.lines + far


def dma(slot):
    so = [s(sK3), s(sK2), s(sK1), "0"]
    return [f"buffer_load_dwordx4 {v(LST + 2 * slot + i)}, {s(S_BP, 4)}, {so[2 * slot + i]} offen offset:{2048 * slot + 1024 * i} lds" for i in range(2)]


LST_ADD = [f"v_pk_add_f32 {v(LST + 2 * i, 2)}, {v(LST + 2 * i, 2)}, {v(vG, 2)} op_sel_hi:[1,0]" for i in range(2)]


def frag_reads(slot):
    return [f"ds_read_b128 {v(AF, 4)}, {v(vR0)} offset:{slot * 2048}",
            f"ds_read_b128 {v(AF + 4, 4)}, {v(vR1)} offset:{slot * 2048}",
            f"ds_read_b128 {v(X2, 4)}, {v(vX1)} offset:{slot * XT}",
            f"ds_read_b64 {v(X2 + 4, 2)}, {v(vX2)} offset:{slot * XT}"]


def list_read(ahead):
    return f"ds_read2_b64 {v(LST, 4)}, {v(vL)} offset0:{16 * ahead} offset1:{16 * ahead + 8}"


ADV_X = f"v_pk_add_f32 {v(vX1, 2)}, {v(vX1, 2)}, {v(vXS, 2)} op_sel_hi:[1,0]"
ADV_S = f"v_pk_add_f32 {v(vS, 2)}, {v(vS, 2)}, {s(sSTR, 2)}"


def exps(Y, Ex):
    return [f"v_exp_f32 {v(Ex + i)}, -{v(Y + i)}" for i in range(16)]


def rcps(Ex):
    return [f"v_rcp_f32 {v(Ex + i)}, {v(Ex + i)}" for i in range(16)]


def pkmuls(Y, Ex):
    return [f"v_pk_mul_f32 {v(Ex + 2 * i, 2)}, {v(Ex + 2 * i, 2)}, {v(Y + 2 * i, 2)}" for i in range(8)]


def cvts(Ex):
    return [f"v_cvt_pk_bf16_f32 {v(MP + i)}, {v(Ex + 2 * i)}, {v(Ex + 2 * i + 1)}" for i in range(8)]


def plus_one(Ex):
    return mf32(Ex, QUA, QUA, Ex)


def place(main, items):
    out = []
    for i, ins in enumerate(main + [None]):
        for pos, lines in items:
            if pos == i:
                out.extend(lines if isinstance(lines, list) else [lines])
        if ins is not None:
            out.append(ins)
    return out


def loop_body(far, mm=(0, 6, 10, 13, 16, 19), dm=(2, 4), op=2, r0=7, r1=14, pw=11, prio=True):
    hi = ["s_setprio 3"] if prio else []
    lo = ["s_setprio 0"] if prio else []
    chk, o = site(-1, 1, YB)
    far.extend(o)
    m, d = p_mfmas(YB) + [S1, S2], dma(1)
    blk = place(cvts(EB) + exps(YA, EA_) + exps(YB, EB), [(0, lo + ["s_waitcnt lgkmcnt(0)"] + chk)] +
                [(mm[i], m[i]) for i in range(6)] + [(dm[0], d[0]), (dm[1], d[1])] +
                [(mm[5] + 1, [f"ds_read_b128 {v(SP, 4)}, {v(vS)}", list_read(2)]), (24 + op, plus_one(EA_))])
    blk += place(rcps(EA_) + pkmuls(YA, EA_) + LST_ADD, [
        (op, plus_one(EB)), (r0, ["s_waitcnt vmcnt(2) lgkmcnt(0)"] + frag_reads(0)), (pw, hi)])
    chk, o = site(0, 2, YA)
    far.extend(o)
    m, d = p_mfmas(YA) + [S1, S2], dma(0)
    blk += place(cvts(EA_) + rcps(EB) + pkmuls(YB, EB) + [ADV_S, ADV_X], [(0, lo + ["s_waitcnt lgkmcnt(0)"] + chk)] +
                 [(mm[i], m[i]) for i in range(6)] + [(dm[0], d[0]), (dm[1], d[1])] +
                 [(r1, ["s_waitcnt vmcnt(2)"] + frag_reads(1)),
                  (r1 + 3, [f"s_lshr_b64 {s(sMASK, 2)}, {s(sMASK, 2)}, 2", f"s_sub_u32 {s(sREM)}, {s(sREM)}, 1"]),
                  (mm[5] + 1, [f"ds_read_b128 {v(SP, 4)}, {v(vS)} offset:1024"] + hi)])
    return blk


def spread(main, extra):
    n, k = len(main), len(extra)
    return place(main, [(min(n, (i * n) // k + (n // k) // 2), x) for i, x in enumerate(extra)])


def capture(fn):
    b = Asm()
    fn(b)
    return b.lines


def colmap_v(a, dst, src, tmp):
    a(f"v_and_b32 {v(dst)}, 0x23, {v(src)}")
    a(f"v_bfe_u32 {v(tmp)}, {v(src)}, 2, 1")
    a(f"v_lshl_or_b32 {v(dst)}, {v(tmp)}, 4, {v(dst)}")
    a(f"v_bfe_u32 {v(tmp)}, {v(src)}, 3, 2")
    a(f"v_lshl_or_b32 {v(dst)}, {v(tmp)}, 2, {v(dst)}")


def gen_k2(a, stamps=False):
    if stamps:
        a.stamps = (94, [96, 97, 98] + list(range(4, 20)))
    tDL, tDH, tN, tO0, tP2, tRA = T, T + 1, T + 2, T + 3, T + 4, T + 5
    tA, tB, tT = T + 6, T + 7, T + 8
    tF = T + 9
    tV = T + 10
    tR = T + 12
    tWD, tWE, tWX, tPP = T + 20, T + 21, T + 22, T + 23
    t0, t1, t2, t3, t4, t5 = range(T + 24, T + 30)
    tW, tM = T + 36, T + 38
    tPS, tPD = T + 40, T + 44
    tAS, tAX, tI = T + 48, T + 49, T + 51
    tH = T + 60
    AG, HF = ACC, ACC + 24
    far = []

    def lane_setup():
        a(f"v_and_b32 {v(t0)}, 31, {v(vLN)}")
        a(f"s_lshl_b32 {s(sT0)}, {s(sWV)}, 8")
        a(f"v_lshl_add_u32 {v(t2)}, {v(t0)}, 3, {s(sT0)}")
        a(f"v_lshl_add_u32 {v(tRA)}, {v(t0)}, 3, {s(sWV)}")

    def lane_setup2():
        a(f"v_mul_u32_u24 {v(tRA)}, {CH}, {v(tRA)}")
        a(f"v_lshrrev_b32 {v(tP2)}, 5, {v(vLN)}")
        a(f"v_lshlrev_b32 {v(tP2)}, 1, {v(tP2)}")
        a(f"v_lshlrev_b32 {v(tF)}, 4, {v(vLN)}")

    def w1_load(kk, ct):
        page = 2 * ct + (kk >> 2)
        return f"buffer_load_dwordx4 {v(8 * kk + 4 * ct, 4)}, {v(tF if page == 0 else T + 52 + page)}, {s(S_FR, 4)}, {s(sW1)} offen offset:{1024 * (kk & 3)}"

    def w1_pages():
        for page in range(1, 4):
            a(f"v_add_u32 {v(T + 52 + page)}, {4096 * page}, {v(tF)}")

    W1L = [w1_load(kk, ct) for kk in range(8) for ct in range(2)]

    def lds_init(b, first):
        b(f"v_lshlrev_b32 {v(t4)}, 4, {v(vTID)}")
        b(f"v_add_u32 {v(t5)}, 65536, {v(t4)}")
        total = LL // 16
        assert total // 512 == 8 and (LWX - LZ) // 16 == 224 and (CAP + 64) // 4 == 224
        for r in range(8):
            b(f"ds_write_b128 {v(t4)}, {v(ZER, 4)} offset:{8192 * r}")
        b(f"v_cmp_gt_u32 vcc, {total - 4096}, {v(vTID)}")
        for i in range(4):
            b(f"v_mov_b32 {v(T + 56 + i)}, {MARK}")
        tail = ["s_mov_b64 exec, vcc", f"v_cmp_gt_u32 vcc, 224, {v(vTID)}", f"ds_write_b128 {v(t5)}, {v(ZER, 4)}", "s_mov_b64 exec, vcc"]
        if first:
            tail.append(f"ds_write_b128 {v(t5)}, {v(ZER, 4)} offset:{LZ - 65536}")
        tail += [f"ds_write_b128 {v(t5)}, {v(T + 56, 4)} offset:{LL - 65536}", "s_mov_b64 exec, -1"]
        return tail

    def once_consts(b):
        b(f"s_mov_b32 {s(sE0)}, 0xff")
        b(f"s_mov_b32 {s(sE0 + 1)}, 0xff")
        b(f"s_mov_b32 {s(sE1)}, -1")
        b(f"s_mov_b32 {s(sE1 + 1)}, 0")
        b(f"s_mov_b32 {s(sSTR)}, 2048")
        b(f"s_mov_b32 {s(sSTR + 1)}, 128")
        b(f"s_add_u32 {s(sWB)}, {s(sW1)}, {2 * FR_ONE}")
        b(f"v_and_b32 {v(t0)}, 15, {v(vLN)}")
        b(f"v_bfe_u32 {v(t1)}, {v(vLN)}, 4, 1")
        b(f"v_lshrrev_b32 {v(t2)}, 5, {v(vLN)}")
        b(f"v_lshl_or_b32 {v(t3)}, {v(t1)}, 2, {v(t2)}")
        b(f"v_bfe_u32 {v(t4)}, {v(vLN)}, 1, 2")
        b(f"v_xor_b32 {v(t3)}, {v(t3)}, {v(t4)}")
        b(f"v_lshlrev_b32 {v(t3)}, 4, {v(t3)}")
        b(f"v_lshl_or_b32 {v(t3)}, {v(t0)}, 7, {v(t3)}")
        b(f"v_add_u32 {v(vR0)}, {s(sRB)}, {v(t3)}")
        b(f"v_xor_b32 {v(vR1)}, 32, {v(vR0)}")
        b(f"v_cmp_eq_u32 vcc, {v(t1)}, {v(t2)}")
        b(f"v_mov_b32 {v(t3)}, {2 * XT}")
        b(f"v_and_b32 {v(t4)}, 7, {v(vLN)}")
        b(f"v_cndmask_b32 {v(vXS)}, 0, {v(t3)}, vcc")
        b(f"s_lshl_b32 {s(sT0)}, {s(sQ)}, 7")
        b(f"v_mul_u32_u24 {v(t3)}, {MROW}, {v(t4)}")
        b(f"v_lshl_add_u32 {v(t3)}, {v(t2)}, 3, {v(t3)}")
        b(f"s_add_u32 {s(sT1)}, {s(sT0)}, {LM}")
        b(f"v_add_u32 {v(vMA)}, {s(sT1)}, {v(t3)}")
        b(f"s_add_u32 {s(sT1)}, {s(sT0)}, {LWX}")
        b(f"v_lshl_add_u32 {v(vWXA)}, {v(t2)}, 4, {s(sT1)}")
        b(f"v_mov_b32 {v(X2 + 6)}, 0")
        b(f"v_mov_b32 {v(X2 + 7)}, 0")
        b(f"v_and_b32 {v(t0)}, 1, {v(vLN)}")
        b(f"v_lshlrev_b32 {v(t0)}, 4, {v(t0)}")
        b(f"v_mov_b32 {v(t1)}, 0x3f80")
        b(f"v_lshlrev_b32 {v(t0)}, {v(t0)}, {v(t1)}")
        b(f"v_bfe_u32 {v(t1)}, {v(vLN)}, 1, 4")
        b(f"v_lshlrev_b32 {v(t2)}, 2, {v(t2)}")
        b(f"v_sub_u32 {v(t1)}, {v(t1)}, {v(t2)}")
        for p in range(4):
            b(f"v_cmp_eq_u32 vcc, {p}, {v(t1)}")
            b(f"v_cmp_eq_u32 {s(sT2, 2)}, {8 + p}, {v(t1)}")
            b(f"v_mov_b32 {v(QUA + p)}, 0x3e803e80")
            b(f"v_cndmask_b32 {v(ID + p)}, 0, {v(t0)}, vcc")
            b(f"v_cndmask_b32 {v(ID + 4 + p)}, 0, {v(t0)}, {s(sT2, 2)}")

    def wde_consts(b):
        b(f"s_mov_b32 {s(sC0)}, {LOG2E}")
        b(f"s_mov_b32 {s(sC0 + 1)}, {LOG2E}")
        for i, w in enumerate((tWD, tWE)):
            b(f"v_lshlrev_b32 {v(t0)}, 16, {v(w)}")
            b(f"v_mul_f32 {v(t0)}, {s(sC0)}, {v(t0)}")
            b(f"v_cvt_pk_bf16_f32 {v(t1)}, {v(t0)}, {v(t0)}")
            b(f"v_lshlrev_b32 {v(t1)}, 16, {v(t1)}")
            b(f"v_sub_f32 {v(t1)}, {v(t0)}, {v(t1)}")
            b(f"v_cvt_pk_bf16_f32 {v(Y2K + i)}, {v(t0)}, {v(t1)}")
        b(f"v_mov_b32 {v(Y2K + 2)}, 0")
        b(f"v_mov_b32 {v(Y2K + 3)}, 0")

    def dense_addr(b):
        b(f"v_lshrrev_b32 {v(t0)}, 3, {v(vTID)}")
        b(f"v_lshlrev_b32 {v(tAS)}, 9, {v(t0)}")
        b(f"v_and_b32 {v(t1)}, 1, {v(vTID)}")
        b(f"v_lshl_or_b32 {v(tAS)}, {v(t1)}, 3, {v(tAS)}")
        b(f"v_and_b32 {v(t2)}, 6, {v(vTID)}")
        b(f"v_or_b32 {v(tAS)}, {v(tAS)}, {v(t2)}")
        b(f"v_lshrrev_b32 {v(t0)}, 4, {v(vTID)}")
        b(f"v_mul_u32_u24 {v(t0)}, {XT}, {v(t0)}")
        b(f"v_bfe_u32 {v(t3)}, {v(vTID)}, 1, 3")
        b(f"v_lshl_or_b32 {v(t3)}, {v(t1)}, 3, {v(t3)}")
        b(f"v_add_u32 {v(t0)}, {LX}, {v(t0)}")
        b(f"v_lshl_add_u32 {v(tAX)}, {v(t3)}, 4, {v(t0)}")
        b(f"v_lshl_add_u32 {v(tAX + 1)}, {v(t3)}, 3, {v(t0)}")

    a.label("edge_kernel")
    a("s_cmp_ge_u32 s2, 256")
    a("s_cbranch_scc1 K2_END")
    a("s_and_b32 s3, s2, 7")
    a("s_lshl_b32 s3, s3, 5")
    a("s_lshr_b32 s2, s2, 3")
    a("s_add_u32 s2, s2, s3")
    a(f"s_cmp_ge_u32 s2, {NB}")
    a("s_cbranch_scc1 K2_END")
    a.stamp(True)
    a.stamp()
    a("s_load_dwordx2 s[22:23], s[0:1], 80")
    a("s_load_dwordx16 s[4:19], s[0:1], 0")
    a("s_load_dwordx2 s[20:21], s[0:1], 64")
    a(f"v_lshrrev_b32 {v(t0)}, 6, v0")
    a(f"v_and_b32 {v(vLN)}, 63, v0")
    a(f"v_readfirstlane_b32 {s(sWV)}, {v(t0)}")
    a(f"v_mov_b32 {v(vTID)}, v0")
    a(f"s_mul_i32 {s(sTL)}, s2, {DESC_ROW}")
    a(f"s_add_u32 {s(sTL)}, {s(sTL)}, {DESC_OFF}")
    a(f"s_mov_b32 {s(S_DESC + 2)}, {DESC_ROW}")
    a(f"s_mov_b32 {s(S_DESC + 3)}, 0x20000")
    lane_setup()
    a(f"v_lshrrev_b32 {v(t3)}, 5, {v(vLN)}")
    a(f"v_xor_b32 {v(t1)}, {v(t0)}, {v(t3)}")
    a(f"s_lshl_b32 {s(sT2)}, {s(sWV)}, 1")
    a(f"v_xor_b32 {v(t1)}, {s(sT2)}, {v(t1)}")
    a(f"v_lshlrev_b32 {v(t1)}, 4, {v(t1)}")
    a(f"v_lshl_or_b32 {v(t1)}, {v(t3)}, 9, {v(t1)}")
    lane_setup2()
    w1_pages()
    a(f"s_and_b32 {s(sQ)}, {s(sWV)}, 3")
    a(f"s_lshr_b32 {s(sST)}, {s(sWV)}, 2")
    a(f"s_lshl_b32 {s(sW1)}, {s(sWV)}, 14")
    a(f"s_mov_b32 {s(sFIRST)}, 1")
    a(f"s_mov_b32 {s(sSLOW)}, 0")
    a(f"s_lshl_b32 {s(sRB)}, {s(sWV)}, 12")
    a(f"s_add_u32 {s(sRB)}, {s(sRB)}, {LR}")
    a(f"v_mov_b32 {v(tH)}, {v(t1)}")
    a(f"v_mov_b32 {v(tH + 1)}, {v(t2)}")
    for i in range(4):
        a(f"v_mov_b32 {v(ZER + i)}, 0")
    b = Asm()
    tail = lds_init(b, True)
    writes = [ln for ln in b.lines if ln.startswith("ds_")]
    NE = int(os.environ.get("NE", "0"))
    emit(a, [ln for ln in b.lines if not ln.startswith("ds_")] + tail)
    a(f"v_mov_b32 {v(tH + 2)}, {v(t4)}")
    writes = [ln.replace(f"ds_write_b128 {v(t4)},", f"ds_write_b128 {v(tH + 2)},") for ln in writes]
    early = capture(once_consts) + capture(dense_addr)
    emit(a, place(early, [(2 * i, w) for i, w in enumerate(writes[:NE])]))
    a("s_waitcnt lgkmcnt(0)")
    a.stamp()
    a(f"s_add_u32 {s(S_DESC)}, s22, {s(sTL)}")
    a(f"s_addc_u32 {s(S_DESC + 1)}, s23, 0")
    a(f"s_and_b32 {s(S_DESC + 1)}, {s(S_DESC + 1)}, 0xffff")
    a(f"buffer_load_dwordx2 {v(tDL, 2)}, {v(tH + 1)}, {s(S_DESC, 4)}, 0 offen")
    srd(a, S_H, 4, H_SIZE)
    a(f"s_mul_i32 {s(sT0)}, s2, {40 * 512}")
    a(f"s_lshl_b32 {s(sT1)}, {s(sWV)}, 10")
    a(f"s_add_u32 {s(sT0)}, {s(sT0)}, {s(sT1)}")
    for j in range(3):
        if j == 2:
            a(f"s_cmp_ge_u32 {s(sWV)}, 4")
            a("s_cbranch_scc1 K2_NOH")
        a(f"s_add_u32 m0, {s(sT1)}, {LH + 8192 * j}")
        a("s_nop 0")
        a(f"buffer_load_dwordx4 {v(tH)}, {s(S_H, 4)}, {s(sT0)} offen lds")
        a(f"s_add_u32 {s(sT0)}, {s(sT0)}, 8192")
    a.label("K2_NOH")
    srd_off(a, S_FR, 22, FR_OFF, 3 * FR_ONE)

    def small_loads(b):
        colmap_v(b, t0, vLN, t1)
        srd(b, S_TMP, 14, WE_SIZE)
        b(f"s_lshl_b32 {s(sT0)}, {s(sQ)}, 7")
        b(f"s_add_u32 {s(sT0)}, {s(sT0)}, {512 * 512}")
        b(f"v_lshlrev_b32 {v(t0)}, 1, {v(t0)}")
        b(f"buffer_load_ushort {v(tWD)}, {v(t0)}, {s(S_TMP, 4)}, {s(sT0)} offen")
        b(f"buffer_load_ushort {v(tWE)}, {v(t0)}, {s(S_TMP, 4)}, {s(sT0)} offen offset:512")
        b(f"v_and_b32 {v(t0)}, 0xe7, {v(vTID)}")
        b(f"v_bfe_u32 {v(t1)}, {v(vTID)}, 3, 1")
        b(f"v_lshl_or_b32 {v(t0)}, {v(t1)}, 4, {v(t0)}")
        b(f"v_bfe_u32 {v(t1)}, {v(vTID)}, 4, 1")
        b(f"v_lshl_or_b32 {v(t0)}, {v(t1)}, 3, {v(t0)}")
        b(f"v_lshlrev_b32 {v(t0)}, 1, {v(t0)}")
        srd(b, S_TMP, 16, 512)
        b(f"buffer_load_ushort {v(tWX)}, {v(t0)}, {s(S_TMP, 4)}, 0 offen")
        srd(b, S_POS, 6, POS_SIZE)
        b(f"s_mul_i32 {s(sT0)}, s2, 240")
        b(f"v_lshlrev_b32 {v(t0)}, 2, {v(vLN)}")
        b(f"buffer_load_dword {v(tPP)}, {v(t0)}, {s(S_POS, 4)}, {s(sT0)} offen")
        srd_off(b, S_REC, 22, REC_OFF, REC_SIZE)
        srd_off(b, S_BP, 22, BP_OFF - 3072, BP_SIZE + 3072)
        srd(b, S_OUT, 20, OUT_SIZE)
        b(f"s_mul_i32 {s(sT0)}, s2, {SLOW_ROW}")
        b(f"s_add_u32 {s(sT0)}, {s(sT0)}, {SLOW_OFF}")
        b(f"s_add_u32 {s(S_TMP)}, s22, {s(sT0)}")
        b(f"s_addc_u32 {s(S_TMP + 1)}, s23, 0")
        b(f"s_and_b32 {s(S_TMP + 1)}, {s(S_TMP + 1)}, 0xffff")
        b(f"s_mov_b32 {s(S_TMP + 2)}, {SLOW_ROW}")
        b(f"s_mov_b32 {s(S_TMP + 3)}, 0x20000")
        b(f"s_mov_b32 {s(sK3)}, 3072")
        b(f"s_mov_b32 {s(sK2)}, 2048")
        b(f"s_mov_b32 {s(sK1)}, 1024")
        b(f"v_bfe_u32 {v(t3)}, {v(vLN)}, 4, 2")
        b(f"v_and_b32 {v(t2)}, 7, {v(vLN)}")
        b(f"v_xor_b32 {v(t3)}, {v(t3)}, {v(t2)}")
        b(f"s_lshl_b32 {s(sT0)}, {s(sQ)}, 7")
        b(f"v_lshl_add_u32 {v(vG)}, {v(t3)}, 4, {s(sT0)}")
        b(f"v_and_b32 {v(t0)}, 15, {v(vLN)}")
        b(f"v_lshrrev_b32 {v(t1)}, 4, {v(vLN)}")
        b(f"v_xor_b32 {v(t1)}, {v(t1)}, {v(t0)}")
        b(f"v_lshlrev_b32 {v(t1)}, 4, {v(t1)}")
        b(f"v_lshl_or_b32 {v(t1)}, {v(t0)}, 9, {v(t1)}")
        b(f"v_add_u32 {v(vHB)}, {LH}, {v(t1)}")
        for k in range(1, 4):
            b(f"v_xor_b32 {v(vHB + k)}, {64 * k}, {v(vHB)}")

    NW1, NW2a, NW2b, NW3 = [int(x) for x in os.environ.get("NW", "6,2,2,6").split(",")]
    NW2 = NW2a + NW2b
    NW4 = 16 - NW1 - NW2 - NW3
    win1 = spread(capture(small_loads), W1L[:NW1])
    emit(a, spread(win1, writes[NE:]) if NE < 8 else win1)
    a(f"s_waitcnt vmcnt({2 + 4 + NW1})")
    a.stamp()

    a.label("K2_BATCH")
    a(f"v_and_b32 {v(tO0)}, 1023, {v(tDL)}")
    a(f"v_lshrrev_b32 {v(tT)}, 20, {v(tDH)}")
    a(f"v_sub_u32 {v(tT)}, {v(tT)}, {v(tO0)}")
    a(f"v_add3_u32 {v(tO0)}, {v(tRA)}, {v(tO0)}, {v(tP2)}")
    a(f"v_sub_u32 {v(tN)}, {v(tT)}, {v(tP2)}")
    a(f"v_lshlrev_b32 {v(tO0)}, 3, {v(tO0)}")
    a(f"v_cmp_lt_i32 vcc, 0, {v(tN)}")
    a(f"v_cmp_lt_i32 {s(sT2, 2)}, 4, {v(tN)}")
    a(f"v_mov_b32 {v(t2)}, {MARK}")
    a(f"v_cndmask_b32 {v(t1)}, {v(t2)}, {v(tO0)}, vcc")
    a(f"v_cndmask_b32 {v(t2)}, {v(t2)}, {v(tO0)}, {s(sT2, 2)}")
    a(f"buffer_load_dwordx4 {v(tR, 4)}, {v(t1)}, {s(S_REC, 4)}, 0 offen")
    a(f"buffer_load_dwordx4 {v(tR + 4, 4)}, {v(t2)}, {s(S_REC, 4)}, 0 offen offset:32")
    main, a = a, Asm()
    a(f"v_lshrrev_b32 {v(t0)}, 10, {v(tDL)}")
    a(f"v_lshl_or_b32 {v(t0)}, {v(tDH)}, 20, {v(t0)}")
    a(f"v_and_b32 {v(t0)}, 0x3fffffff, {v(t0)}")
    a(f"v_sub_u32 {v(t0)}, {v(t0)}, {v(tDL)}")
    a(f"v_lshrrev_b32 {v(t1)}, 10, {v(tDH)}")
    a(f"v_and_b32 {v(t2)}, 0xfffff, {v(tDH)}")
    a(f"v_mov_b32 {v(tA)}, {v(t0)}")
    a(f"v_sub_u32 {v(t1)}, {v(t1)}, {v(t2)}")
    a(f"v_mov_b32 {v(tB)}, {v(t1)}")
    order = [tT, tA, tB]
    for sh in ("row_shr:1", "row_shr:2", "row_shr:4", "row_shr:8"):
        for r in order:
            a(f"v_add_u32_dpp {v(r)}, {v(r)}, {v(r)} {sh} row_mask:0xf bank_mask:0xf bound_ctrl:0")
    for r in order:
        a(f"v_add_u32_dpp {v(r)}, {v(r)}, {v(r)} row_bcast:15 row_mask:0xa bank_mask:0xf")
    a(f"s_lshl_b32 {s(sT0)}, {s(sWV)}, 2")
    a(f"s_add_u32 {s(sT0)}, {s(sT0)}, {LTOT}")
    a(f"v_mov_b32 {v(t3)}, {s(sT0)}")
    emit(main, spread(a.lines, W1L[NW1:NW1 + NW2a]) if NW2a else a.lines)
    a = main
    a("s_mov_b32 exec_lo, 0x80000000")
    a("s_mov_b32 exec_hi, 0")
    for i in range(3):
        a(f"ds_write_b32 {v(t3)}, {v(tA + i)} offset:{32 * i}")
    a("s_mov_b64 exec, -1")
    a(f"v_sub_u32 {v(tA)}, {v(tA)}, {v(t0)}")
    a(f"v_sub_u32 {v(tB)}, {v(tB)}, {v(t1)}")
    a(f"v_and_b32 {v(t3)}, 7, {v(vLN)}")
    a(f"v_lshlrev_b32 {v(t3)}, 2, {v(t3)}")
    a(f"v_add_u32 {v(t3)}, {LTOT}, {v(t3)}")
    a("s_waitcnt lgkmcnt(0)")
    a("s_barrier")
    a.stamp()
    for i in range(3):
        a(f"ds_read_b32 {v(t0 + i)}, {v(t3)} offset:{32 * i}")
    emit(a, W1L[NW1 + NW2a:NW1 + NW2])
    a(f"s_mov_b32 {s(sTB)}, 0")
    a("s_waitcnt lgkmcnt(0)")
    for i in range(3):
        a(f"v_mov_b32 {v(t3 + i)}, {v(t0 + i)}")
    for sh in ("row_shr:1", "row_shr:2", "row_shr:4"):
        for i in range(3):
            a(f"v_add_u32_dpp {v(t0 + i)}, {v(t0 + i)}, {v(t0 + i)} {sh} row_mask:0xf bank_mask:0xf bound_ctrl:0")
    for i in range(3):
        a(f"v_sub_u32 {v(t3 + i)}, {v(t0 + i)}, {v(t3 + i)}")
    a(f"v_readlane_b32 {s(sT0)}, {v(t0)}, 7")
    a(f"v_readlane_b32 {s(sT1)}, {v(t1)}, 7")
    a(f"v_readlane_b32 {s(sBT)}, {v(t2)}, 7")
    a(f"v_readlane_b32 {s(sT2)}, {v(t3)}, {s(sWV)}")
    a(f"v_readlane_b32 {s(sT3)}, {v(t4)}, {s(sWV)}")
    a(f"v_readlane_b32 {s(sTL)}, {v(t5)}, {s(sWV)}")
    a(f"s_add_u32 {s(sT0)}, {s(sT0)}, {15 | 15 << 10 | 15 << 20}")
    a(f"s_add_u32 {s(sT1)}, {s(sT1)}, {15 | 15 << 10}")
    for g in range(5):
        src = sT0 if g < 3 else sT1
        a(f"s_bfe_u32 {s(sPS)}, {s(src)}, {hex((6 << 16) | (10 * (g % 3) + 4))}")
        a(f"s_add_u32 {s(sTB + g + 1)}, {s(sTB + g)}, {s(sPS)}")
    a(f"s_cmp_gt_u32 {s(sBT)}, {CAP}")
    a(f"s_cselect_b32 {s(sT0)}, 255, {s(sTB + 5)}")
    a(f"s_cmp_gt_u32 {s(sT0)}, {NTMAX}")
    a("s_cbranch_scc1 K2_OVER")
    a.label("K2_FITS")
    a(f"s_lshl_b32 {s(sT0)}, {s(sTB + 1)}, 14")
    a(f"s_lshl_b32 {s(sT1)}, {s(sTB + 2)}, 24")
    a(f"s_add_u32 {s(sT2)}, {s(sT2)}, {s(sT0)}")
    a(f"s_add_u32 {s(sT2)}, {s(sT2)}, {s(sT1)}")
    a(f"s_lshl_b32 {s(sT0)}, {s(sTB + 3)}, 4")
    a(f"s_lshl_b32 {s(sT1)}, {s(sTB + 4)}, 14")
    a(f"s_add_u32 {s(sT3)}, {s(sT3)}, {s(sT0)}")
    a(f"s_add_u32 {s(sT3)}, {s(sT3)}, {s(sT1)}")
    a(f"v_add_u32 {v(tA)}, {s(sT2)}, {v(tA)}")
    a(f"v_add_u32 {v(tB)}, {s(sT3)}, {v(tB)}")
    a(f"v_lshl_or_b32 {v(tV)}, {v(tB)}, 30, {v(tA)}")
    a(f"v_lshrrev_b32 {v(tV + 1)}, 2, {v(tB)}")
    a(f"s_add_u32 {s(sT0)}, {s(sTB + 5)}, 1")
    a(f"s_lshr_b32 {s(sT0)}, {s(sT0)}, 1")
    a(f"s_mul_i32 {s(sPS)}, {s(sT0)}, {SPLIT_NUM}")
    a(f"s_add_u32 {s(sPS)}, {s(sPS)}, 32")
    a(f"s_lshr_b32 {s(sPS)}, {s(sPS)}, 6")
    a(f"s_cmp_lg_u32 {s(sSLOW)}, 0")
    a(f"s_cselect_b32 {s(sPS)}, {s(sT0)}, {s(sPS)}")
    a(f"s_cmp_eq_u32 {s(sST)}, 0")
    a(f"s_cselect_b32 {s(sREM)}, 0, {s(sPS)}")
    a(f"s_cselect_b32 {s(sPEND)}, {s(sPS)}, {s(sT0)}")
    a(f"s_lshl_b32 {s(sT0)}, {s(sREM)}, 7")
    a(f"s_add_u32 {s(sT0)}, {s(sT0)}, {LL}")
    a(f"v_lshrrev_b32 {v(t0)}, 3, {v(vLN)}")
    a(f"v_lshl_add_u32 {v(vL)}, {v(t0)}, 3, {s(sT0)}")
    a(f"v_lshlrev_b32 {v(tI)}, 2, {v(vTID)}")
    a(f"v_add_u32 {v(tI)}, {LL}, {v(tI)}")
    a(f"s_mov_b32 m0, {s(sRB)}")

    def batch_consts(b):
        b(f"s_mov_b32 {s(sGA)}, -1")
        b(f"s_mov_b32 {s(sIT)}, 0")
        b(f"s_mov_b64 {s(sMASK, 2)}, 0")
        for g in range(1, 5):
            b(f"s_bitset1_b64 {s(sMASK, 2)}, {s(sTB + g)}")
        b(f"s_lshl_b32 {s(sTL)}, {s(sREM)}, 1")
        b(f"s_lshr_b64 {s(sMASK, 2)}, {s(sMASK, 2)}, {s(sTL)}")
        b(f"s_or_b32 {s(sMASK)}, {s(sMASK)}, 1")
        b(f"s_lshl_b64 {s(sMASK, 2)}, {s(sMASK, 2)}, 1")
        b(f"s_mul_i32 {s(sINIT)}, {s(sST)}, 5")
        for g in range(1, 5):
            b(f"s_cmp_eq_u32 {s(sTB + g)}, {s(sST)}")
            b(f"s_cselect_b32 {s(sT0)}, {g}, 0")
            b(f"s_max_u32 {s(sINIT)}, {s(sINIT)}, {s(sT0)}")
        b(f"s_lshl_b32 {s(sT0)}, {s(sREM)}, 11")
        b(f"v_add_u32 {v(vS)}, {s(sT0)}, {v(tF)}")
        b(f"s_mul_i32 {s(sT0)}, {s(sREM)}, {2 * XT}")
        b(f"s_add_u32 {s(sT0)}, {s(sT0)}, {LX}")
        b(f"s_add_u32 {s(sT1)}, {s(sT0)}, 256")
        b(f"v_and_b32 {v(t0)}, 15, {v(vLN)}")
        b(f"v_cmp_eq_u32 vcc, 0, {v(vXS)}")
        b(f"v_lshl_add_u32 {v(t4)}, {v(t0)}, 4, {s(sT0)}")
        b(f"v_lshl_add_u32 {v(t5)}, {v(t0)}, 3, {s(sT1)}")
        b(f"v_mov_b32 {v(t1)}, {LZ}")
        b(f"v_cndmask_b32 {v(vX1)}, {v(t4)}, {v(t1)}, vcc")
        b(f"v_cndmask_b32 {v(vX2)}, {v(t5)}, {v(t1)}, vcc")
        b(f"s_sub_u32 {s(sREM)}, {s(sPEND)}, {s(sREM)}")
        b(f"s_sub_u32 {s(sREM)}, {s(sREM)}, 1")
        b(f"s_lshl_b32 {s(sTL)}, {s(sPS)}, 1")
        b(f"s_mov_b32 {s(sWRT)}, 0")
        for g in range(5):
            b(f"s_cmp_lg_u32 {s(sTB + g)}, {s(sTB + g + 1)}")
            b(f"s_cselect_b32 {s(sT0)}, {1 << g}, 0")
            b(f"s_cmp_lg_u32 {s(sTB + g)}, {s(sTL)}")
            b(f"s_cselect_b32 {s(sT0)}, {s(sT0)}, 0")
            b(f"s_or_b32 {s(sWRT)}, {s(sWRT)}, {s(sT0)}")
        b(f"s_cmp_lt_u32 {s(sTL)}, {s(sTB + 5)}")
        b(f"s_cselect_b32 {s(sT0)}, 32, 0")
        b(f"s_or_b32 {s(sWRT)}, {s(sWRT)}, {s(sT0)}")
        b(f"s_cmp_lg_u32 {s(sSLOW)}, 0")
        b(f"s_cselect_b32 {s(sWRT)}, 31, {s(sWRT)}")
        group_of(b, sGX, sTL)

    def scatter(r, slot):
        a(f"v_bfe_u32 {v(t0)}, {v(r + 1)}, 19, 3")
        a(f"v_cmp_lt_i32 vcc, {slot}, {v(tN)}")
        a(f"v_mul_u32_u24 {v(t0)}, 10, {v(t0)}")
        a(f"v_lshrrev_b32 {v(t1)}, 22, {v(r + 1)}")
        a(f"v_lshrrev_b64 {v(t2, 2)}, {v(t0)}, {v(tV, 2)}")
        a(f"v_and_b32 {v(t2)}, 1023, {v(t2)}")
        a(f"v_add_lshl_u32 {v(t2)}, {v(t2)}, {v(t1)}, 2")
        a(f"v_add_u32 {v(t2)}, {LL}, {v(t2)}")
        a("s_mov_b64 exec, vcc")
        a(f"ds_write_b32 {v(t2)}, {v(r)}")
        a(f"ds_write_b32 {v(t2)}, {v(r + 1)} offset:{LE - LL}")
        a("s_mov_b64 exec, -1")

    a(f"s_waitcnt vmcnt({NW2})")
    a.stamp()
    rest = W1L[NW1 + NW2:]
    for i, slot in enumerate((0, 1, 4, 5)):
        scatter(tR + 2 * i, slot)
        emit(a, rest[(i * NW3) // 4:((i + 1) * NW3) // 4])
    a(f"v_cmp_lt_i32 vcc, 8, {v(tN)}")
    a(f"s_cmp_eq_u32 {s(sFIRST)}, 0")
    a("s_cbranch_scc1 K2_NOTAB")
    a(f"v_and_b32 {v(t0)}, 255, {v(vTID)}")
    a(f"v_lshlrev_b32 {v(t0)}, 1, {v(t0)}")
    a(f"v_add_u32 {v(t0)}, {LWX}, {v(t0)}")
    a(f"ds_write_b16 {v(t0)}, {v(tWX)}")
    a(f"v_lshlrev_b32 {v(t0)}, 2, {v(vLN)}")
    a(f"v_add_u32 {v(t0)}, {LPD}, {v(t0)}")
    a(f"ds_write_b32 {v(t0)}, {v(tPP)}")
    a.label("K2_NOTAB")
    a("s_cbranch_vccnz K2_MORE")
    a.label("K2_NOMORE")
    main, a = a, Asm()
    a.label("K2_MORE")
    a(f"v_add_u32 {v(tO0)}, 32, {v(tO0)}")
    a(f"v_subrev_u32 {v(tN)}, 4, {v(tN)}")
    a(f"buffer_load_dwordx4 {v(tR, 4)}, {v(tO0)}, {s(S_REC, 4)}, 0 offen offset:32")
    a("s_waitcnt vmcnt(0)")
    scatter(tR, 4)
    scatter(tR + 2, 5)
    a(f"v_cmp_lt_i32 vcc, 8, {v(tN)}")
    a("s_nop 4")
    a("s_cbranch_vccnz K2_MORE")
    a("s_branch K2_NOMORE")
    far += a.lines
    a = main
    a("s_waitcnt lgkmcnt(0)")
    a("s_barrier")
    a.stamp()

    a(f"ds_read2st64_b32 {v(tW, 2)}, {v(tI)} offset1:8")
    a(list_read(0))
    a(f"v_add_u32 {v(tI)}, {LE - LL}, {v(tI)}")
    a(f"ds_read2st64_b32 {v(tM, 2)}, {v(tI)} offset1:8")
    a(f"v_cmp_gt_u32 vcc, {CAP - 512}, {v(vTID)}")
    a(f"v_mov_b32 {v(t0)}, {MARK}")
    a("s_waitcnt lgkmcnt(2)")
    a(f"v_cndmask_b32 {v(tW + 1)}, {v(t0)}, {v(tW + 1)}, vcc")
    for r in range(2):
        a(f"v_lshrrev_b32 {v(tPS + 2 * r)}, 9, {v(tW + r)}")
        a(f"v_mul_u32_u24 {v(tPS + 2 * r)}, 6, {v(tPS + 2 * r)}")
        a(f"v_and_b32 {v(tPS + 2 * r)}, -4, {v(tPS + 2 * r)}")
    POSL = [f"buffer_load_dwordx2 {v(tPS + 2 * r, 2)}, {v(tPS + 2 * r)}, {s(S_POS, 4)}, 0 offen" for r in range(2)]
    a(POSL[0])
    a("s_waitcnt lgkmcnt(0)")
    emit(a, LST_ADD)
    for r in range(2):
        a(f"v_bfe_u32 {v(t1)}, {v(tM + r)}, 16, 6")
        a(f"v_mul_u32_u24 {v(t1)}, 6, {v(t1)}")
        a(f"v_and_b32 {v(t1)}, -4, {v(t1)}")
        a(f"v_add_u32 {v(t1)}, {LPD}, {v(t1)}")
        a(f"ds_read2_b32 {v(tPD + 2 * r, 2)}, {v(t1)} offset1:1")
    LATE = [POSL[1]] + dma(0) + dma(1)

    def dense(b, r):
        ps, pd, w, m = tPS + 2 * r, tPD + 2 * r, tW + r, tM + r
        b(f"v_mov_b32 {v(t5)}, 0x3f80")
        b(f"s_mov_b32 {s(sT1)}, 0xffff0000")
        b(f"s_mov_b32 {s(sT2)}, 0x01000100")
        b(f"v_bfe_u32 {v(t0)}, {v(w)}, 9, 1")
        b(f"v_bfe_u32 {v(t1)}, {v(m)}, 16, 1")
        b(f"v_lshlrev_b32 {v(t0)}, 4, {v(t0)}")
        b(f"v_lshlrev_b32 {v(t1)}, 4, {v(t1)}")
        b(f"v_alignbit_b32 {v(ps)}, {v(ps + 1)}, {v(ps)}, {v(t0)}")
        b(f"v_lshrrev_b32 {v(ps + 1)}, {v(t0)}, {v(ps + 1)}")
        b(f"v_alignbit_b32 {v(pd)}, {v(pd + 1)}, {v(pd)}, {v(t1)}")
        b(f"v_lshrrev_b32 {v(pd + 1)}, {v(t1)}, {v(pd + 1)}")
        b(f"v_lshlrev_b32 {v(t0)}, 16, {v(pd)}")
        b(f"v_lshlrev_b32 {v(t2)}, 16, {v(ps)}")
        b(f"v_and_b32 {v(t1)}, {s(sT1)}, {v(pd)}")
        b(f"v_and_b32 {v(t3)}, {s(sT1)}, {v(ps)}")
        b(f"v_sub_f32 {v(t0)}, {v(t0)}, {v(t2)}")
        b(f"v_sub_f32 {v(t1)}, {v(t1)}, {v(t3)}")
        b(f"v_lshlrev_b32 {v(t2)}, 16, {v(pd + 1)}")
        b(f"v_lshlrev_b32 {v(t3)}, 16, {v(ps + 1)}")
        b(f"v_sub_f32 {v(t2)}, {v(t2)}, {v(t3)}")
        b(f"v_cvt_pk_bf16_f32 {v(ps)}, {v(t0)}, {v(t1)}")
        b(f"v_cvt_pk_bf16_f32 {v(ps + 1)}, {v(t2)}, {v(t2)}")
        b(f"v_lshlrev_b32 {v(t0)}, 16, {v(ps)}")
        b(f"v_and_b32 {v(t1)}, {s(sT1)}, {v(ps)}")
        b(f"v_and_b32 {v(t2)}, {s(sT1)}, {v(ps + 1)}")
        for k in range(3):
            b(f"v_mul_f32 {v(t0 + k)}, {v(t0 + k)}, {v(t0 + k)}")
        b(f"v_cvt_pk_bf16_f32 {v(t0)}, {v(t0)}, {v(t1)}")
        b(f"v_cvt_pk_bf16_f32 {v(t2)}, {v(t2)}, {v(t2)}")
        b(f"v_and_b32 {v(t1)}, {s(sT1)}, {v(t0)}")
        b(f"v_lshlrev_b32 {v(t0)}, 16, {v(t0)}")
        b(f"v_and_b32 {v(t2)}, {s(sT1)}, {v(t2)}")
        b(f"v_add_f32 {v(t0)}, {v(t0)}, {v(t1)}")
        b(f"v_add_f32 {v(t0)}, {v(t0)}, {v(t2)}")
        b(f"v_cmp_gt_u32 vcc, {MARK}, {v(w)}")
        b(f"v_cvt_pk_bf16_f32 {v(pd)}, {v(t0)}, {v(t0)}")
        b(f"v_perm_b32 {v(pd + 1)}, {v(m)}, {v(m)}, {s(sT2)}")
        b(f"v_bfe_u32 {v(t1)}, {v(m)}, 16, 3")
        b(f"v_lshl_add_u32 {v(t0)}, {v(t1)}, 4, {v(tAS)}")
        b(f"v_lshl_add_u32 {v(t1)}, {v(t1)}, 1, {v(tAX)}")
        return ["s_mov_b64 exec, vcc",
                f"ds_write_b16 {v(t0)}, {v(t5)} offset:{32768 * r}",
                f"ds_write_b16 {v(t0)}, {v(ps)} offset:{32768 * r + 128}",
                f"ds_write_b16_d16_hi {v(t0)}, {v(ps)} offset:{32768 * r + 256}",
                f"ds_write_b16 {v(t0)}, {v(ps + 1)} offset:{32768 * r + 384}",
                f"ds_write_b16 {v(t1)}, {v(t5)} offset:{32 * XT * r}",
                f"ds_write_b64 {v(tAX + 1)}, {v(pd, 2)} offset:{256 + 32 * XT * r}",
                "s_mov_b64 exec, -1"]

    def dense_second():
        n = fresh()
        a(f"s_lshl_b32 {s(sT0)}, {s(sWV)}, 2")
        a(f"s_add_u32 {s(sT0)}, {s(sT0)}, 32")
        a(f"s_cmp_ge_u32 {s(sT0)}, {s(sTB + 5)}")
        a(f"s_cbranch_scc1 K2_ND{n}")
        emit(a, dense(a, 1))
        a.label(f"K2_ND{n}")

    a(f"s_cmp_eq_u32 {s(sFIRST)}, 0")
    a("s_cbranch_scc1 K2_NOA")

    def hreads(hf, kk):
        return [f"ds_read_b128 {v(hf + 12 * (kk & 1) + 4 * nt, 4)}, {v(vHB + (kk & 3))} offset:{8192 * nt + 256 * (kk >> 2)}" for nt in range(3)]

    def a_steps(kks, fill, late=()):
        per = (len(fill) + len(kks) - 1) // len(kks)
        late = list(late)
        for i, kk in enumerate(kks):
            a("s_waitcnt vmcnt(1) lgkmcnt(0)" if kk == 0 else "s_waitcnt lgkmcnt(0)")
            if kk < 7:
                emit(a, hreads(HF, kk + 1))
            mf = []
            for nt in range(3):
                for ct in range(2):
                    d = AG + 8 * nt + 4 * ct
                    mf.append(mf16(d, HF + 12 * (kk & 1) + 4 * nt, 8 * kk + 4 * ct, "0" if kk == 0 else d))
            mine = fill[i * per:(i + 1) * per]
            emit(a, place(mine, [((j * len(mine)) // 6, mf[j]) for j in range(6)]))
            for _ in range(LPS[i] if late else 0):
                a(late.pop(0))
        assert not late

    assert NW4 == 0
    LPS = [int(x) for x in os.environ.get("LPS", "1,0,2,2").split(",")]
    DK = len(LPS)
    emit(a, hreads(HF, 0))
    a_steps(list(range(DK)), capture(wde_consts) + capture(batch_consts), LATE)
    a.stamp()
    a("s_waitcnt vmcnt(4)")
    a.stamp()
    b = Asm()
    tail = dense(b, 0)
    a_steps(list(range(DK, 8)), b.lines)
    emit(a, tail)
    dense_second()
    a.stamp()
    a(f"s_lshl_b32 {s(sT0)}, {s(sWV)}, 9")
    a(f"s_add_u32 {s(sT0)}, {s(sT0)}, {LM}")
    a(f"v_and_b32 {v(t0)}, 15, {v(vLN)}")
    a(f"v_lshlrev_b32 {v(t0)}, 4, {v(t0)}")
    a(f"v_bfe_u32 {v(t1)}, {v(vLN)}, 4, 1")
    a(f"v_lshl_or_b32 {v(t0)}, {v(t1)}, 3, {v(t0)}")
    a(f"v_lshrrev_b32 {v(t1)}, 5, {v(vLN)}")
    a(f"v_lshl_or_b32 {v(t0)}, {v(t1)}, 12, {v(t0)}")
    a(f"v_add_u32 {v(t0)}, {s(sT0)}, {v(t0)}")
    for nt in range(3):
        for p in range(4):
            a(f"v_pk_mul_f32 {v(AG + 8 * nt + 2 * p, 2)}, {v(AG + 8 * nt + 2 * p, 2)}, {s(sC0, 2)}")
        for p in range(4):
            a(f"v_cvt_pk_bf16_f32 {v(HF + 4 * nt + p)}, {v(AG + 8 * nt + 2 * p)}, {v(AG + 8 * nt + 2 * p + 1)}")
        for ct in range(2):
            a(f"ds_write_b64 {v(t0)}, {v(HF + 4 * nt + 2 * ct, 2)} offset:{8192 * nt + 256 * ct}")
    a(f"s_lshl_b32 {s(sT0)}, {s(sQ)}, 10")
    a(f"s_add_u32 {s(sT0)}, {s(sT0)}, {LM}")
    a(f"v_add_u32 {v(t0)}, {s(sT0)}, {v(tF)}")
    a("s_waitcnt vmcnt(0) lgkmcnt(0)")
    a("s_barrier")
    a.stamp()
    for g in range(5):
        a(f"ds_read_b128 {v(Y2Q + 4 * g, 4)}, {v(t0)} offset:{4096 * g}")
    a.label("K2_READY")
    emit(a, frag_reads(0))
    a(list_read(1))
    a("s_waitcnt lgkmcnt(0)")
    a("s_barrier")
    a.stamp()
    a(f"s_cmp_lt_i32 {s(sREM)}, 0")
    a("s_cbranch_scc1 K2_DONE")
    emit(a, LST_ADD + dma(0))
    chk, o = site(None, 0, None)
    far += o
    emit(a, chk + p_mfmas(YA))
    emit(a, frag_reads(1))
    a(f"v_add_u32 {v(vX1)}, {v(vXS)}, {v(vX1)}")
    a(f"v_add_u32 {v(vX2)}, {v(vXS)}, {v(vX2)}")
    a(".p2align 6")
    a.label("K2_LOOP")
    abl = os.environ.get("ABL", "")
    for ln in loop_body(far):
        if ("w" in abl and ln.startswith("s_waitcnt vmcnt")) or ("d" in abl and ln.startswith("buffer_load")) or \
           ("l" in abl and ln.startswith("ds_read")) or ("m" in abl and ln.startswith("v_mfma")) or \
           ("t" in abl and (ln.startswith("v_exp") or ln.startswith("v_rcp"))) or \
           ("i" in abl and ln.startswith("v_mfma") and (v(ID, 4) in ln or v(ID + 4, 4) in ln)) or \
           ("o" in abl and ln.startswith("v_mfma") and v(QUA, 4) in ln) or \
           ("s" in abl and ln.startswith("v_mfma") and v(SP, 4) in ln) or \
           ("y" in abl and ln.startswith("v_mfma") and (v(Y2C, 4) in ln or v(Y2K, 4) in ln)) or \
           ("f" in abl and ln.startswith("s_cbranch_scc1 K2_H")):
            continue
        a(ln)
    a("s_cbranch_scc0 K2_LOOP")
    chk, o = site(-1, None, YB)
    far += o
    a("s_setprio 0")
    a("s_waitcnt lgkmcnt(0)")
    emit(a, chk + cvts(EB) + ["s_nop 1", S1, S2, "s_nop 9"])
    far += flush(a, YB)
    a.label("K2_DONE")
    a.stamp()
    a(f"s_cmp_lg_u32 {s(sSLOW)}, 0")
    a("s_cbranch_scc1 K2_NEXT")

    a.label("K2_FINAL")
    a(f"s_cmp_ge_u32 {s(sIT)}, 4")
    a("s_cbranch_scc0 K2_WREST")
    MA, CA, HR, W1, MF, XR, G = 0, 24, 48, 64, 128, 152, 160
    eO, eM, eF, e0 = 172, 175, 178, 179

    def w_load(ct, kk):
        return f"buffer_load_dwordx4 {v(W1 + 32 * ct + 4 * kk, 4)}, {v(eF)}, {s(S_FR, 4)}, {s(S_TMP + 2 * ct + (kk >> 2))} offen offset:{1024 * (kk & 3)}"

    a(f"v_lshlrev_b32 {v(eF)}, 4, {v(vLN)}")
    a(f"s_sub_u32 {s(S_TMP)}, {s(sWB)}, {FR_ONE}")
    for i in range(1, 4):
        a(f"s_add_u32 {s(S_TMP + i)}, {s(S_TMP)}, {4096 * i}")
    a(f"v_and_b32 {v(XR)}, 15, {v(vLN)}")
    a(f"v_and_b32 {v(XR + 2)}, 48, {v(vLN)}")
    a(f"v_mul_u32_u24 {v(XR + 3)}, {MROW}, {v(XR)}")
    a(f"v_add_u32 {v(XR + 3)}, {v(XR + 3)}, {v(XR + 2)}")
    a(f"v_lshrrev_b32 {v(XR + 1)}, 3, {v(XR)}")
    a(f"v_lshrrev_b32 {v(XR + 1)}, {v(XR + 1)}, {s(sWRT)}")
    a(f"v_mov_b32 {v(XR + 4)}, {LZ}")
    for nt in range(3):
        a(f"v_and_b32 {v(XR + 5)}, {1 << (2 * nt)}, {v(XR + 1)}")
        a(f"v_cmp_ne_u32 vcc, 0, {v(XR + 5)}")
        a(f"v_add_u32 {v(XR + 6)}, {LM + 16 * MROW * nt}, {v(XR + 3)}")
        a("s_waitcnt lgkmcnt(0)" if nt == 0 else w_load(0, nt - 1))
        a(f"v_cndmask_b32 {v(eM + nt)}, {v(XR + 4)}, {v(XR + 6)}, vcc")
    a(w_load(0, 2))
    a(w_load(0, 3))
    a.stamp()
    a("s_barrier")
    a.stamp()

    def mreads(kk):
        return [f"ds_read_b128 {v(MF + 12 * (kk & 1) + 4 * nt, 4)}, {v(eM + nt)} offset:{64 * kk}" for nt in range(3)]

    def late_setup(b):
        b(f"s_lshl_b32 {s(sT0)}, {s(sWV)}, 6")
        b(f"s_and_b32 {s(sT1)}, {s(sT0)}, 192")
        b(f"s_and_b32 {s(sT2)}, {s(sT0)}, 256")
        b(f"v_xor_b32 {v(e0)}, {s(sT1)}, {v(vHB)}")
        b(f"v_add_u32 {v(e0)}, {s(sT2)}, {v(e0)}")
        for nt in range(3):
            b(f"ds_read_b128 {v(HR + 4 * nt, 4)}, {v(e0)} offset:{8192 * nt}")
        b(f"s_mul_i32 {s(sT1)}, s2, {40 * 512}")
        b(f"s_add_u32 {s(sT0)}, {s(sT0)}, {s(sT1)}")
        b(f"v_lshl_or_b32 {v(eO)}, {v(XR)}, 9, {v(XR + 2)}")
        b(f"v_add_u32 {v(eO)}, {s(sT0)}, {v(eO)}")
        b(f"v_add_u32 {v(eO + 1)}, 8192, {v(eO)}")
        b(f"v_cmp_gt_u32 vcc, 8, {v(XR)}")
        b(f"v_add_u32 {v(eO + 2)}, 16384, {v(eO)}")
        b(f"v_mov_b32 {v(XR + 3)}, {MARK}")
        b(f"v_cndmask_b32 {v(eO + 2)}, {v(XR + 3)}, {v(eO + 2)}, vcc")
        b(f"s_mov_b32 {s(sE0)}, 0x00ff00ff")
        b(f"s_bitcmp1_b32 {s(sGX)}, 0")
        b(f"s_cselect_b32 {s(sE0)}, 0xff00ff00, {s(sE0)}")
        b(f"s_mov_b32 {s(sE0 + 1)}, {s(sE0)}")
        b(f"s_mov_b32 {s(sC0)}, {LOG2E}")
        b(f"s_mov_b32 {s(sC0 + 1)}, {LOG2E}")
        b(f"s_mov_b32 {s(sE1)}, {LN2}")
        b(f"s_mov_b32 {s(sE1 + 1)}, {LN2}")
        b(f"s_mov_b32 {s(sT1)}, 0xffff0000")

    rest = [(0, 4), (0, 5), (0, 6), (0, 7)] + [(1, kk) for kk in range(8)]
    per = [2, 2, 2, 2, 1, 1, 1, 1]
    fill = capture(late_setup)
    emit(a, mreads(0))
    for kk in range(8):
        a("s_waitcnt vmcnt(4) lgkmcnt(0)" if kk == 0 else "s_waitcnt lgkmcnt(0)")
        emit(a, mreads(kk + 1) if kk < 7 else hreads(MF, 0))
        mine = fill[4 * kk:4 * kk + 4] + [w_load(*rest.pop(0)) for _ in range(per[kk])]
        mf = [mf16(MA + 8 * nt + 4 * ct, WH2 + 32 * ct + 4 * kk, MF + 12 * (kk & 1) + 4 * nt, "0" if kk == 0 else MA + 8 * nt + 4 * ct)
              for nt in range(3) for ct in range(2)]
        emit(a, place(mine, [((j * len(mine)) // 6, mf[j]) for j in range(6)]))
    assert len(fill) <= 32

    def c_step(ct, kk):
        out = [f"s_waitcnt vmcnt({(8 if kk == 0 else 63) if ct == 0 else 7 - kk}) lgkmcnt(0)".replace("vmcnt(63) ", "")]
        if kk < 7:
            out += hreads(MF, kk + 1)
        elif ct == 0:
            out += hreads(MF, 0)
        for nt in range(3):
            d = CA + 8 * nt + 4 * ct
            out.append(mf16(d, W1 + 32 * ct + 4 * kk, MF + 12 * (kk & 1) + 4 * nt, "0" if kk == 0 else d))
        return out

    emit(a, c_step(0, 0) + c_step(0, 1))
    a(f"s_bitcmp1_b32 {s(sGX)}, 0")
    a("s_cbranch_scc1 K2_XODD")
    for i in range(8):
        a(f"v_mov_b32_dpp {v(XR + i)}, {v(MA + 16 + i)} row_ror:8 row_mask:0xf bank_mask:0xf")
    a.label("K2_XDONE")
    emit(a, c_step(0, 2))
    a(f"s_lshr_b32 {s(sT0)}, {s(sGX)}, 1")
    a(f"s_lshl_b32 {s(sT0)}, {s(sT0)}, 3")
    a(f"s_mov_b64 exec, {s(sE0, 2)}")
    a(f"s_set_gpr_idx_on {s(sT0)}, gpr_idx(SRC1,DST)")
    for i in range(8):
        a(f"v_add_f32 {v(MA + i)}, {v(XR + i)}, {v(MA + i)}")
    a("s_set_gpr_idx_off")
    a("s_mov_b64 exec, -1")
    far.append("K2_XODD:")
    far += [f"v_mov_b32 {v(XR + i)}, {v(MA + 16 + i)}" for i in range(8)] + ["s_branch K2_XDONE"]
    for kk in range(3, 8):
        emit(a, c_step(0, kk))
    a.stamp()

    def silu(ct, packed):
        regs = [(nt, p) for nt in range(3) for p in range(2)]
        z = lambda nt, p: MA + 8 * nt + 4 * ct + 2 * p
        c = lambda nt, p: CA + 8 * nt + 4 * ct + 2 * p
        g = lambda nt, p: G + 4 * nt + 2 * p
        out = []

        def two(pk, plain):
            for nt, p in regs:
                if packed:
                    out.append(pk(z(nt, p), c(nt, p), g(nt, p)))
                else:
                    out.extend(plain(z(nt, p) + i, c(nt, p) + i, g(nt, p) + i) for i in range(2))
        two(lambda z_, c_, g_: f"v_pk_fma_f32 {v(z_, 2)}, {v(c_, 2)}, {s(sC0, 2)}, {v(z_, 2)}",
            lambda z_, c_, g_: f"v_fmac_f32 {v(z_)}, {s(sC0)}, {v(c_)}")
        for nt, p in regs:
            out += [f"v_exp_f32 {v(g(nt, p) + i)}, -{v(z(nt, p) + i)}" for i in range(2)]
        two(lambda z_, c_, g_: f"v_pk_add_f32 {v(g_, 2)}, {v(g_, 2)}, 1.0 op_sel_hi:[1,0]",
            lambda z_, c_, g_: f"v_add_f32 {v(g_)}, 1.0, {v(g_)}")
        for nt, p in regs:
            out += [f"v_rcp_f32 {v(g(nt, p) + i)}, {v(g(nt, p) + i)}" for i in range(2)]
        two(lambda z_, c_, g_: f"v_pk_mul_f32 {v(g_, 2)}, {v(g_, 2)}, {v(z_, 2)}",
            lambda z_, c_, g_: f"v_mul_f32 {v(g_)}, {v(g_)}, {v(z_)}")
        for nt, p in regs:
            out.append(f"v_lshlrev_b32 {v(z(nt, p))}, 16, {v(HR + 4 * nt + 2 * ct + p)}")
            out.append(f"v_and_b32 {v(z(nt, p) + 1)}, {s(sT1)}, {v(HR + 4 * nt + 2 * ct + p)}")
        two(lambda z_, c_, g_: f"v_pk_fma_f32 {v(g_, 2)}, {v(g_, 2)}, {s(sE1, 2)}, {v(z_, 2)}",
            lambda z_, c_, g_: f"v_fma_f32 {v(g_)}, {v(g_)}, {s(sE1)}, {v(z_)}")
        for nt, p in regs:
            out.append(f"v_cvt_pk_bf16_f32 {v(HR + 4 * nt + 2 * ct + p)}, {v(g(nt, p))}, {v(g(nt, p) + 1)}")
        return out

    sl = silu(0, False)
    emit(a, c_step(1, 0) + ["s_nop 0"] + place(sl, [(9 * kk - 6, c_step(1, kk)) for kk in range(1, 8)]))
    emit(a, silu(1, True))
    for nt in range(3):
        a(f"buffer_store_dwordx4 {v(HR + 4 * nt, 4)}, {v(eO + nt)}, {s(S_OUT, 4)}, 0 offen {os.environ.get('F3', '')}")
    a(f"s_cmp_ge_u32 {s(sWV)}, 2")
    a("s_cbranch_scc1 K2_EXIT")
    a(f"v_mul_u32_u24 v4, 21846, {v(vTID)}")
    a(f"v_lshrrev_b32 v4, 16, v4")
    a(f"v_mul_u32_u24 v5, 3, v4")
    a(f"v_sub_u32 v5, {v(vTID)}, v5")
    a(f"v_and_b32 v6, 7, v4")
    a(f"v_lshl_add_u32 v5, v5, 3, v6")
    a(f"v_lshlrev_b32 v5, 2, v5")
    a(f"v_add_u32 v5, {LPOS + 32}, v5")
    a(f"v_lshrrev_b32 v4, 3, v4")
    a(f"v_lshl_add_u32 v6, v4, 9, v5")
    a(f"v_add_u32 v5, {5 * 512}, v5")
    a("ds_read2_b32 v[8:9], v6 offset1:32")
    a("ds_read2_b32 v[10:11], v6 offset0:64 offset1:96")
    a("ds_read2_b32 v[12:13], v5 offset1:32")
    a("ds_read2_b32 v[14:15], v5 offset0:64 offset1:96")
    a(f"v_lshlrev_b32 v2, 1, {v(vTID)}")
    a(f"v_add_u32 v7, {LPD}, v2")
    a(f"ds_read_u16 v3, v7")
    a(f"v_cmp_gt_u32 vcc, 120, {v(vTID)}")
    a(f"s_mul_i32 {s(sT0)}, s2, 240")
    a(f"s_add_u32 {s(sT0)}, {s(sT0)}, {N * 512}")
    a(f"v_mov_b32 v1, {MARK}")
    a(f"v_cndmask_b32 v1, v1, v2, vcc")
    a(f"v_cmp_eq_u32 vcc, {s(sGX)}, v4")
    a("s_waitcnt lgkmcnt(0)")
    a("v_pk_add_f32 v[8:9], v[8:9], v[10:11]")
    a("v_pk_add_f32 v[12:13], v[12:13], v[14:15]")
    a("v_lshlrev_b32 v3, 16, v3")
    a("v_add_f32 v8, v8, v9")
    a("v_add_f32 v12, v12, v13")
    a("v_cndmask_b32 v12, 0, v12, vcc")
    a("v_add_f32 v8, v8, v12")
    a(f"v_fma_f32 v3, v8, {s(sE1)}, v3")
    a("v_cvt_pk_bf16_f32 v3, v3, v3")
    a(f"buffer_store_short v3, v1, {s(S_OUT, 4)}, {s(sT0)} offen")
    a.label("K2_EXIT")
    a.stamp()
    a.stamp(True)
    if a.stamps:
        a(f"s_mov_b32 {s(S_BP + 2)}, {16 << 20}")
    a.dump_stamps(S_BP, STAMP2_OFF - BP_OFF + 3072, 0, sWV, sT0)
    a.label("K2_END")
    a("s_endpgm")

    emit(a, far)
    a.label("K2_WREST")
    wh2_part(a, fresh(), "K2_FINAL")

    a.label("K2_NOA")
    emit(a, LATE)
    batch_consts(a)
    dense_addr(a)
    a("s_waitcnt vmcnt(0) lgkmcnt(0)")
    emit(a, dense(a, 0))
    dense_second()
    a("s_waitcnt lgkmcnt(0)")
    a("s_barrier")
    a("s_branch K2_READY")
    a.label("K2_OVER")
    a(f"s_cmp_lg_u32 {s(sSLOW)}, 0")
    a("s_cbranch_scc1 K2_FITS")
    a(f"s_mov_b32 {s(sSLOW)}, 1")
    a(f"s_mov_b32 {s(sLO)}, 0")
    a(f"s_mov_b32 {s(sTOT)}, {s(sBT)}")
    a(f"v_add_u32 {v(tT)}, {s(sTL)}, {v(tT)}")
    lane_setup()
    a(f"v_lshrrev_b32 {v(t2)}, 1, {v(t2)}")
    a(f"v_add_u32 {v(t2)}, 40960, {v(t2)}")
    a(f"buffer_store_dword {v(tT)}, {v(t2)}, {s(S_TMP, 4)}, 0 offen")
    a(f"v_lshlrev_b32 {v(t0)}, 4, {v(vTID)}")
    for r in range(5):
        a(f"buffer_store_dwordx4 {v(ZER, 4)}, {v(t0)}, {s(S_TMP, 4)}, 0 offen")
        a(f"v_add_u32 {v(t0)}, 8192, {v(t0)}")
    a("s_waitcnt vmcnt(0) lgkmcnt(0)")
    a("s_barrier")
    a("s_branch K2_SETUP")
    a.label("K2_NEXT")
    a("s_waitcnt vmcnt(0) lgkmcnt(0)")
    a("s_barrier")
    a(f"s_mov_b32 {s(sFIRST)}, 0")
    a(f"s_add_u32 {s(sLO)}, {s(sLO)}, {s(sBT)}")
    a(f"s_cmp_ge_u32 {s(sLO)}, {s(sTOT)}")
    a("s_cbranch_scc1 K2_LAST")
    a(f"s_cmp_eq_u32 {s(sBT)}, 0")
    a("s_cbranch_scc1 K2_LAST")
    emit(a, lds_init(a, False))
    a.label("K2_SETUP")
    lane_setup()
    a(f"buffer_load_dwordx2 {v(tDL, 2)}, {v(t2)}, {s(S_DESC, 4)}, 0 offen")
    a(f"v_lshrrev_b32 {v(t2)}, 1, {v(t2)}")
    a(f"v_add_u32 {v(t2)}, 40960, {v(t2)}")
    a(f"buffer_load_dword {v(t2)}, {v(t2)}, {s(S_TMP, 4)}, 0 offen sc1")
    lane_setup2()
    w1_pages()
    a("s_waitcnt vmcnt(0) lgkmcnt(0)")
    a(f"v_and_b32 {v(t0)}, 1023, {v(tDL)}")
    a(f"v_lshrrev_b32 {v(t1)}, 20, {v(tDH)}")
    a(f"v_sub_u32 {v(t0)}, {v(t1)}, {v(t0)}")
    a(f"v_sub_u32 {v(t0)}, {v(t2)}, {v(t0)}")
    a(f"s_add_u32 {s(sT0)}, {s(sLO)}, {LIMIT}")
    a(f"v_cmp_le_u32 vcc, {s(sLO)}, {v(t0)}")
    a(f"v_cmp_ge_u32 {s(sT2, 2)}, {s(sT0)}, {v(t2)}")
    a("s_nop 1")
    a(f"s_and_b64 vcc, vcc, {s(sT2, 2)}")
    a("s_nop 1")
    a(f"v_cndmask_b32 {v(tDL)}, 0, {v(tDL)}, vcc")
    a(f"v_cndmask_b32 {v(tDH)}, 0, {v(tDH)}, vcc")
    a("s_branch K2_BATCH")
    a.label("K2_LAST")
    a(f"v_lshlrev_b32 v0, 6, {v(vTID)}")
    a(f"v_lshrrev_b32 v1, 4, {v(vTID)}")
    a(f"v_mul_u32_u24 v1, {MROW}, v1")
    a(f"v_and_b32 v2, 15, {v(vTID)}")
    a(f"v_lshl_add_u32 v1, v2, 5, v1")
    a(f"v_add_u32 v1, {LM}, v1")
    for r in range(2):
        for k in range(4):
            a(f"buffer_load_dwordx4 {v(4 + 4 * k, 4)}, v0, {s(S_TMP, 4)}, 0 offen offset:{16 * k} sc1")
        a("s_waitcnt vmcnt(0)")
        for p in range(8):
            a(f"v_cvt_pk_bf16_f32 {v(20 + p)}, {v(4 + 2 * p)}, {v(5 + 2 * p)}")
        a(f"ds_write_b128 v1, v[20:23] offset:{32 * MROW * r}")
        a(f"ds_write_b128 v1, v[24:27] offset:{32 * MROW * r + 16}")
        if r == 0:
            a(f"v_cmp_gt_u32 vcc, 128, {v(vTID)}")
            a("v_add_u32 v0, 32768, v0")
            a("s_waitcnt lgkmcnt(0)")
            a("s_and_saveexec_b64 s[4:5], vcc")
            a("s_cbranch_execz K2_LAST2")
    a.label("K2_LAST2")
    a("s_mov_b64 exec, -1")
    a("s_branch K2_FINAL")
    return dict(name="edge_kernel", vgpr=256, sgpr=102, grid=256, block=512, lds=K2_LDS)
```

```python
import os
from asmlib import Asm, v, s
from cfg import *

HALF_H, HALF_W = 80 * 256, 128 * 256
LH, LW = 0, 2 * HALF_H
LBINS = LW + 2 * HALF_W
K1_LDS = LBINS + 1280 * 4
SCAN_WAVE, FRAG_WAVE = 2, 6


def srd(a, d, base, size):
    a(f"s_mov_b32 {s(d)}, {s(base)}")
    a(f"s_and_b32 {s(d + 1)}, {s(base + 1)}, 0xffff")
    a(f"s_mov_b32 {s(d + 2)}, {size}")
    a(f"s_mov_b32 {s(d + 3)}, 0x20000")


def srd_off(a, d, base, off, size):
    a(f"s_add_u32 {s(d)}, {s(base)}, {off}")
    a(f"s_addc_u32 {s(d + 1)}, {s(base + 1)}, 0")
    a(f"s_and_b32 {s(d + 1)}, {s(d + 1)}, 0xffff")
    a(f"s_mov_b32 {s(d + 2)}, {size}")
    a(f"s_mov_b32 {s(d + 3)}, 0x20000")


def wave_scan(a, r):
    for sh in (1, 2, 4, 8):
        a("s_nop 1")
        a(f"v_add_u32_dpp {v(r)}, {v(r)}, {v(r)} row_shr:{sh} row_mask:0xf bank_mask:0xf bound_ctrl:0")
    a("s_nop 1")
    a(f"v_add_u32_dpp {v(r)}, {v(r)}, {v(r)} row_bcast:15 row_mask:0xa bank_mask:0xf")
    a("s_nop 1")
    a(f"v_add_u32_dpp {v(r)}, {v(r)}, {v(r)} row_bcast:31 row_mask:0xc bank_mask:0xf")


def gen_k1(a, stamps=False):
    REG = os.environ.get("HMODE", "reg") == "reg"
    vHR = 124
    if stamps:
        a.stamps = (70, list(range(72, 90)))
        a.keep_env = "KEEP1"
    S_H, S_WE, S_DST, S_SRC, S_EA, S_WS, S_WH, S_DESC = 24, 28, 32, 36, 40, 44, 48, 52
    S_OUT = S_DST
    sWV, sRB, sCB, sFRAG, sT0, sT1, sT2, sSO, sHO, sWO = 56, 57, 58, 59, 60, 61, 62, 63, 64, 65
    sC, sLB = 66, 68
    vLANE, vDST, vSRC, vEA, vBIN, vRANK, vREC = 1, 2, 3, 4, 5, 6, 8
    vT0, vT1, vT2, vT3 = 10, 11, 25, 26
    vFL, vFP, vFA = 12, 20, 24
    vDH, vDW = 28, 30
    vA, vQ, vDESC, vDA = 32, 52, 74, 82
    vACC, vHF, vWF, vHB, vWB, vOA = 88, 104, 32, 112, 116, 120
    vOUT = 32

    a.label("prep_kernel")
    a("s_cmp_ge_u32 s2, 256")
    a("s_cbranch_scc1 K1_END")
    a.stamp(True)
    a.stamp()
    a("s_load_dwordx16 s[4:19], s[0:1], 0")
    a("s_load_dwordx2 s[20:21], s[0:1], 80")
    if os.environ.get("PF", "1") == "1":
        a.comment("workgroups 0..7: read the code of both kernels once so that instruction fetch finds it in L2")
        a("s_cmp_ge_u32 s2, 8")
        a("s_cbranch_scc1 K1_NOPF")
        a("s_getpc_b64 s[22:23]")
        a("s_and_b32 s22, s22, 0xffffff80")
        a("v_lshlrev_b32 v2, 6, v0")
        a(f"v_min_u32 v2, CODE_END - prep_kernel - 256, v2")
        a("global_load_dword v122, v2, s[22:23]")
        a.label("K1_NOPF")
    a(f"v_lshrrev_b32 {v(vT0)}, 6, v0")
    a(f"v_and_b32 {v(vLANE)}, 63, v0")
    a(f"v_readfirstlane_b32 {s(sWV)}, {v(vT0)}")
    a(f"v_mov_b32 {v(vREC)}, 0")
    a(f"v_mov_b32 {v(vREC + 1)}, 0")
    a(f"v_lshlrev_b32 {v(vT0)}, 3, v0")
    a(f"v_add_u32 {v(vT0)}, {LBINS}, {v(vT0)}")
    a(f"ds_write_b64 {v(vT0)}, {v(vREC, 2)}")
    a(f"s_and_b32 {s(sT0)}, s2, 7")
    a(f"s_lshl_b32 {s(sT0)}, {s(sT0)}, 4")
    a(f"s_lshr_b32 {s(sT1)}, s2, 4")
    a(f"s_add_u32 {s(sRB)}, {s(sT0)}, {s(sT1)}")
    a(f"s_bfe_u32 {s(sCB)}, s2, 0x10003")
    a(f"s_mul_i32 {s(sT0)}, s2, {CH}")
    a(f"v_add_u32 {v(vT0)}, {s(sT0)}, v0")
    a(f"v_lshlrev_b32 {v(vT1)}, 2, {v(vT0)}")
    a(f"v_lshlrev_b32 {v(vT0)}, 1, {v(vT0)}")
    a(f"v_lshrrev_b32 {v(vT2)}, 4, {v(vLANE)}")
    a(f"v_and_b32 {v(vT3)}, 15, {v(vLANE)}")
    a(f"v_xor_b32 {v(vDH)}, {v(vT3)}, {v(vT2)}")
    a(f"v_lshlrev_b32 {v(vDH)}, 4, {v(vDH)}")
    a(f"v_lshl_or_b32 {v(vDH)}, {v(vT2)}, 9, {v(vDH)}")
    a(f"v_lshlrev_b32 {v(vDW)}, 1, {v(vT2)}")
    a(f"v_xor_b32 {v(vDW)}, {v(vT3)}, {v(vDW)}")
    a(f"v_lshlrev_b32 {v(vDW)}, 4, {v(vDW)}")
    a(f"v_lshl_or_b32 {v(vDW)}, {v(vT2)}, 9, {v(vDW)}")
    a(f"s_lshl_b32 {s(sT0)}, {s(sWV)}, 6")
    a(f"s_and_b32 {s(sT1)}, {s(sT0)}, 192")
    a(f"v_xor_b32 {v(vDH)}, {s(sT1)}, {v(vDH)}")
    a(f"v_xor_b32 {v(vDH + 1)}, 128, {v(vDH)}")
    a(f"s_and_b32 {s(sT1)}, {s(sT0)}, 128")
    a(f"v_xor_b32 {v(vDW)}, {s(sT1)}, {v(vDW)}")
    a(f"v_xor_b32 {v(vDW + 1)}, 128, {v(vDW)}")
    a(f"s_mul_i32 {s(sHO)}, {s(sRB)}, {80 * 512}")
    a(f"s_lshl_b32 {s(sT0)}, {s(sWV)}, 11")
    a(f"s_add_u32 {s(sHO)}, {s(sHO)}, {s(sT0)}")
    a(f"s_lshl_b32 {s(sWO)}, {s(sCB)}, 8")
    a(f"s_add_u32 {s(sWO)}, {s(sWO)}, {256 * 512}")
    a(f"s_add_u32 {s(sWO)}, {s(sWO)}, {s(sT0)}")
    a("s_waitcnt lgkmcnt(0)")
    a.stamp()
    srd(a, S_DST, 12, E * 4)
    a(f"buffer_load_dword {v(vDST)}, {v(vT1)}, {s(S_DST, 4)}, 0 offen")
    srd(a, S_SRC, 10, E * 4)
    a(f"buffer_load_dword {v(vSRC)}, {v(vT1)}, {s(S_SRC, 4)}, 0 offen")
    srd(a, S_EA, 8, E * 2)
    a(f"buffer_load_ushort {v(vEA)}, {v(vT0)}, {s(S_EA, 4)}, 0 offen")
    srd(a, S_H, 4, H_SIZE)
    srd(a, S_WE, 14, WE_SIZE)
    a("s_barrier")

    def dma_items(kh):
        items = []
        for j in range(2):
            items.append([f"s_add_u32 m0, {s(sLB)}, {LH + HALF_H * kh + 10240 * j}",
                          f"s_add_u32 {s(sT1)}, {s(sHO)}, {20480 * j + 256 * kh}",
                          f"buffer_load_dwordx4 {v(vDH + (j & 1))}, {s(S_H, 4)}, {s(sT1)} offen lds"])
        for j in range(4):
            it = [f"s_add_u32 m0, {s(sLB)}, {LW + HALF_W * kh + 10240 * j}",
                  f"s_add_u32 {s(sT1)}, {s(sWO)}, {20480 * j + 65536 * kh}",
                  f"buffer_load_dwordx4 {v(vDW + (j & 1))}, {s(S_WE, 4)}, {s(sT1)} offen lds"]
            if j == 3:
                it = [f"s_cmp_ge_u32 {s(sWV)}, 2", f"s_cbranch_scc1 K1_ND{kh}"] + it + [f"K1_ND{kh}:"]
            items.append(it)
        return items

    a(f"s_lshl_b32 {s(sLB)}, {s(sWV)}, 10")
    d0, d1 = dma_items(0), dma_items(1)
    if REG:
        a.comment("h fragments: lane (node, g4) reads 16 B at row * 512 + 64 kk + 16 g4")
        a(f"s_cmp_ge_u32 {s(sWV)}, 5")
        a(f"s_cselect_b32 {s(sT1)}, 5, 0")
        a(f"s_sub_u32 {s(sT1)}, {s(sWV)}, {s(sT1)}")
        a(f"s_lshl_b32 {s(sT1)}, {s(sT1)}, 13")
        a(f"s_mul_i32 {s(sHO)}, {s(sRB)}, {80 * 512}")
        a(f"s_add_u32 {s(sHO)}, {s(sHO)}, {s(sT1)}")
        a(f"v_and_b32 {v(vT2)}, 15, {v(vLANE)}")
        a(f"v_and_b32 {v(vT3)}, 48, {v(vLANE)}")
        a(f"v_lshl_or_b32 {v(vOA)}, {v(vT2)}, 9, {v(vT3)}")
        hl = [[f"buffer_load_dwordx4 {v(vHR + 4 * kk, 4)}, {v(vOA)}, {s(S_H, 4)}, {s(sHO)} offen offset:{64 * kk}"] for kk in range(8)]
        first = d0[2:] + d1[2:] + hl
    else:
        first = d0
    for it in first:
        for ln in it:
            a(ln)
    a.stamp()
    a(f"s_waitcnt vmcnt({14 if REG else 5})")
    a.stamp()
    a(f"v_lshrrev_b32 {v(vT0)}, 3, {v(vDST)}")
    a(f"v_lshlrev_b32 {v(vBIN)}, 2, {v(vT0)}")
    a(f"v_add_u32 {v(vBIN)}, {LBINS}, {v(vBIN)}")
    a(f"s_cmp_lt_u32 s2, {NC}")
    a(f"s_cselect_b32 {s(sT0)}, 1, 0")
    a(f"v_mov_b32 {v(vT1)}, {s(sT0)}")
    a(f"ds_add_rtn_u32 {v(vRANK)}, {v(vBIN)}, {v(vT1)}")

    srd(a, S_WS, 20, WS_USED)
    a(f"s_lshl_b32 {s(sT1)}, s2, 11")
    a(f"s_add_u32 {s(sT1)}, {s(sT1)}, {FR_OFF - FRAG_WAVE * 1024}")
    a(f"v_lshl_add_u32 {v(vFA)}, v0, 4, {s(sT1)}")
    a(f"s_sub_u32 {s(sT0)}, {s(sWV)}, {FRAG_WAVE}")
    a(f"s_cmp_lt_u32 {s(sT0)}, 2")
    a(f"s_cselect_b32 {s(sFRAG)}, 1, 0")
    a(f"s_cmp_lt_u32 s2, 192")
    a(f"s_cselect_b32 {s(sFRAG)}, {s(sFRAG)}, 0")
    a(f"s_cmp_eq_u32 {s(sFRAG)}, 0")
    a("s_cbranch_scc1 K1_NOFRAG")
    a(f"s_cmp_lt_u32 s2, 64")
    a(f"s_cselect_b32 {s(S_WH)}, s14, s18")
    a(f"s_cselect_b32 {s(S_WH + 1)}, s15, s19")
    a(f"s_cselect_b32 {s(sT2)}, 1, 0")
    a(f"s_and_b32 {s(S_WH + 1)}, {s(S_WH + 1)}, 0xffff")
    a(f"s_mov_b32 {s(S_WH + 2)}, {WH_SIZE}")
    a(f"s_mov_b32 {s(S_WH + 3)}, 0x20000")
    a(f"s_and_b32 {s(sT1)}, s2, 63")
    a(f"s_lshl_b32 {s(sT1)}, {s(sT1)}, 1")
    a(f"s_add_u32 {s(sT0)}, {s(sT0)}, {s(sT1)}")
    a(f"s_and_b32 {s(sT1)}, {s(sT0)}, 8")
    a(f"s_lshl_b32 {s(sT2)}, {s(sT1)}, {s(sT2)}")
    a(f"s_lshr_b32 {s(sT1)}, {s(sT0)}, 4")
    a(f"s_lshl_b32 {s(sT1)}, {s(sT1)}, 6")
    a(f"s_add_u32 {s(sT1)}, {s(sT1)}, {s(sT2)}")
    a(f"s_and_b32 {s(sT0)}, {s(sT0)}, 7")
    a(f"s_lshl_b32 {s(sT0)}, {s(sT0)}, 14")
    a(f"s_add_u32 {s(sT1)}, {s(sT1)}, {s(sT0)}")
    a(f"v_and_b32 {v(vT1)}, 3, {v(vLANE)}")
    a(f"v_bfe_u32 {v(vT2)}, {v(vLANE)}, 2, 2")
    a(f"v_lshl_or_b32 {v(vT3)}, {v(vT2)}, 3, {v(vT1)}")
    a(f"s_cmp_ge_u32 s2, 64")
    a("s_cbranch_scc1 K1_FCOL")
    a(f"v_bfe_u32 {v(vT2)}, {v(vLANE)}, 2, 1")
    a(f"v_lshl_or_b32 {v(vT1)}, {v(vT2)}, 4, {v(vT1)}")
    a(f"v_bfe_u32 {v(vT2)}, {v(vLANE)}, 3, 1")
    a(f"v_lshl_or_b32 {v(vT3)}, {v(vT2)}, 2, {v(vT1)}")
    a.label("K1_FCOL")
    a(f"v_lshlrev_b32 {v(vT1)}, 1, {v(vT3)}")
    a(f"v_lshrrev_b32 {v(vT2)}, 4, {v(vLANE)}")
    a(f"s_cmp_ge_u32 s2, 128")
    a(f"s_cselect_b32 {s(sT2)}, 11, 12")
    a(f"s_cselect_b32 {s(sSO)}, 6144, 0")
    a(f"s_cselect_b32 {s(sT0)}, {256 * 512}, 0")
    a(f"s_add_u32 {s(sT1)}, {s(sT1)}, {s(sT0)}")
    a(f"v_lshlrev_b32 {v(vT2)}, {s(sT2)}, {v(vT2)}")
    a(f"v_add3_u32 {v(vT1)}, {v(vT1)}, {v(vT2)}, {s(sT1)}")
    for t in range(8):
        so = "0" if t < 4 else s(sSO)
        a(f"buffer_load_ushort {v(vFL + t)}, {v(vT1)}, {s(S_WH, 4)}, {so} offen offset:{t * 512}")
    a.label("K1_NOFRAG")

    a(f"v_mul_u32_u24 {v(vT1)}, 52429, {v(vT0)}")
    a(f"v_lshrrev_b32 {v(vT1)}, 18, {v(vT1)}")
    a(f"v_mul_u32_u24 {v(vT1)}, 5, {v(vT1)}")
    a(f"v_sub_u32 {v(vT0)}, {v(vT0)}, {v(vT1)}")
    a(f"v_and_b32 {v(vT1)}, 7, {v(vDST)}")
    a(f"v_lshl_or_b32 {v(vT1)}, {v(vT0)}, 3, {v(vT1)}")
    a(f"v_lshlrev_b32 {v(vREC)}, 9, {v(vSRC)}")
    a(f"v_lshl_or_b32 {v(vEA)}, {v(vT1)}, 16, {v(vEA)}")
    a(f"s_cmp_ge_u32 {s(sWV)}, 5")
    a(f"s_cselect_b32 {s(sT0)}, 1, 0")
    a(f"s_cselect_b32 {s(sT1)}, 5, 0")
    a(f"s_sub_u32 {s(sT1)}, {s(sWV)}, {s(sT1)}")
    a(f"v_and_b32 {v(vT0)}, 15, {v(vLANE)}")
    a(f"v_lshrrev_b32 {v(vT1)}, 4, {v(vLANE)}")
    a(f"v_xor_b32 {v(vT2)}, {v(vT0)}, {v(vT1)}")
    a(f"v_lshlrev_b32 {v(vT2)}, 4, {v(vT2)}")
    a(f"v_lshl_or_b32 {v(vT2)}, {v(vT0)}, 8, {v(vT2)}")
    a(f"s_lshl_b32 {s(sT2)}, {s(sT1)}, 12")
    a(f"v_add_u32 {v(vHB)}, {s(sT2)}, {v(vT2)}")
    for k in range(1, 4):
        a(f"v_xor_b32 {v(vHB + k)}, {64 * k}, {v(vHB)}")
    a(f"v_bfe_u32 {v(vT0)}, {v(vLANE)}, 2, 2")
    a(f"v_lshl_or_b32 {v(vT2)}, {v(vT1)}, 3, {v(vT0)}")
    a(f"v_lshlrev_b32 {v(vT2)}, 8, {v(vT2)}")
    a(f"v_and_b32 {v(vT1)}, 1, {v(vT1)}")
    a(f"v_xor_b32 {v(vT1)}, {s(sT0)}, {v(vT1)}")
    a(f"v_lshl_or_b32 {v(vT0)}, {v(vT1)}, 2, {v(vT0)}")
    a(f"v_lshl_or_b32 {v(vT2)}, {v(vT0)}, 5, {v(vT2)}")
    a(f"v_and_b32 {v(vT0)}, 3, {v(vLANE)}")
    a(f"v_lshl_or_b32 {v(vT2)}, {v(vT0)}, 3, {v(vT2)}")
    a(f"v_add_u32 {v(vWB)}, {LW}, {v(vT2)}")
    for ti in range(1, 4):
        a(f"v_xor_b32 {v(vWB + ti)}, {32 * ti}, {v(vWB)}")
    a(f"s_mul_i32 {s(sSO)}, {s(sRB)}, 80")
    a(f"s_lshl_b32 {s(sT1)}, {s(sT1)}, 4")
    a(f"s_add_u32 {s(sSO)}, {s(sSO)}, {s(sT1)}")
    a(f"s_lshl_b32 {s(sSO)}, {s(sSO)}, 9")
    a(f"s_lshl_b32 {s(sT1)}, {s(sCB)}, 1")
    a(f"s_add_u32 {s(sT0)}, {s(sT0)}, {s(sT1)}")
    a(f"s_lshl_b32 {s(sT0)}, {s(sT0)}, 7")
    a(f"s_add_u32 {s(sSO)}, {s(sSO)}, {s(sT0)}")
    a(f"v_and_b32 {v(vT0)}, 15, {v(vLANE)}")
    a(f"v_and_b32 {v(vT1)}, 48, {v(vLANE)}")
    a(f"v_lshl_or_b32 {v(vOA)}, {v(vT0)}, 9, {v(vT1)}")
    a(f"s_and_b32 {s(sT0)}, s2, 7")
    a(f"s_lshl_b32 {s(sT0)}, {s(sT0)}, 8")
    a(f"s_and_b32 {s(sT1)}, s2, 0xf8")
    a(f"s_add_u32 {s(sT0)}, {s(sT0)}, {s(sT1)}")
    a(f"v_lshl_add_u32 {v(vDA)}, {v(vLANE)}, 13, {s(sT0)}")
    a(f"s_cmp_eq_u32 {s(sFRAG)}, 0")
    a("s_cbranch_scc1 K1_W0")
    a(f"s_waitcnt vmcnt({16 if REG else 8}) lgkmcnt(0)")
    a("s_branch K1_W1")
    a.label("K1_W0")
    a(f"s_waitcnt vmcnt({8 if REG else 0}) lgkmcnt(0)")
    a.label("K1_W1")
    a(f"v_lshl_or_b32 {v(vREC + 1)}, {v(vRANK)}, 22, {v(vEA)}")
    a("s_barrier")
    late = [] if REG else d1
    NPRE = int(os.environ.get("NPRE", "2"))
    for it in late[:NPRE]:
        for ln in it:
            a(ln)
    late = late[NPRE:]
    a.stamp()
    a(f"s_cmp_lg_u32 {s(sWV)}, {SCAN_WAVE}")
    a("s_cbranch_scc1 K1_NOSCAN")
    a(f"v_mul_u32_u24 {v(vT0)}, 80, {v(vLANE)}")
    a(f"v_add_u32 {v(vT0)}, {LBINS}, {v(vT0)}")
    for i in range(5):
        a(f"ds_read_b128 {v(vA + 4 * i, 4)}, {v(vT0)} offset:{16 * i}")
    a("s_waitcnt lgkmcnt(0)")
    for i in range(1, 20):
        a(f"v_add_u32 {v(vA + i)}, {v(vA + i - 1)}, {v(vA + i)}")
    a(f"v_mov_b32 {v(vT1)}, {v(vA + 19)}")
    wave_scan(a, vT1)
    a(f"v_sub_u32 {v(vQ)}, {v(vT1)}, {v(vA + 19)}")
    for i in range(1, 21):
        a(f"v_add_u32 {v(vQ + i)}, {v(vQ)}, {v(vA + i - 1)}")
    for i in range(5):
        a(f"ds_write_b128 {v(vT0)}, {v(vQ + 4 * i, 4)} offset:{16 * i}")
    for j in range(4):
        for hl in range(2):
            r = vQ + 5 * j + 3 * hl
            d = vDESC + 2 * j + hl
            a(f"v_lshl_or_b32 {v(d)}, {v(r + 1)}, 10, {v(r)}")
            a(f"v_lshl_or_b32 {v(d)}, {v(r + 2)}, 20, {v(d)}")
    a("s_waitcnt lgkmcnt(0)")
    a.label("K1_NOSCAN")
    a.stamp()

    def reads(kk):
        b, kh, k4 = kk & 1, kk >> 2, kk & 3
        out = [] if REG else [f"ds_read_b128 {v(vHF + 4 * b, 4)}, {v(vHB + k4)} offset:{HALF_H * kh}"]
        for ti in range(4):
            for half in range(2):
                out.append(f"ds_read_b64_tr_b16 {v(vWF + 16 * b + 4 * ti + 2 * half, 2)}, {v(vWB + ti)} offset:{HALF_W * kh + 8192 * k4 + 1024 * half}")
        return out

    def gemm_half(kh):
        for ln in (reads(4 * kh) if not (REG and kh) else []):
            a(ln)
        for kk in range(4 * kh, 4 * kh + 4):
            b = kk & 1
            a(f"s_waitcnt vmcnt({7 - kk + (2 if kk >= 4 else 0)}) lgkmcnt(0)" if REG else "s_waitcnt lgkmcnt(0)")
            nxt = reads(kk + 1) if (kk & 3) < 3 or (REG and kk < 7) else []
            for ti in range(4):
                d = vACC + 4 * ti
                for _ in range(3):
                    if nxt:
                        a(nxt.pop(0))
                a(f"v_mfma_f32_16x16x32_bf16 {v(d, 4)}, {v(vWF + 16 * b + 4 * ti, 4)}, {v(vHR + 4 * kk if REG else vHF + 4 * b, 4)}, {'0' if kk == 0 else v(d, 4)}")
                if late and ti & 1:
                    for ln in late.pop(0):
                        a(ln)

    def middle(tag):
        if not REG:
            a("s_waitcnt vmcnt(0)")
        a("s_barrier")
        a.stamp()
        a(f"ds_read_b32 {v(vT0)}, {v(vBIN)}")
        srd_off(a, S_SRC, 20, REC_OFF, REC_SIZE)
        a(f"s_mul_i32 {s(sT0)}, s2, {CH * 8}")
        a("s_waitcnt lgkmcnt(0)")
        a(f"v_add_lshl_u32 {v(vT0)}, {v(vT0)}, {v(vRANK)}, 3")
        a(f"buffer_store_dwordx2 {v(vREC, 2)}, {v(vT0)}, {s(S_SRC, 4)}, {s(sT0)} offen ")
        a(f"s_cmp_lg_u32 {s(sWV)}, {SCAN_WAVE}")
        a(f"s_cbranch_scc1 K1_NOREC{tag}")
        srd_off(a, S_DESC, 20, DESC_OFF, DESC_SIZE)
        for j in range(4):
            a(f"s_mov_b32 {s(sT0)}, {j * DESC_ROW}")
            a(f"buffer_store_dwordx2 {v(vDESC + 2 * j, 2)}, {v(vDA)}, {s(S_DESC, 4)}, {s(sT0)} offen")
        a.label(f"K1_NOREC{tag}")
        a.stamp()

    def frag_out():
        a(f"s_cmp_eq_u32 {s(sFRAG)}, 0")
        a("s_cbranch_scc1 K1_NOFST")
        for p in range(4):
            a(f"v_lshl_or_b32 {v(vFP + p)}, {v(vFL + 2 * p + 1)}, 16, {v(vFL + 2 * p)}")
        a(f"buffer_store_dwordx4 {v(vFP, 4)}, {v(vFA)}, {s(S_WS, 4)}, 0 offen")
        a.label("K1_NOFST")

    def scale_pack():
        a(f"s_mov_b32 {s(sC)}, {LOG2E}")
        a(f"s_mov_b32 {s(sC + 1)}, {LOG2E}")
        for p in range(8):
            a(f"v_pk_mul_f32 {v(vACC + 2 * p, 2)}, {v(vACC + 2 * p, 2)}, {s(sC, 2)}")
        for p in range(8):
            a(f"v_cvt_pk_bf16_f32 {v(vOUT + p)}, {v(vACC + 2 * p)}, {v(vACC + 2 * p + 1)}")

    def b_out():
        a.stamp()
        srd_off(a, S_OUT, 20, BP_OFF, BP_SIZE)
        a("s_nop 0")
        scale_pack()
        for tp in range(2):
            a(f"buffer_store_dwordx4 {v(vOUT + 4 * tp, 4)}, {v(vOA)}, {s(S_OUT, 4)}, {s(sSO)} offen offset:{64 * tp}")

    def finish():
        a.stamp()
        if a.stamps:
            a("s_waitcnt vmcnt(0)")
        a.stamp()
        a.stamp(True)
        if a.stamps:
            srd(a, S_WS, 20, 16 << 20)
        a.dump_stamps(S_WS, STAMP1_OFF, 0, sWV, sT0)

    gemm_half(0)
    middle("")
    srd(a, S_EA, 6, POS_SIZE)
    a(f"s_lshr_b32 {s(sT0)}, s2, 3")
    a(f"s_lshl_b32 {s(sT0)}, {s(sT0)}, 11")
    a(f"v_lshlrev_b32 {v(vT1)}, 2, v0")
    a(f"buffer_load_dword {v(vT2)}, {v(vT1)}, {s(S_EA, 4)}, {s(sT0)} offen")
    gemm_half(1)
    b_out()
    frag_out()
    finish()
    a.label("K1_END")
    a("s_endpgm")
    return dict(name="prep_kernel", vgpr=156 if REG else 124, sgpr=96, grid=256, block=640, lds=K1_LDS)
```

```python
import os
from asmlib import Asm, v, s
from cfg import *

HALF_H, HALF_W = 80 * 256, 128 * 256
LH, LW = 0, 2 * HALF_H
LBINS = LW + 2 * HALF_W
K1_LDS = LBINS + 1280 * 4
SCAN_WAVE, FRAG_WAVE = 2, 6


def srd(a, d, base, size):
    a(f"s_mov_b32 {s(d)}, {s(base)}")
    a(f"s_and_b32 {s(d + 1)}, {s(base + 1)}, 0xffff")
    a(f"s_mov_b32 {s(d + 2)}, {size}")
    a(f"s_mov_b32 {s(d + 3)}, 0x20000")


def srd_off(a, d, base, off, size):
    a(f"s_add_u32 {s(d)}, {s(base)}, {off}")
    a(f"s_addc_u32 {s(d + 1)}, {s(base + 1)}, 0")
    a(f"s_and_b32 {s(d + 1)}, {s(d + 1)}, 0xffff")
    a(f"s_mov_b32 {s(d + 2)}, {size}")
    a(f"s_mov_b32 {s(d + 3)}, 0x20000")


def wave_scan(a, r):
    for sh in (1, 2, 4, 8):
        a("s_nop 1")
        a(f"v_add_u32_dpp {v(r)}, {v(r)}, {v(r)} row_shr:{sh} row_mask:0xf bank_mask:0xf bound_ctrl:0")
    a("s_nop 1")
    a(f"v_add_u32_dpp {v(r)}, {v(r)}, {v(r)} row_bcast:15 row_mask:0xa bank_mask:0xf")
    a("s_nop 1")
    a(f"v_add_u32_dpp {v(r)}, {v(r)}, {v(r)} row_bcast:31 row_mask:0xc bank_mask:0xf")


def gen_k1(a, stamps=False):
    if stamps:
        a.stamps = (70, list(range(72, 90)))
        a.keep_env = "KEEP1"
    S_H, S_WE, S_DST, S_SRC, S_EA, S_WS, S_WH, S_DESC = 24, 28, 32, 36, 40, 44, 48, 52
    S_OUT = S_DST
    sWV, sRB, sCB, sFRAG, sT0, sT1, sT2, sSO, sHO, sWO = 56, 57, 58, 59, 60, 61, 62, 63, 64, 65
    sC, sLB = 66, 68
    vLANE, vDST, vSRC, vEA, vBIN, vRANK, vREC = 1, 2, 3, 4, 5, 6, 8
    vT0, vT1, vT2, vT3 = 10, 11, 25, 26
    vFL, vFP, vFA = 12, 20, 24
    vDH, vDW = 28, 30
    vA, vQ, vDESC, vDA = 32, 52, 74, 82
    vACC, vHF, vWF, vHB, vWB, vOA = 88, 104, 32, 112, 116, 120
    vOUT = 32

    a.label("prep_kernel")
    a("s_cmp_ge_u32 s2, 256")
    a("s_cbranch_scc1 K1_END")
    a.stamp(True)
    a.stamp()
    a("s_load_dwordx16 s[4:19], s[0:1], 0")
    a("s_load_dwordx2 s[20:21], s[0:1], 80")
    if os.environ.get("PF", "1") == "1":
        a.comment("workgroups 0..7: read the code of both kernels once so that instruction fetch finds it in L2")
        a("s_cmp_ge_u32 s2, 8")
        a("s_cbranch_scc1 K1_NOPF")
        a("s_getpc_b64 s[22:23]")
        a("s_and_b32 s22, s22, 0xffffff80")
        a("v_lshlrev_b32 v2, 6, v0")
        a(f"v_min_u32 v2, CODE_END - prep_kernel - 256, v2")
        a("global_load_dword v123, v2, s[22:23]")
        a.label("K1_NOPF")
    a(f"v_lshrrev_b32 {v(vT0)}, 6, v0")
    a(f"v_and_b32 {v(vLANE)}, 63, v0")
    a(f"v_readfirstlane_b32 {s(sWV)}, {v(vT0)}")
    a(f"v_mov_b32 {v(vREC)}, 0")
    a(f"v_mov_b32 {v(vREC + 1)}, 0")
    a(f"v_lshlrev_b32 {v(vT0)}, 3, v0")
    a(f"v_add_u32 {v(vT0)}, {LBINS}, {v(vT0)}")
    a(f"ds_write_b64 {v(vT0)}, {v(vREC, 2)}")
    a(f"s_and_b32 {s(sT0)}, s2, 7")
    a(f"s_lshl_b32 {s(sT0)}, {s(sT0)}, 4")
    a(f"s_lshr_b32 {s(sT1)}, s2, 4")
    a(f"s_add_u32 {s(sRB)}, {s(sT0)}, {s(sT1)}")
    a(f"s_bfe_u32 {s(sCB)}, s2, 0x10003")
    a(f"s_mul_i32 {s(sT0)}, s2, {CH}")
    a(f"v_add_u32 {v(vT0)}, {s(sT0)}, v0")
    a(f"v_lshlrev_b32 {v(vT1)}, 2, {v(vT0)}")
    a(f"v_lshlrev_b32 {v(vT0)}, 1, {v(vT0)}")
    a(f"v_lshrrev_b32 {v(vT2)}, 4, {v(vLANE)}")
    a(f"v_and_b32 {v(vT3)}, 15, {v(vLANE)}")
    a(f"v_xor_b32 {v(vDH)}, {v(vT3)}, {v(vT2)}")
    a(f"v_lshlrev_b32 {v(vDH)}, 4, {v(vDH)}")
    a(f"v_lshl_or_b32 {v(vDH)}, {v(vT2)}, 9, {v(vDH)}")
    a(f"v_lshlrev_b32 {v(vDW)}, 1, {v(vT2)}")
    a(f"v_xor_b32 {v(vDW)}, {v(vT3)}, {v(vDW)}")
    a(f"v_lshlrev_b32 {v(vDW)}, 4, {v(vDW)}")
    a(f"v_lshl_or_b32 {v(vDW)}, {v(vT2)}, 9, {v(vDW)}")
    a(f"s_lshl_b32 {s(sT0)}, {s(sWV)}, 6")
    a(f"s_and_b32 {s(sT1)}, {s(sT0)}, 192")
    a(f"v_xor_b32 {v(vDH)}, {s(sT1)}, {v(vDH)}")
    a(f"v_xor_b32 {v(vDH + 1)}, 128, {v(vDH)}")
    a(f"s_and_b32 {s(sT1)}, {s(sT0)}, 128")
    a(f"v_xor_b32 {v(vDW)}, {s(sT1)}, {v(vDW)}")
    a(f"v_xor_b32 {v(vDW + 1)}, 128, {v(vDW)}")
    a(f"s_mul_i32 {s(sHO)}, {s(sRB)}, {80 * 512}")
    a(f"s_lshl_b32 {s(sT0)}, {s(sWV)}, 11")
    a(f"s_add_u32 {s(sHO)}, {s(sHO)}, {s(sT0)}")
    a(f"s_lshl_b32 {s(sWO)}, {s(sCB)}, 8")
    a(f"s_add_u32 {s(sWO)}, {s(sWO)}, {256 * 512}")
    a(f"s_add_u32 {s(sWO)}, {s(sWO)}, {s(sT0)}")
    a("s_waitcnt lgkmcnt(0)")
    a.stamp()
    srd(a, S_DST, 12, E * 4)
    a(f"buffer_load_dword {v(vDST)}, {v(vT1)}, {s(S_DST, 4)}, 0 offen")
    srd(a, S_SRC, 10, E * 4)
    a(f"buffer_load_dword {v(vSRC)}, {v(vT1)}, {s(S_SRC, 4)}, 0 offen")
    srd(a, S_EA, 8, E * 2)
    a(f"buffer_load_ushort {v(vEA)}, {v(vT0)}, {s(S_EA, 4)}, 0 offen")
    srd(a, S_H, 4, H_SIZE)
    srd(a, S_WE, 14, WE_SIZE)
    a("s_barrier")

    def dma_items(kh):
        items = []
        for j in range(2):
            items.append([f"s_add_u32 m0, {s(sLB)}, {LH + HALF_H * kh + 10240 * j}",
                          f"s_add_u32 {s(sT1)}, {s(sHO)}, {20480 * j + 256 * kh}",
                          f"buffer_load_dwordx4 {v(vDH + (j & 1))}, {s(S_H, 4)}, {s(sT1)} offen lds"])
        for j in range(4):
            it = [f"s_add_u32 m0, {s(sLB)}, {LW + HALF_W * kh + 10240 * j}",
                  f"s_add_u32 {s(sT1)}, {s(sWO)}, {20480 * j + 65536 * kh}",
                  f"buffer_load_dwordx4 {v(vDW + (j & 1))}, {s(S_WE, 4)}, {s(sT1)} offen lds"]
            if j == 3:
                it = [f"s_cmp_ge_u32 {s(sWV)}, 2", f"s_cbranch_scc1 K1_ND{kh}"] + it + [f"K1_ND{kh}:"]
            items.append(it)
        return items

    a(f"s_lshl_b32 {s(sLB)}, {s(sWV)}, 10")
    d0, d1 = dma_items(0), dma_items(1)
    first = d0
    for it in first:
        for ln in it:
            a(ln)
    a.stamp()
    a(f"s_waitcnt vmcnt(5)")
    a.stamp()
    a(f"v_lshrrev_b32 {v(vT0)}, 3, {v(vDST)}")
    a(f"v_lshlrev_b32 {v(vBIN)}, 2, {v(vT0)}")
    a(f"v_add_u32 {v(vBIN)}, {LBINS}, {v(vBIN)}")
    a(f"s_cmp_lt_u32 s2, {NC}")
    a(f"s_cselect_b32 {s(sT0)}, 1, 0")
    a(f"v_mov_b32 {v(vT1)}, {s(sT0)}")
    a(f"ds_add_rtn_u32 {v(vRANK)}, {v(vBIN)}, {v(vT1)}")

    srd(a, S_WS, 20, WS_USED)
    a(f"s_lshl_b32 {s(sT1)}, s2, 11")
    a(f"s_add_u32 {s(sT1)}, {s(sT1)}, {FR_OFF - FRAG_WAVE * 1024}")
    a(f"v_lshl_add_u32 {v(vFA)}, v0, 4, {s(sT1)}")
    a(f"s_sub_u32 {s(sT0)}, {s(sWV)}, {FRAG_WAVE}")
    a(f"s_cmp_lt_u32 {s(sT0)}, 2")
    a(f"s_cselect_b32 {s(sFRAG)}, 1, 0")
    a(f"s_cmp_lt_u32 s2, 192")
    a(f"s_cselect_b32 {s(sFRAG)}, {s(sFRAG)}, 0")
    a(f"s_cmp_eq_u32 {s(sFRAG)}, 0")
    a("s_cbranch_scc1 K1_NOFRAG")
    a(f"s_cmp_lt_u32 s2, 64")
    a(f"s_cselect_b32 {s(S_WH)}, s14, s18")
    a(f"s_cselect_b32 {s(S_WH + 1)}, s15, s19")
    a(f"s_cselect_b32 {s(sT2)}, 1, 0")
    a(f"s_and_b32 {s(S_WH + 1)}, {s(S_WH + 1)}, 0xffff")
    a(f"s_mov_b32 {s(S_WH + 2)}, {WH_SIZE}")
    a(f"s_mov_b32 {s(S_WH + 3)}, 0x20000")
    a(f"s_and_b32 {s(sT1)}, s2, 63")
    a(f"s_lshl_b32 {s(sT1)}, {s(sT1)}, 1")
    a(f"s_add_u32 {s(sT0)}, {s(sT0)}, {s(sT1)}")
    a(f"s_and_b32 {s(sT1)}, {s(sT0)}, 8")
    a(f"s_lshl_b32 {s(sT2)}, {s(sT1)}, {s(sT2)}")
    a(f"s_lshr_b32 {s(sT1)}, {s(sT0)}, 4")
    a(f"s_lshl_b32 {s(sT1)}, {s(sT1)}, 6")
    a(f"s_add_u32 {s(sT1)}, {s(sT1)}, {s(sT2)}")
    a(f"s_and_b32 {s(sT0)}, {s(sT0)}, 7")
    a(f"s_lshl_b32 {s(sT0)}, {s(sT0)}, 14")
    a(f"s_add_u32 {s(sT1)}, {s(sT1)}, {s(sT0)}")
    a(f"v_and_b32 {v(vT1)}, 3, {v(vLANE)}")
    a(f"v_bfe_u32 {v(vT2)}, {v(vLANE)}, 2, 2")
    a(f"v_lshl_or_b32 {v(vT3)}, {v(vT2)}, 3, {v(vT1)}")
    a(f"s_cmp_ge_u32 s2, 64")
    a("s_cbranch_scc1 K1_FCOL")
    a(f"v_bfe_u32 {v(vT2)}, {v(vLANE)}, 2, 1")
    a(f"v_lshl_or_b32 {v(vT1)}, {v(vT2)}, 4, {v(vT1)}")
    a(f"v_bfe_u32 {v(vT2)}, {v(vLANE)}, 3, 1")
    a(f"v_lshl_or_b32 {v(vT3)}, {v(vT2)}, 2, {v(vT1)}")
    a.label("K1_FCOL")
    a(f"v_lshlrev_b32 {v(vT1)}, 1, {v(vT3)}")
    a(f"v_lshrrev_b32 {v(vT2)}, 4, {v(vLANE)}")
    a(f"s_cmp_ge_u32 s2, 128")
    a(f"s_cselect_b32 {s(sT2)}, 11, 12")
    a(f"s_cselect_b32 {s(sSO)}, 6144, 0")
    a(f"s_cselect_b32 {s(sT0)}, {256 * 512}, 0")
    a(f"s_add_u32 {s(sT1)}, {s(sT1)}, {s(sT0)}")
    a(f"v_lshlrev_b32 {v(vT2)}, {s(sT2)}, {v(vT2)}")
    a(f"v_add3_u32 {v(vT1)}, {v(vT1)}, {v(vT2)}, {s(sT1)}")
    for t in range(8):
        so = "0" if t < 4 else s(sSO)
        a(f"buffer_load_ushort {v(vFL + t)}, {v(vT1)}, {s(S_WH, 4)}, {so} offen offset:{t * 512}")
    a.label("K1_NOFRAG")

    a(f"v_mul_u32_u24 {v(vT1)}, 52429, {v(vT0)}")
    a(f"v_lshrrev_b32 {v(vT1)}, 18, {v(vT1)}")
    a(f"v_mul_u32_u24 {v(vT1)}, 5, {v(vT1)}")
    a(f"v_sub_u32 {v(vT0)}, {v(vT0)}, {v(vT1)}")
    a(f"v_and_b32 {v(vT1)}, 7, {v(vDST)}")
    a(f"v_lshl_or_b32 {v(vT1)}, {v(vT0)}, 3, {v(vT1)}")
    a(f"v_lshlrev_b32 {v(vREC)}, 9, {v(vSRC)}")
    a(f"v_lshl_or_b32 {v(vEA)}, {v(vT1)}, 16, {v(vEA)}")
    a(f"s_cmp_ge_u32 {s(sWV)}, 5")
    a(f"s_cselect_b32 {s(sT0)}, 1, 0")
    a(f"s_cselect_b32 {s(sT1)}, 5, 0")
    a(f"s_sub_u32 {s(sT1)}, {s(sWV)}, {s(sT1)}")
    a(f"v_and_b32 {v(vT0)}, 15, {v(vLANE)}")
    a(f"v_lshrrev_b32 {v(vT1)}, 4, {v(vLANE)}")
    a(f"v_xor_b32 {v(vT2)}, {v(vT0)}, {v(vT1)}")
    a(f"v_lshlrev_b32 {v(vT2)}, 4, {v(vT2)}")
    a(f"v_lshl_or_b32 {v(vT2)}, {v(vT0)}, 8, {v(vT2)}")
    a(f"s_lshl_b32 {s(sT2)}, {s(sT1)}, 12")
    a(f"v_add_u32 {v(vHB)}, {s(sT2)}, {v(vT2)}")
    for k in range(1, 4):
        a(f"v_xor_b32 {v(vHB + k)}, {64 * k}, {v(vHB)}")
    a(f"v_bfe_u32 {v(vT0)}, {v(vLANE)}, 2, 2")
    a(f"v_lshl_or_b32 {v(vT2)}, {v(vT1)}, 3, {v(vT0)}")
    a(f"v_lshlrev_b32 {v(vT2)}, 8, {v(vT2)}")
    a(f"v_and_b32 {v(vT1)}, 1, {v(vT1)}")
    a(f"v_xor_b32 {v(vT1)}, {s(sT0)}, {v(vT1)}")
    a(f"v_lshl_or_b32 {v(vT0)}, {v(vT1)}, 2, {v(vT0)}")
    a(f"v_lshl_or_b32 {v(vT2)}, {v(vT0)}, 5, {v(vT2)}")
    a(f"v_and_b32 {v(vT0)}, 3, {v(vLANE)}")
    a(f"v_lshl_or_b32 {v(vT2)}, {v(vT0)}, 3, {v(vT2)}")
    a(f"v_add_u32 {v(vWB)}, {LW}, {v(vT2)}")
    for ti in range(1, 4):
        a(f"v_xor_b32 {v(vWB + ti)}, {32 * ti}, {v(vWB)}")
    a(f"s_mul_i32 {s(sSO)}, {s(sRB)}, 80")
    a(f"s_lshl_b32 {s(sT1)}, {s(sT1)}, 4")
    a(f"s_add_u32 {s(sSO)}, {s(sSO)}, {s(sT1)}")
    a(f"s_lshl_b32 {s(sSO)}, {s(sSO)}, 9")
    a(f"s_lshl_b32 {s(sT1)}, {s(sCB)}, 1")
    a(f"s_add_u32 {s(sT0)}, {s(sT0)}, {s(sT1)}")
    a(f"s_lshl_b32 {s(sT0)}, {s(sT0)}, 7")
    a(f"s_add_u32 {s(sSO)}, {s(sSO)}, {s(sT0)}")
    a(f"v_and_b32 {v(vT0)}, 15, {v(vLANE)}")
    a(f"v_lshrrev_b32 {v(vT1)}, 4, {v(vLANE)}")
    a(f"v_and_b32 {v(vT2)}, 7, {v(vLANE)}")
    a(f"v_xor_b32 {v(vT1)}, {v(vT1)}, {v(vT2)}")
    a(f"v_lshlrev_b32 {v(vT1)}, 4, {v(vT1)}")
    a(f"v_lshl_or_b32 {v(vT1)}, {v(vT0)}, 7, {v(vT1)}")
    a(f"s_lshl_b32 {s(sT0)}, {s(sWV)}, 11")
    a(f"v_add_u32 {v(vOA + 1)}, {s(sT0)}, {v(vT1)}")
    a(f"v_lshrrev_b32 {v(vT0)}, 3, {v(vLANE)}")
    a(f"v_xor_b32 {v(vT1)}, {v(vT0)}, {v(vT2)}")
    a(f"v_lshlrev_b32 {v(vT1)}, 4, {v(vT1)}")
    a(f"v_lshl_or_b32 {v(vT1)}, {v(vT0)}, 7, {v(vT1)}")
    a(f"v_add_u32 {v(vOA + 2)}, {s(sT0)}, {v(vT1)}")
    a(f"v_lshlrev_b32 {v(vT2)}, 4, {v(vT2)}")
    a(f"v_lshl_or_b32 {v(vOA)}, {v(vT0)}, 9, {v(vT2)}")
    a(f"s_and_b32 {s(sT0)}, s2, 7")
    a(f"s_lshl_b32 {s(sT0)}, {s(sT0)}, 8")
    a(f"s_and_b32 {s(sT1)}, s2, 0xf8")
    a(f"s_add_u32 {s(sT0)}, {s(sT0)}, {s(sT1)}")
    a(f"v_lshl_add_u32 {v(vDA)}, {v(vLANE)}, 13, {s(sT0)}")
    a(f"s_cmp_eq_u32 {s(sFRAG)}, 0")
    a("s_cbranch_scc1 K1_W0")
    a(f"s_waitcnt vmcnt(8) lgkmcnt(0)")
    a("s_branch K1_W1")
    a.label("K1_W0")
    a(f"s_waitcnt vmcnt(0) lgkmcnt(0)")
    a.label("K1_W1")
    a(f"v_lshl_or_b32 {v(vREC + 1)}, {v(vRANK)}, 22, {v(vEA)}")
    a("s_barrier")
    late = d1
    NPRE = int(os.environ.get("NPRE", "2"))
    for it in late[:NPRE]:
        for ln in it:
            a(ln)
    late = late[NPRE:]
    a.stamp()
    a(f"s_cmp_lg_u32 {s(sWV)}, {SCAN_WAVE}")
    a("s_cbranch_scc1 K1_NOSCAN")
    a(f"v_mul_u32_u24 {v(vT0)}, 80, {v(vLANE)}")
    a(f"v_add_u32 {v(vT0)}, {LBINS}, {v(vT0)}")
    for i in range(5):
        a(f"ds_read_b128 {v(vA + 4 * i, 4)}, {v(vT0)} offset:{16 * i}")
    a("s_waitcnt lgkmcnt(0)")
    for i in range(1, 20):
        a(f"v_add_u32 {v(vA + i)}, {v(vA + i - 1)}, {v(vA + i)}")
    a(f"v_mov_b32 {v(vT1)}, {v(vA + 19)}")
    wave_scan(a, vT1)
    a(f"v_sub_u32 {v(vQ)}, {v(vT1)}, {v(vA + 19)}")
    for i in range(1, 21):
        a(f"v_add_u32 {v(vQ + i)}, {v(vQ)}, {v(vA + i - 1)}")
    for i in range(5):
        a(f"ds_write_b128 {v(vT0)}, {v(vQ + 4 * i, 4)} offset:{16 * i}")
    for j in range(4):
        for hl in range(2):
            r = vQ + 5 * j + 3 * hl
            d = vDESC + 2 * j + hl
            a(f"v_lshl_or_b32 {v(d)}, {v(r + 1)}, 10, {v(r)}")
            a(f"v_lshl_or_b32 {v(d)}, {v(r + 2)}, 20, {v(d)}")
    a("s_waitcnt lgkmcnt(0)")
    a.label("K1_NOSCAN")
    a.stamp()

    def reads(kk):
        b, kh, k4 = kk & 1, kk >> 2, kk & 3
        out = [f"ds_read_b128 {v(vHF + 4 * b, 4)}, {v(vHB + k4)} offset:{HALF_H * kh}"]
        for ti in range(4):
            for half in range(2):
                out.append(f"ds_read_b64_tr_b16 {v(vWF + 16 * b + 4 * ti + 2 * half, 2)}, {v(vWB + ti)} offset:{HALF_W * kh + 8192 * k4 + 1024 * half}")
        return out

    def gemm_half(kh):
        for ln in reads(4 * kh):
            a(ln)
        for kk in range(4 * kh, 4 * kh + 4):
            b = kk & 1
            a("s_waitcnt lgkmcnt(0)")
            nxt = reads(kk + 1) if (kk & 3) < 3 else []
            for ti in range(4):
                d = vACC + 4 * ti
                for _ in range(3):
                    if nxt:
                        a(nxt.pop(0))
                a(f"v_mfma_f32_16x16x32_bf16 {v(d, 4)}, {v(vWF + 16 * b + 4 * ti, 4)}, {v(vHF + 4 * b, 4)}, {'0' if kk == 0 else v(d, 4)}")
                if late and ti & 1:
                    for ln in late.pop(0):
                        a(ln)

    def middle(tag):
        a("s_waitcnt vmcnt(0)")
        a("s_barrier")
        a.stamp()
        a(f"ds_read_b32 {v(vT0)}, {v(vBIN)}")
        srd_off(a, S_SRC, 20, REC_OFF, REC_SIZE)
        a(f"s_mul_i32 {s(sT0)}, s2, {CH * 8}")
        a("s_waitcnt lgkmcnt(0)")
        a(f"v_add_lshl_u32 {v(vT0)}, {v(vT0)}, {v(vRANK)}, 3")
        a(f"buffer_store_dwordx2 {v(vREC, 2)}, {v(vT0)}, {s(S_SRC, 4)}, {s(sT0)} offen {os.environ.get('F2', '')}")
        a(f"s_cmp_lg_u32 {s(sWV)}, {SCAN_WAVE}")
        a(f"s_cbranch_scc1 K1_NOREC{tag}")
        srd_off(a, S_DESC, 20, DESC_OFF, DESC_SIZE)
        for j in range(4):
            a(f"s_mov_b32 {s(sT0)}, {j * DESC_ROW}")
            a(f"buffer_store_dwordx2 {v(vDESC + 2 * j, 2)}, {v(vDA)}, {s(S_DESC, 4)}, {s(sT0)} offen {os.environ.get('F2', '')}")
        a.label(f"K1_NOREC{tag}")
        a.stamp()

    def frag_out():
        a(f"s_cmp_eq_u32 {s(sFRAG)}, 0")
        a("s_cbranch_scc1 K1_NOFST")
        for p in range(4):
            a(f"v_lshl_or_b32 {v(vFP + p)}, {v(vFL + 2 * p + 1)}, 16, {v(vFL + 2 * p)}")
        a(f"buffer_store_dwordx4 {v(vFP, 4)}, {v(vFA)}, {s(S_WS, 4)}, 0 offen {os.environ.get('F1', '')}")
        a.label("K1_NOFST")

    def scale_pack():
        a(f"s_mov_b32 {s(sC)}, {LOG2E}")
        a(f"s_mov_b32 {s(sC + 1)}, {LOG2E}")
        for p in range(8):
            a(f"v_pk_mul_f32 {v(vACC + 2 * p, 2)}, {v(vACC + 2 * p, 2)}, {s(sC, 2)}")
        for p in range(8):
            a(f"v_cvt_pk_bf16_f32 {v(vOUT + p)}, {v(vACC + 2 * p)}, {v(vACC + 2 * p + 1)}")

    def b_out():
        a.stamp()
        srd_off(a, S_OUT, 20, BP_OFF, BP_SIZE)
        a("s_nop 0")
        scale_pack()
        a(f"v_xor_b32 {v(vT0)}, 64, {v(vOA + 1)}")
        a(f"ds_write_b128 {v(vOA + 1)}, {v(vOUT, 4)}")
        a(f"ds_write_b128 {v(vT0)}, {v(vOUT + 4, 4)}")
        a(f"ds_read_b128 {v(vOUT + 8, 4)}, {v(vOA + 2)}")
        a(f"ds_read_b128 {v(vOUT + 12, 4)}, {v(vOA + 2)} offset:1024")
        a(f"s_add_u32 {s(sT0)}, {s(sSO)}, 4096")
        a("s_waitcnt lgkmcnt(1)")
        a(f"buffer_store_dwordx4 {v(vOUT + 8, 4)}, {v(vOA)}, {s(S_OUT, 4)}, {s(sSO)} offen {os.environ.get('F1', '')}")
        a("s_waitcnt lgkmcnt(0)")
        a(f"buffer_store_dwordx4 {v(vOUT + 12, 4)}, {v(vOA)}, {s(S_OUT, 4)}, {s(sT0)} offen {os.environ.get('F1', '')}")

    def finish():
        a.stamp()
        if a.stamps:
            a("s_waitcnt vmcnt(0)")
        a.stamp()
        a.stamp(True)
        if a.stamps:
            srd(a, S_WS, 20, 16 << 20)
        a.dump_stamps(S_WS, STAMP1_OFF, 0, sWV, sT0)

    gemm_half(0)
    middle("")
    srd(a, S_EA, 6, POS_SIZE)
    a(f"s_lshr_b32 {s(sT0)}, s2, 3")
    a(f"s_lshl_b32 {s(sT0)}, {s(sT0)}, 11")
    a(f"v_lshlrev_b32 {v(vT1)}, 2, v0")
    a(f"buffer_load_dword {v(vT2)}, {v(vT1)}, {s(S_EA, 4)}, {s(sT0)} offen")
    gemm_half(1)
    b_out()
    frag_out()
    finish()
    a.label("K1_END")
    a("s_endpgm")
    return dict(name="prep_kernel", vgpr=124, sgpr=96, grid=256, block=640, lds=K1_LDS)
```

```python
import os
from asmlib import Asm, v, s
from cfg import *
from k1 import srd, srd_off

NTMAX = 52
CAP = NTMAX * 16
LIMIT = CAP - 75
XT = 384
LS = 0
LX = LS + NTMAX * 1024
LL = LX + NTMAX * XT
LE = LL + (CAP + 64) * 4
LZ = LE + CAP * 4
LPOS = LZ + 512
LWX = LPOS + 6 * 512
LTOT = LWX + 512
LPD = LTOT + 128
LM = LPD + 256
MROW = 528
LH = (LM + 48 * MROW + 255) // 256 * 256
LR = LH + 40 * 512
RING = 4096
K2_LDS = LR + 8 * RING
assert LM % 16 == 0 and LR % 64 == 0 and LZ % 16 == 0 and K2_LDS <= 163840
MARK = 0x40000000
SPLIT_NUM = int(os.environ.get("SPLIT", "42"))

YA, YB, EA_, EB = 0, 16, 32, 48
ACC, MP, AF, X2, SP, LST = 64, 96, 104, 112, 120, 124
Y2Q, Y2C, Y2K, ID, QUA, ZER = 128, 148, 152, 156, 164, 168
vS, vL, vX1, vX2, vXS, vR0, vG, vR1, vMA, vWXA, vT0, vT1, vLN, vTID = range(172, 186)
vHB = 186
WH2 = 192
T = WH2
S_BP, S_REC, S_DESC, S_FR, S_H, S_POS, S_OUT, S_TMP = 24, 28, 32, 36, 40, 44, 48, 52
sK3, sK2, sK1, sIT = 56, 57, 58, 59
sWV, sQ, sST, sFIRST, sSLOW, sLO, sTOT = 60, 61, 62, 63, 64, 65, 66
sTB = 67
sINIT = 73
sMASK = 74
sREM, sPEND, sGA, sRB, sT0, sT1, sT2, sT3 = 76, 77, 78, 79, 80, 81, 82, 83
sC0 = 84
sWB, sTL, sBT, sPS = 86, 87, 88, 89
sE0, sE1 = 90, 92
sWRT, sGX, sW1 = 23, 21, 99
sSTR = 100

uid = [0]


def fresh():
    uid[0] += 1
    return uid[0]


def emit(a, lines):
    for ln in lines:
        a(ln)


def group_of(a, dst, tile):
    a(f"s_mov_b32 {s(dst)}, 0")
    for g in range(1, 5):
        a(f"s_cmp_ge_u32 {s(tile)}, {s(sTB + g)}")
        a(f"s_addc_u32 {s(dst)}, {s(dst)}, 0")


def tile_index(a, off):
    a(f"s_sub_u32 {s(sTL)}, {s(sPEND)}, {s(sREM)}")
    a(f"s_lshl_b32 {s(sTL)}, {s(sTL)}, 1")
    a(f"s_add_u32 {s(sTL)}, {s(sTL)}, {(off - 2) & 0xffffffff}")


def mf32(d, x, y, c):
    return f"v_mfma_f32_32x32x16_bf16 {v(d, 16)}, {v(x, 4)}, {v(y, 4)}, {c if c == '0' else v(c, 16)}"


def mf16(d, x, y, c):
    return f"v_mfma_f32_16x16x32_bf16 {v(d, 4)}, {v(x, 4)}, {v(y, 4)}, {c if c == '0' else v(c, 4)}"


def p_mfmas(Y):
    return [mf32(Y, AF, ID, "0"), mf32(Y, AF + 4, ID + 4, Y), mf32(Y, X2, Y2C, Y), mf32(Y, X2 + 4, Y2K, Y)]


S1, S2 = mf32(ACC, MP, SP, ACC), mf32(ACC + 16, MP + 4, SP, ACC + 16)


def flush(b, F):
    n = fresh()
    b(f"s_cmp_lg_u32 {s(sSLOW)}, 0")
    b(f"s_cbranch_scc1 K2_FA{n}")
    b.label(f"K2_FB{n}")
    b(f"s_mul_i32 {s(sT0)}, {s(sGA)}, {8 * MROW}")
    b(f"s_lshl_b32 {s(sT1)}, {s(sGA)}, 9")
    b(f"s_lshl_b32 {s(sT2)}, {s(sQ)}, 7")
    b(f"s_add_u32 {s(sT1)}, {s(sT1)}, {s(sT2)}")
    b(f"s_add_u32 {s(sT1)}, {s(sT1)}, {LPOS}")
    for st in range(2):
        for p in range(8):
            b(f"v_cvt_pk_bf16_f32 {v(F + 8 * st + p)}, {v(ACC + 16 * st + 2 * p)}, {v(ACC + 16 * st + 2 * p + 1)}")
        if st == 0:
            for k in range(4):
                b(f"ds_read_b128 {v(ACC + 4 * k, 4)}, {v(vWXA)} offset:{32 * k}")
    b(f"v_add_u32 {v(vT0)}, {s(sT0)}, {v(vMA)}")
    b(f"v_lshl_add_u32 {v(vT1)}, {v(vLN)}, 2, {s(sT1)}")
    b("s_waitcnt lgkmcnt(0)")
    for k in range(4):
        b(mf32(ACC + 16, ACC + 4 * k, F + 4 * k, "0" if k == 0 else ACC + 16))
    b(f"s_mov_b64 exec, {s(sE0, 2)}")
    for st in range(2):
        for p in range(4):
            b(f"ds_write_b64 {v(vT0)}, {v(F + 8 * st + 2 * p, 2)} offset:{64 * st + 16 * p}")
    b(f"s_mov_b64 exec, {s(sE1, 2)}")
    b(f"s_cmp_lg_u32 {s(sSLOW)}, 0")
    b(f"s_cbranch_scc1 K2_FC{n}")
    b(f"ds_write_b32 {v(vT1)}, {v(ACC + 16)}")
    b.label(f"K2_FD{n}")
    b("s_mov_b64 exec, -1")
    o = Asm()
    o.label(f"K2_FA{n}")
    o(f"s_lshl_b32 {s(sT0)}, {s(sGA)}, 13")
    o(f"s_lshl_b32 {s(sT1)}, {s(sQ)}, 8")
    o(f"s_add_u32 {s(sT0)}, {s(sT0)}, {s(sT1)}")
    o(f"v_and_b32 {v(vT0)}, 7, {v(vLN)}")
    o(f"v_lshrrev_b32 {v(vT1)}, 5, {v(vLN)}")
    o(f"v_lshlrev_b32 {v(vT1)}, 4, {v(vT1)}")
    o(f"v_lshl_or_b32 {v(vT0)}, {v(vT0)}, 10, {v(vT1)}")
    o(f"s_mov_b64 exec, {s(sE0, 2)}")
    for st in range(2):
        for k in range(4):
            o(f"buffer_load_dwordx4 {v(F + 4 * k, 4)}, {v(vT0)}, {s(S_TMP, 4)}, {s(sT0)} offen offset:{128 * st + 32 * k} sc1")
        o("s_waitcnt vmcnt(0)")
        for p in range(8):
            o(f"v_pk_add_f32 {v(F + 2 * p, 2)}, {v(F + 2 * p, 2)}, {v(ACC + 16 * st + 2 * p, 2)}")
        for k in range(4):
            o(f"buffer_store_dwordx4 {v(F + 4 * k, 4)}, {v(vT0)}, {s(S_TMP, 4)}, {s(sT0)} offen offset:{128 * st + 32 * k}")
        o("s_waitcnt vmcnt(0)")
    o("s_mov_b64 exec, -1")
    o(f"s_branch K2_FB{n}")
    o.label(f"K2_FC{n}")
    o(f"ds_add_f32 {v(vT1)}, {v(ACC + 16)}")
    o(f"s_branch K2_FD{n}")
    return o.lines


def wh2_part(o, n, done):
    o(f"v_lshlrev_b32 {v(vT0)}, 4, {v(vLN)}")
    o(f"s_lshl_b32 {s(sT0)}, {s(sIT)}, 12")
    o(f"s_add_u32 {s(sT0)}, {s(sT0)}, {s(sWB)}")
    o(f"s_add_u32 {s(sIT)}, {s(sIT)}, 1")
    for part in range(4):
        if part < 3:
            o(f"s_cmp_lg_u32 {s(sIT)}, {part + 1}")
            o(f"s_cbranch_scc1 K2_W{n}_{part + 1}")
        for f in range(4):
            o(f"buffer_load_dwordx4 {v(WH2 + 16 * part + 4 * f, 4)}, {v(vT0)}, {s(S_FR, 4)}, {s(sT0)} offen offset:{1024 * f}")
        o(f"s_branch {done}")
        if part < 3:
            o.label(f"K2_W{n}_{part + 1}")


def site(off_s, off_p, F):
    n = fresh()
    bits = (0 if off_s is None else 1 << (off_s + 1)) | (0 if off_p is None else 1 << (off_p + 1))
    chk = [f"s_and_b32 {s(sT0)}, {s(sMASK)}, {bits}", f"s_cbranch_scc1 K2_H{n}", f"K2_R{n}:"]
    o = Asm()
    far = []
    o.label(f"K2_H{n}")
    if off_s is not None:
        if off_p is not None:
            o(f"s_bitcmp1_b32 {s(sMASK)}, {off_s + 1}")
            o(f"s_cbranch_scc0 K2_HP{n}")
        o(f"s_cmp_eq_u32 {s(sGA)}, -1")
        o(f"s_cbranch_scc1 K2_H0{n}")
        far = flush(o, F)
        tile_index(o, off_s)
        group_of(o, sGA, sTL)
        o.label(f"K2_HZ{n}")
        o(mf32(ACC, QUA, ZER, "0"))
        o(mf32(ACC + 16, QUA, ZER, "0"))
    if off_p is not None:
        if off_s is not None:
            o(f"s_bitcmp1_b32 {s(sMASK)}, {off_p + 1}")
            o(f"s_cbranch_scc0 K2_HD{n}")
        o.label(f"K2_HP{n}")
        tile_index(o, off_p)
        group_of(o, sT0, sTL)
        o(f"s_lshl_b32 {s(sT0)}, {s(sT0)}, 2")
        o(f"s_set_gpr_idx_on {s(sT0)}, gpr_idx(SRC0)")
        for i in range(4):
            o(f"v_mov_b32 {v(Y2C + i)}, {v(Y2Q + i)}")
        o("s_set_gpr_idx_off")
        o(f"s_mov_b32 m0, {s(sRB)}")
    o.label(f"K2_HD{n}")
    if "x" in os.environ.get("ABL", ""):
        o(f"s_branch K2_R{n}")
    o(f"s_cmp_ge_u32 {s(sIT)}, 4")
    o(f"s_cbranch_scc1 K2_R{n}")
    wh2_part(o, n, f"K2_R{n}")
    if off_s is not None:
        o.label(f"K2_H0{n}")
        o(f"s_mov_b32 {s(sGA)}, {s(sINIT)}")
        o(f"s_branch K2_HZ{n}")
    return chk, o.lines + far


def dma(slot):
    so = [s(sK3), s(sK2), s(sK1), "0"]
    return [f"buffer_load_dwordx4 {v(LST + 2 * slot + i)}, {s(S_BP, 4)}, {so[2 * slot + i]} offen offset:{2048 * slot + 1024 * i} lds" for i in range(2)]


LST_ADD = [f"v_pk_add_f32 {v(LST + 2 * i, 2)}, {v(LST + 2 * i, 2)}, {v(vG, 2)} op_sel_hi:[1,0]" for i in range(2)]


def frag_reads(slot):
    return [f"ds_read_b128 {v(AF, 4)}, {v(vR0)} offset:{slot * 2048}",
            f"ds_read_b128 {v(AF + 4, 4)}, {v(vR1)} offset:{slot * 2048}",
            f"ds_read_b128 {v(X2, 4)}, {v(vX1)} offset:{slot * XT}",
            f"ds_read_b64 {v(X2 + 4, 2)}, {v(vX2)} offset:{slot * XT}"]


def list_read(ahead):
    return f"ds_read2_b64 {v(LST, 4)}, {v(vL)} offset0:{16 * ahead} offset1:{16 * ahead + 8}"


ADV_X = f"v_pk_add_f32 {v(vX1, 2)}, {v(vX1, 2)}, {v(vXS, 2)} op_sel_hi:[1,0]"
ADV_S = f"v_pk_add_f32 {v(vS, 2)}, {v(vS, 2)}, {s(sSTR, 2)}"


def exps(Y, Ex):
    return [f"v_exp_f32 {v(Ex + i)}, -{v(Y + i)}" for i in range(16)]


def rcps(Ex):
    return [f"v_rcp_f32 {v(Ex + i)}, {v(Ex + i)}" for i in range(16)]


def pkmuls(Y, Ex):
    return [f"v_pk_mul_f32 {v(Ex + 2 * i, 2)}, {v(Ex + 2 * i, 2)}, {v(Y + 2 * i, 2)}" for i in range(8)]


def cvts(Ex):
    return [f"v_cvt_pk_bf16_f32 {v(MP + i)}, {v(Ex + 2 * i)}, {v(Ex + 2 * i + 1)}" for i in range(8)]


def plus_one(Ex):
    return mf32(Ex, QUA, QUA, Ex)


def place(main, items):
    out = []
    for i, ins in enumerate(main + [None]):
        for pos, lines in items:
            if pos == i:
                out.extend(lines if isinstance(lines, list) else [lines])
        if ins is not None:
            out.append(ins)
    return out


def loop_body(far, mm=(0, 6, 10, 13, 16, 19), dm=(2, 4), op=2, r0=7, r1=14, pw=11, prio=True):
    hi = ["s_setprio 3"] if prio else []
    lo = ["s_setprio 0"] if prio else []
    chk, o = site(-1, 1, YB)
    far.extend(o)
    m, d = p_mfmas(YB) + [S1, S2], dma(1)
    blk = place(cvts(EB) + exps(YA, EA_) + exps(YB, EB), [(0, lo + ["s_waitcnt lgkmcnt(0)"] + chk)] +
                [(mm[i], m[i]) for i in range(6)] + [(dm[0], d[0]), (dm[1], d[1])] +
                [(mm[5] + 1, [f"ds_read_b128 {v(SP, 4)}, {v(vS)}", list_read(2)]), (24 + op, plus_one(EA_))])
    blk += place(rcps(EA_) + pkmuls(YA, EA_) + LST_ADD, [
        (op, plus_one(EB)), (r0, ["s_waitcnt vmcnt(2) lgkmcnt(0)"] + frag_reads(0)), (pw, hi)])
    chk, o = site(0, 2, YA)
    far.extend(o)
    m, d = p_mfmas(YA) + [S1, S2], dma(0)
    blk += place(cvts(EA_) + rcps(EB) + pkmuls(YB, EB) + [ADV_S, ADV_X], [(0, lo + ["s_waitcnt lgkmcnt(0)"] + chk)] +
                 [(mm[i], m[i]) for i in range(6)] + [(dm[0], d[0]), (dm[1], d[1])] +
                 [(r1, ["s_waitcnt vmcnt(2)"] + frag_reads(1)),
                  (r1 + 3, [f"s_lshr_b64 {s(sMASK, 2)}, {s(sMASK, 2)}, 2", f"s_sub_u32 {s(sREM)}, {s(sREM)}, 1"]),
                  (mm[5] + 1, [f"ds_read_b128 {v(SP, 4)}, {v(vS)} offset:1024"] + hi)])
    return blk


def spread(main, extra):
    n, k = len(main), len(extra)
    return place(main, [(min(n, (i * n) // k + (n // k) // 2), x) for i, x in enumerate(extra)])


def capture(fn):
    b = Asm()
    fn(b)
    return b.lines


def colmap_v(a, dst, src, tmp):
    a(f"v_and_b32 {v(dst)}, 0x23, {v(src)}")
    a(f"v_bfe_u32 {v(tmp)}, {v(src)}, 2, 1")
    a(f"v_lshl_or_b32 {v(dst)}, {v(tmp)}, 4, {v(dst)}")
    a(f"v_bfe_u32 {v(tmp)}, {v(src)}, 3, 2")
    a(f"v_lshl_or_b32 {v(dst)}, {v(tmp)}, 2, {v(dst)}")


def gen_k2(a, stamps=False):
    if stamps:
        a.stamps = (94, [96, 97, 98] + list(range(4, 20)))
    tDL, tDH, tN, tO0, tP2, tRA = T, T + 1, T + 2, T + 3, T + 4, T + 5
    tA, tB, tT = T + 6, T + 7, T + 8
    tF = T + 9
    tV = T + 10
    tR = T + 12
    tWD, tWE, tWX, tPP = T + 20, T + 21, T + 22, T + 23
    t0, t1, t2, t3, t4, t5 = range(T + 24, T + 30)
    tW, tM = T + 36, T + 38
    tPS, tPD = T + 40, T + 44
    tAS, tAX, tI = T + 48, T + 49, T + 51
    tH = T + 60
    AG, HF = ACC, ACC + 24
    far = []

    def lane_setup():
        a(f"v_lshrrev_b32 {v(t0)}, 1, {v(vLN)}")
        a(f"s_lshl_b32 {s(sT0)}, {s(sWV)}, 8")
        a(f"v_lshl_add_u32 {v(t2)}, {v(t0)}, 3, {s(sT0)}")
        a(f"v_lshl_add_u32 {v(tRA)}, {v(t0)}, 3, {s(sWV)}")

    def lane_setup2():
        a(f"v_mul_u32_u24 {v(tRA)}, {CH}, {v(tRA)}")
        a(f"v_and_b32 {v(tP2)}, 1, {v(vLN)}")
        a(f"v_lshlrev_b32 {v(tP2)}, 1, {v(tP2)}")
        a(f"v_lshlrev_b32 {v(tF)}, 4, {v(vLN)}")

    def w1_load(kk, ct):
        page = 2 * ct + (kk >> 2)
        return f"buffer_load_dwordx4 {v(8 * kk + 4 * ct, 4)}, {v(tF if page == 0 else T + 52 + page)}, {s(S_FR, 4)}, {s(sW1)} offen offset:{1024 * (kk & 3)}"

    def w1_pages():
        for page in range(1, 4):
            a(f"v_add_u32 {v(T + 52 + page)}, {4096 * page}, {v(tF)}")

    W1L = [w1_load(kk, ct) for kk in range(8) for ct in range(2)]

    def lds_init(b, first):
        b(f"v_lshlrev_b32 {v(t4)}, 4, {v(vTID)}")
        b(f"v_add_u32 {v(t5)}, 65536, {v(t4)}")
        total = LL // 16
        assert total // 512 == 8 and (LWX - LZ) // 16 == 224 and (CAP + 64) // 4 == 224
        for r in range(8):
            b(f"ds_write_b128 {v(t4)}, {v(ZER, 4)} offset:{8192 * r}")
        b(f"v_cmp_gt_u32 vcc, {total - 4096}, {v(vTID)}")
        for i in range(4):
            b(f"v_mov_b32 {v(T + 56 + i)}, {MARK}")
        tail = ["s_mov_b64 exec, vcc", f"v_cmp_gt_u32 vcc, 224, {v(vTID)}", f"ds_write_b128 {v(t5)}, {v(ZER, 4)}", "s_mov_b64 exec, vcc"]
        if first:
            tail.append(f"ds_write_b128 {v(t5)}, {v(ZER, 4)} offset:{LZ - 65536}")
        tail += [f"ds_write_b128 {v(t5)}, {v(T + 56, 4)} offset:{LL - 65536}", "s_mov_b64 exec, -1"]
        return tail

    def once_consts(b):
        b(f"s_mov_b32 {s(sE0)}, 0xff")
        b(f"s_mov_b32 {s(sE0 + 1)}, 0xff")
        b(f"s_mov_b32 {s(sE1)}, -1")
        b(f"s_mov_b32 {s(sE1 + 1)}, 0")
        b(f"s_mov_b32 {s(sSTR)}, 2048")
        b(f"s_mov_b32 {s(sSTR + 1)}, 128")
        b(f"s_add_u32 {s(sWB)}, {s(sW1)}, {2 * FR_ONE}")
        b(f"v_and_b32 {v(t0)}, 15, {v(vLN)}")
        b(f"v_bfe_u32 {v(t1)}, {v(vLN)}, 4, 1")
        b(f"v_lshrrev_b32 {v(t2)}, 5, {v(vLN)}")
        b(f"v_lshl_or_b32 {v(t3)}, {v(t1)}, 2, {v(t2)}")
        b(f"v_bfe_u32 {v(t4)}, {v(vLN)}, 1, 2")
        b(f"v_xor_b32 {v(t3)}, {v(t3)}, {v(t4)}")
        b(f"v_lshlrev_b32 {v(t3)}, 4, {v(t3)}")
        b(f"v_lshl_or_b32 {v(t3)}, {v(t0)}, 7, {v(t3)}")
        b(f"v_add_u32 {v(vR0)}, {s(sRB)}, {v(t3)}")
        b(f"v_xor_b32 {v(vR1)}, 32, {v(vR0)}")
        b(f"v_cmp_eq_u32 vcc, {v(t1)}, {v(t2)}")
        b(f"v_mov_b32 {v(t3)}, {2 * XT}")
        b(f"v_and_b32 {v(t4)}, 7, {v(vLN)}")
        b(f"v_cndmask_b32 {v(vXS)}, 0, {v(t3)}, vcc")
        b(f"s_lshl_b32 {s(sT0)}, {s(sQ)}, 7")
        b(f"v_mul_u32_u24 {v(t3)}, {MROW}, {v(t4)}")
        b(f"v_lshl_add_u32 {v(t3)}, {v(t2)}, 3, {v(t3)}")
        b(f"s_add_u32 {s(sT1)}, {s(sT0)}, {LM}")
        b(f"v_add_u32 {v(vMA)}, {s(sT1)}, {v(t3)}")
        b(f"s_add_u32 {s(sT1)}, {s(sT0)}, {LWX}")
        b(f"v_lshl_add_u32 {v(vWXA)}, {v(t2)}, 4, {s(sT1)}")
        b(f"v_mov_b32 {v(X2 + 6)}, 0")
        b(f"v_mov_b32 {v(X2 + 7)}, 0")
        b(f"v_and_b32 {v(t0)}, 1, {v(vLN)}")
        b(f"v_lshlrev_b32 {v(t0)}, 4, {v(t0)}")
        b(f"v_mov_b32 {v(t1)}, 0x3f80")
        b(f"v_lshlrev_b32 {v(t0)}, {v(t0)}, {v(t1)}")
        b(f"v_bfe_u32 {v(t1)}, {v(vLN)}, 1, 4")
        b(f"v_lshlrev_b32 {v(t2)}, 2, {v(t2)}")
        b(f"v_sub_u32 {v(t1)}, {v(t1)}, {v(t2)}")
        for p in range(4):
            b(f"v_cmp_eq_u32 vcc, {p}, {v(t1)}")
            b(f"v_cmp_eq_u32 {s(sT2, 2)}, {8 + p}, {v(t1)}")
            b(f"v_mov_b32 {v(QUA + p)}, 0x3e803e80")
            b(f"v_cndmask_b32 {v(ID + p)}, 0, {v(t0)}, vcc")
            b(f"v_cndmask_b32 {v(ID + 4 + p)}, 0, {v(t0)}, {s(sT2, 2)}")

    def wde_consts(b):
        b(f"s_mov_b32 {s(sC0)}, {LOG2E}")
        b(f"s_mov_b32 {s(sC0 + 1)}, {LOG2E}")
        for i, w in enumerate((tWD, tWE)):
            b(f"v_lshlrev_b32 {v(t0)}, 16, {v(w)}")
            b(f"v_mul_f32 {v(t0)}, {s(sC0)}, {v(t0)}")
            b(f"v_cvt_pk_bf16_f32 {v(t1)}, {v(t0)}, {v(t0)}")
            b(f"v_lshlrev_b32 {v(t1)}, 16, {v(t1)}")
            b(f"v_sub_f32 {v(t1)}, {v(t0)}, {v(t1)}")
            b(f"v_cvt_pk_bf16_f32 {v(Y2K + i)}, {v(t0)}, {v(t1)}")
        b(f"v_mov_b32 {v(Y2K + 2)}, 0")
        b(f"v_mov_b32 {v(Y2K + 3)}, 0")

    def dense_addr(b):
        b(f"v_lshrrev_b32 {v(t0)}, 3, {v(vTID)}")
        b(f"v_lshlrev_b32 {v(tAS)}, 9, {v(t0)}")
        b(f"v_and_b32 {v(t1)}, 1, {v(vTID)}")
        b(f"v_lshl_or_b32 {v(tAS)}, {v(t1)}, 3, {v(tAS)}")
        b(f"v_and_b32 {v(t2)}, 6, {v(vTID)}")
        b(f"v_or_b32 {v(tAS)}, {v(tAS)}, {v(t2)}")
        b(f"v_lshrrev_b32 {v(t0)}, 4, {v(vTID)}")
        b(f"v_mul_u32_u24 {v(t0)}, {XT}, {v(t0)}")
        b(f"v_bfe_u32 {v(t3)}, {v(vTID)}, 1, 3")
        b(f"v_lshl_or_b32 {v(t3)}, {v(t1)}, 3, {v(t3)}")
        b(f"v_add_u32 {v(t0)}, {LX}, {v(t0)}")
        b(f"v_lshl_add_u32 {v(tAX)}, {v(t3)}, 4, {v(t0)}")
        b(f"v_lshl_add_u32 {v(tAX + 1)}, {v(t3)}, 3, {v(t0)}")

    a.label("edge_kernel")
    a("s_cmp_ge_u32 s2, 256")
    a("s_cbranch_scc1 K2_END")
    a("s_and_b32 s3, s2, 7")
    a("s_lshl_b32 s3, s3, 5")
    a("s_lshr_b32 s2, s2, 3")
    a("s_add_u32 s2, s2, s3")
    a(f"s_cmp_ge_u32 s2, {NB}")
    a("s_cbranch_scc1 K2_END")
    a.stamp(True)
    a.stamp()
    a("s_load_dwordx2 s[22:23], s[0:1], 80")
    a("s_load_dwordx16 s[4:19], s[0:1], 0")
    a("s_load_dwordx2 s[20:21], s[0:1], 64")
    a(f"v_lshrrev_b32 {v(t0)}, 6, v0")
    a(f"v_and_b32 {v(vLN)}, 63, v0")
    a(f"v_readfirstlane_b32 {s(sWV)}, {v(t0)}")
    a(f"v_mov_b32 {v(vTID)}, v0")
    a(f"s_mul_i32 {s(sTL)}, s2, {DESC_ROW}")
    a(f"s_add_u32 {s(sTL)}, {s(sTL)}, {DESC_OFF}")
    a(f"s_mov_b32 {s(S_DESC + 2)}, {DESC_ROW}")
    a(f"s_mov_b32 {s(S_DESC + 3)}, 0x20000")
    lane_setup()
    a(f"v_lshrrev_b32 {v(t3)}, 5, {v(vLN)}")
    a(f"v_and_b32 {v(t0)}, 31, {v(vLN)}")
    a(f"v_xor_b32 {v(t1)}, {v(t0)}, {v(t3)}")
    a(f"s_lshl_b32 {s(sT2)}, {s(sWV)}, 1")
    a(f"v_xor_b32 {v(t1)}, {s(sT2)}, {v(t1)}")
    a(f"v_lshlrev_b32 {v(t1)}, 4, {v(t1)}")
    a(f"v_lshl_or_b32 {v(t1)}, {v(t3)}, 9, {v(t1)}")
    lane_setup2()
    w1_pages()
    a(f"s_and_b32 {s(sQ)}, {s(sWV)}, 3")
    a(f"s_lshr_b32 {s(sST)}, {s(sWV)}, 2")
    a(f"s_lshl_b32 {s(sW1)}, {s(sWV)}, 14")
    a(f"s_mov_b32 {s(sFIRST)}, 1")
    a(f"s_mov_b32 {s(sSLOW)}, 0")
    a(f"s_lshl_b32 {s(sRB)}, {s(sWV)}, 12")
    a(f"s_add_u32 {s(sRB)}, {s(sRB)}, {LR}")
    a(f"v_mov_b32 {v(tH)}, {v(t1)}")
    a(f"v_mov_b32 {v(tH + 1)}, {v(t2)}")
    for i in range(4):
        a(f"v_mov_b32 {v(ZER + i)}, 0")
    b = Asm()
    tail = lds_init(b, True)
    writes = [ln for ln in b.lines if ln.startswith("ds_")]
    NE = int(os.environ.get("NE", "0"))
    emit(a, [ln for ln in b.lines if not ln.startswith("ds_")] + tail)
    a(f"v_mov_b32 {v(tH + 2)}, {v(t4)}")
    writes = [ln.replace(f"ds_write_b128 {v(t4)},", f"ds_write_b128 {v(tH + 2)},") for ln in writes]
    early = capture(once_consts) + capture(dense_addr)
    emit(a, place(early, [(2 * i, w) for i, w in enumerate(writes[:NE])]))
    a("s_waitcnt lgkmcnt(0)")
    a.stamp()
    a(f"s_add_u32 {s(S_DESC)}, s22, {s(sTL)}")
    a(f"s_addc_u32 {s(S_DESC + 1)}, s23, 0")
    a(f"s_and_b32 {s(S_DESC + 1)}, {s(S_DESC + 1)}, 0xffff")
    a(f"buffer_load_dwordx2 {v(tDL, 2)}, {v(tH + 1)}, {s(S_DESC, 4)}, 0 offen")
    srd(a, S_H, 4, H_SIZE)
    a(f"s_mul_i32 {s(sT0)}, s2, {40 * 512}")
    a(f"s_lshl_b32 {s(sT1)}, {s(sWV)}, 10")
    a(f"s_add_u32 {s(sT0)}, {s(sT0)}, {s(sT1)}")
    for j in range(3):
        if j == 2:
            a(f"s_cmp_ge_u32 {s(sWV)}, 4")
            a("s_cbranch_scc1 K2_NOH")
        a(f"s_add_u32 m0, {s(sT1)}, {LH + 8192 * j}")
        a("s_nop 0")
        a(f"buffer_load_dwordx4 {v(tH)}, {s(S_H, 4)}, {s(sT0)} offen lds")
        a(f"s_add_u32 {s(sT0)}, {s(sT0)}, 8192")
    a.label("K2_NOH")
    srd_off(a, S_FR, 22, FR_OFF, 3 * FR_ONE)

    def small_loads(b):
        colmap_v(b, t0, vLN, t1)
        srd(b, S_TMP, 14, WE_SIZE)
        b(f"s_lshl_b32 {s(sT0)}, {s(sQ)}, 7")
        b(f"s_add_u32 {s(sT0)}, {s(sT0)}, {512 * 512}")
        b(f"v_lshlrev_b32 {v(t0)}, 1, {v(t0)}")
        b(f"buffer_load_ushort {v(tWD)}, {v(t0)}, {s(S_TMP, 4)}, {s(sT0)} offen")
        b(f"buffer_load_ushort {v(tWE)}, {v(t0)}, {s(S_TMP, 4)}, {s(sT0)} offen offset:512")
        b(f"v_and_b32 {v(t0)}, 0xe7, {v(vTID)}")
        b(f"v_bfe_u32 {v(t1)}, {v(vTID)}, 3, 1")
        b(f"v_lshl_or_b32 {v(t0)}, {v(t1)}, 4, {v(t0)}")
        b(f"v_bfe_u32 {v(t1)}, {v(vTID)}, 4, 1")
        b(f"v_lshl_or_b32 {v(t0)}, {v(t1)}, 3, {v(t0)}")
        b(f"v_lshlrev_b32 {v(t0)}, 1, {v(t0)}")
        srd(b, S_TMP, 16, 512)
        b(f"buffer_load_ushort {v(tWX)}, {v(t0)}, {s(S_TMP, 4)}, 0 offen")
        srd(b, S_POS, 6, POS_SIZE)
        b(f"s_mul_i32 {s(sT0)}, s2, 240")
        b(f"v_lshlrev_b32 {v(t0)}, 2, {v(vLN)}")
        b(f"buffer_load_dword {v(tPP)}, {v(t0)}, {s(S_POS, 4)}, {s(sT0)} offen")
        srd_off(b, S_REC, 22, REC_OFF, REC_SIZE)
        srd_off(b, S_BP, 22, BP_OFF - 3072, BP_SIZE + 3072)
        srd(b, S_OUT, 20, OUT_SIZE)
        b(f"s_mul_i32 {s(sT0)}, s2, {SLOW_ROW}")
        b(f"s_add_u32 {s(sT0)}, {s(sT0)}, {SLOW_OFF}")
        b(f"s_add_u32 {s(S_TMP)}, s22, {s(sT0)}")
        b(f"s_addc_u32 {s(S_TMP + 1)}, s23, 0")
        b(f"s_and_b32 {s(S_TMP + 1)}, {s(S_TMP + 1)}, 0xffff")
        b(f"s_mov_b32 {s(S_TMP + 2)}, {SLOW_ROW}")
        b(f"s_mov_b32 {s(S_TMP + 3)}, 0x20000")
        b(f"s_mov_b32 {s(sK3)}, 3072")
        b(f"s_mov_b32 {s(sK2)}, 2048")
        b(f"s_mov_b32 {s(sK1)}, 1024")
        b(f"v_bfe_u32 {v(t3)}, {v(vLN)}, 4, 2")
        b(f"v_and_b32 {v(t2)}, 7, {v(vLN)}")
        b(f"v_xor_b32 {v(t3)}, {v(t3)}, {v(t2)}")
        b(f"s_lshl_b32 {s(sT0)}, {s(sQ)}, 7")
        b(f"v_lshl_add_u32 {v(vG)}, {v(t3)}, 4, {s(sT0)}")
        b(f"v_and_b32 {v(t0)}, 15, {v(vLN)}")
        b(f"v_lshrrev_b32 {v(t1)}, 4, {v(vLN)}")
        b(f"v_xor_b32 {v(t1)}, {v(t1)}, {v(t0)}")
        b(f"v_lshlrev_b32 {v(t1)}, 4, {v(t1)}")
        b(f"v_lshl_or_b32 {v(t1)}, {v(t0)}, 9, {v(t1)}")
        b(f"v_add_u32 {v(vHB)}, {LH}, {v(t1)}")
        for k in range(1, 4):
            b(f"v_xor_b32 {v(vHB + k)}, {64 * k}, {v(vHB)}")

    NW1, NW2a, NW2b, NW3 = [int(x) for x in os.environ.get("NW", "6,2,2,6").split(",")]
    NW2 = NW2a + NW2b
    NW4 = 16 - NW1 - NW2 - NW3
    win1 = spread(capture(small_loads), W1L[:NW1])
    emit(a, spread(win1, writes[NE:]) if NE < 8 else win1)
    a(f"s_waitcnt vmcnt({2 + 4 + NW1})")
    a.stamp()

    a.label("K2_BATCH")
    a(f"v_and_b32 {v(tO0)}, 1023, {v(tDL)}")
    a(f"v_lshrrev_b32 {v(tT)}, 20, {v(tDH)}")
    a(f"v_sub_u32 {v(tT)}, {v(tT)}, {v(tO0)}")
    a(f"v_add3_u32 {v(tO0)}, {v(tRA)}, {v(tO0)}, {v(tP2)}")
    a(f"v_sub_u32 {v(tN)}, {v(tT)}, {v(tP2)}")
    a(f"v_lshlrev_b32 {v(tO0)}, 3, {v(tO0)}")
    a(f"v_cmp_lt_i32 vcc, 0, {v(tN)}")
    a(f"v_cmp_lt_i32 {s(sT2, 2)}, 4, {v(tN)}")
    a(f"v_mov_b32 {v(t2)}, {MARK}")
    a(f"v_cndmask_b32 {v(t1)}, {v(t2)}, {v(tO0)}, vcc")
    a(f"v_cndmask_b32 {v(t2)}, {v(t2)}, {v(tO0)}, {s(sT2, 2)}")
    a(f"buffer_load_dwordx4 {v(tR, 4)}, {v(t1)}, {s(S_REC, 4)}, 0 offen")
    a(f"buffer_load_dwordx4 {v(tR + 4, 4)}, {v(t2)}, {s(S_REC, 4)}, 0 offen offset:32")
    main, a = a, Asm()
    a(f"v_lshrrev_b32 {v(t0)}, 10, {v(tDL)}")
    a(f"v_lshl_or_b32 {v(t0)}, {v(tDH)}, 20, {v(t0)}")
    a(f"v_and_b32 {v(t0)}, 0x3fffffff, {v(t0)}")
    a(f"v_sub_u32 {v(t0)}, {v(t0)}, {v(tDL)}")
    a(f"v_lshrrev_b32 {v(t1)}, 10, {v(tDH)}")
    a(f"v_and_b32 {v(t2)}, 0xfffff, {v(tDH)}")
    a(f"v_mov_b32 {v(tA)}, {v(t0)}")
    a(f"v_sub_u32 {v(t1)}, {v(t1)}, {v(t2)}")
    a(f"v_mov_b32 {v(tB)}, {v(t1)}")
    order = [tT, tA, tB]
    for sh in ("row_shr:2", "row_shr:4", "row_shr:8"):
        for r in order:
            a(f"v_add_u32_dpp {v(r)}, {v(r)}, {v(r)} {sh} row_mask:0xf bank_mask:0xf bound_ctrl:0")
    for sh in ("row_bcast:15 row_mask:0xa", "row_bcast:31 row_mask:0xc"):
        for r in order:
            a(f"v_add_u32_dpp {v(r)}, {v(r)}, {v(r)} {sh} bank_mask:0xf")
    a(f"s_lshl_b32 {s(sT0)}, {s(sWV)}, 2")
    a(f"s_add_u32 {s(sT0)}, {s(sT0)}, {LTOT}")
    a(f"v_mov_b32 {v(t3)}, {s(sT0)}")
    emit(main, spread(a.lines, W1L[NW1:NW1 + NW2a]) if NW2a else a.lines)
    a = main
    a("s_mov_b32 exec_lo, 0")
    a("s_mov_b32 exec_hi, 0x80000000")
    for i in range(3):
        a(f"ds_write_b32 {v(t3)}, {v(tA + i)} offset:{32 * i}")
    a("s_mov_b64 exec, -1")
    a(f"v_sub_u32 {v(tA)}, {v(tA)}, {v(t0)}")
    a(f"v_sub_u32 {v(tB)}, {v(tB)}, {v(t1)}")
    a(f"v_and_b32 {v(t3)}, 7, {v(vLN)}")
    a(f"v_lshlrev_b32 {v(t3)}, 2, {v(t3)}")
    a(f"v_add_u32 {v(t3)}, {LTOT}, {v(t3)}")
    a("s_waitcnt lgkmcnt(0)")
    a("s_barrier")
    a.stamp()
    for i in range(3):
        a(f"ds_read_b32 {v(t0 + i)}, {v(t3)} offset:{32 * i}")
    emit(a, W1L[NW1 + NW2a:NW1 + NW2])
    a(f"s_mov_b32 {s(sTB)}, 0")
    a("s_waitcnt lgkmcnt(0)")
    for i in range(3):
        a(f"v_mov_b32 {v(t3 + i)}, {v(t0 + i)}")
    for sh in ("row_shr:1", "row_shr:2", "row_shr:4"):
        for i in range(3):
            a(f"v_add_u32_dpp {v(t0 + i)}, {v(t0 + i)}, {v(t0 + i)} {sh} row_mask:0xf bank_mask:0xf bound_ctrl:0")
    for i in range(3):
        a(f"v_sub_u32 {v(t3 + i)}, {v(t0 + i)}, {v(t3 + i)}")
    a(f"v_readlane_b32 {s(sT0)}, {v(t0)}, 7")
    a(f"v_readlane_b32 {s(sT1)}, {v(t1)}, 7")
    a(f"v_readlane_b32 {s(sBT)}, {v(t2)}, 7")
    a(f"v_readlane_b32 {s(sT2)}, {v(t3)}, {s(sWV)}")
    a(f"v_readlane_b32 {s(sT3)}, {v(t4)}, {s(sWV)}")
    a(f"v_readlane_b32 {s(sTL)}, {v(t5)}, {s(sWV)}")
    a(f"s_add_u32 {s(sT0)}, {s(sT0)}, {15 | 15 << 10 | 15 << 20}")
    a(f"s_add_u32 {s(sT1)}, {s(sT1)}, {15 | 15 << 10}")
    for g in range(5):
        src = sT0 if g < 3 else sT1
        a(f"s_bfe_u32 {s(sPS)}, {s(src)}, {hex((6 << 16) | (10 * (g % 3) + 4))}")
        a(f"s_add_u32 {s(sTB + g + 1)}, {s(sTB + g)}, {s(sPS)}")
    a(f"s_cmp_gt_u32 {s(sBT)}, {CAP}")
    a(f"s_cselect_b32 {s(sT0)}, 255, {s(sTB + 5)}")
    a(f"s_cmp_gt_u32 {s(sT0)}, {NTMAX}")
    a("s_cbranch_scc1 K2_OVER")
    a.label("K2_FITS")
    a(f"s_lshl_b32 {s(sT0)}, {s(sTB + 1)}, 14")
    a(f"s_lshl_b32 {s(sT1)}, {s(sTB + 2)}, 24")
    a(f"s_add_u32 {s(sT2)}, {s(sT2)}, {s(sT0)}")
    a(f"s_add_u32 {s(sT2)}, {s(sT2)}, {s(sT1)}")
    a(f"s_lshl_b32 {s(sT0)}, {s(sTB + 3)}, 4")
    a(f"s_lshl_b32 {s(sT1)}, {s(sTB + 4)}, 14")
    a(f"s_add_u32 {s(sT3)}, {s(sT3)}, {s(sT0)}")
    a(f"s_add_u32 {s(sT3)}, {s(sT3)}, {s(sT1)}")
    a(f"v_add_u32 {v(tA)}, {s(sT2)}, {v(tA)}")
    a(f"v_add_u32 {v(tB)}, {s(sT3)}, {v(tB)}")
    a(f"v_lshl_or_b32 {v(tV)}, {v(tB)}, 30, {v(tA)}")
    a(f"v_lshrrev_b32 {v(tV + 1)}, 2, {v(tB)}")
    a(f"s_add_u32 {s(sT0)}, {s(sTB + 5)}, 1")
    a(f"s_lshr_b32 {s(sT0)}, {s(sT0)}, 1")
    a(f"s_mul_i32 {s(sPS)}, {s(sT0)}, {SPLIT_NUM}")
    a(f"s_add_u32 {s(sPS)}, {s(sPS)}, 32")
    a(f"s_lshr_b32 {s(sPS)}, {s(sPS)}, 6")
    a(f"s_cmp_lg_u32 {s(sSLOW)}, 0")
    a(f"s_cselect_b32 {s(sPS)}, {s(sT0)}, {s(sPS)}")
    a(f"s_cmp_eq_u32 {s(sST)}, 0")
    a(f"s_cselect_b32 {s(sREM)}, 0, {s(sPS)}")
    a(f"s_cselect_b32 {s(sPEND)}, {s(sPS)}, {s(sT0)}")
    a(f"s_lshl_b32 {s(sT0)}, {s(sREM)}, 7")
    a(f"s_add_u32 {s(sT0)}, {s(sT0)}, {LL}")
    a(f"v_lshrrev_b32 {v(t0)}, 3, {v(vLN)}")
    a(f"v_lshl_add_u32 {v(vL)}, {v(t0)}, 3, {s(sT0)}")
    a(f"v_lshlrev_b32 {v(tI)}, 2, {v(vTID)}")
    a(f"v_add_u32 {v(tI)}, {LL}, {v(tI)}")
    a(f"s_mov_b32 m0, {s(sRB)}")

    def batch_consts(b):
        b(f"s_mov_b32 {s(sGA)}, -1")
        b(f"s_mov_b32 {s(sIT)}, 0")
        b(f"s_mov_b64 {s(sMASK, 2)}, 0")
        for g in range(1, 5):
            b(f"s_bitset1_b64 {s(sMASK, 2)}, {s(sTB + g)}")
        b(f"s_lshl_b32 {s(sTL)}, {s(sREM)}, 1")
        b(f"s_lshr_b64 {s(sMASK, 2)}, {s(sMASK, 2)}, {s(sTL)}")
        b(f"s_or_b32 {s(sMASK)}, {s(sMASK)}, 1")
        b(f"s_lshl_b64 {s(sMASK, 2)}, {s(sMASK, 2)}, 1")
        b(f"s_mul_i32 {s(sINIT)}, {s(sST)}, 5")
        for g in range(1, 5):
            b(f"s_cmp_eq_u32 {s(sTB + g)}, {s(sST)}")
            b(f"s_cselect_b32 {s(sT0)}, {g}, 0")
            b(f"s_max_u32 {s(sINIT)}, {s(sINIT)}, {s(sT0)}")
        b(f"s_lshl_b32 {s(sT0)}, {s(sREM)}, 11")
        b(f"v_add_u32 {v(vS)}, {s(sT0)}, {v(tF)}")
        b(f"s_mul_i32 {s(sT0)}, {s(sREM)}, {2 * XT}")
        b(f"s_add_u32 {s(sT0)}, {s(sT0)}, {LX}")
        b(f"s_add_u32 {s(sT1)}, {s(sT0)}, 256")
        b(f"v_and_b32 {v(t0)}, 15, {v(vLN)}")
        b(f"v_cmp_eq_u32 vcc, 0, {v(vXS)}")
        b(f"v_lshl_add_u32 {v(t4)}, {v(t0)}, 4, {s(sT0)}")
        b(f"v_lshl_add_u32 {v(t5)}, {v(t0)}, 3, {s(sT1)}")
        b(f"v_mov_b32 {v(t1)}, {LZ}")
        b(f"v_cndmask_b32 {v(vX1)}, {v(t4)}, {v(t1)}, vcc")
        b(f"v_cndmask_b32 {v(vX2)}, {v(t5)}, {v(t1)}, vcc")
        b(f"s_sub_u32 {s(sREM)}, {s(sPEND)}, {s(sREM)}")
        b(f"s_sub_u32 {s(sREM)}, {s(sREM)}, 1")
        b(f"s_lshl_b32 {s(sTL)}, {s(sPS)}, 1")
        b(f"s_mov_b32 {s(sWRT)}, 0")
        for g in range(5):
            b(f"s_cmp_lg_u32 {s(sTB + g)}, {s(sTB + g + 1)}")
            b(f"s_cselect_b32 {s(sT0)}, {1 << g}, 0")
            b(f"s_cmp_lg_u32 {s(sTB + g)}, {s(sTL)}")
            b(f"s_cselect_b32 {s(sT0)}, {s(sT0)}, 0")
            b(f"s_or_b32 {s(sWRT)}, {s(sWRT)}, {s(sT0)}")
        b(f"s_cmp_lt_u32 {s(sTL)}, {s(sTB + 5)}")
        b(f"s_cselect_b32 {s(sT0)}, 32, 0")
        b(f"s_or_b32 {s(sWRT)}, {s(sWRT)}, {s(sT0)}")
        b(f"s_cmp_lg_u32 {s(sSLOW)}, 0")
        b(f"s_cselect_b32 {s(sWRT)}, 31, {s(sWRT)}")
        group_of(b, sGX, sTL)

    def scatter(r, slot):
        a(f"v_bfe_u32 {v(t0)}, {v(r + 1)}, 19, 3")
        a(f"v_cmp_lt_i32 vcc, {slot}, {v(tN)}")
        a(f"v_mul_u32_u24 {v(t0)}, 10, {v(t0)}")
        a(f"v_lshrrev_b32 {v(t1)}, 22, {v(r + 1)}")
        a(f"v_lshrrev_b64 {v(t2, 2)}, {v(t0)}, {v(tV, 2)}")
        a(f"v_and_b32 {v(t2)}, 1023, {v(t2)}")
        a(f"v_add_lshl_u32 {v(t2)}, {v(t2)}, {v(t1)}, 2")
        a(f"v_add_u32 {v(t2)}, {LL}, {v(t2)}")
        a("s_mov_b64 exec, vcc")
        a(f"ds_write_b32 {v(t2)}, {v(r)}")
        a(f"ds_write_b32 {v(t2)}, {v(r + 1)} offset:{LE - LL}")
        a("s_mov_b64 exec, -1")

    a(f"s_waitcnt vmcnt({NW2})")
    a.stamp()
    rest = W1L[NW1 + NW2:]
    for i, slot in enumerate((0, 1, 4, 5)):
        scatter(tR + 2 * i, slot)
        emit(a, rest[(i * NW3) // 4:((i + 1) * NW3) // 4])
    a(f"v_cmp_lt_i32 vcc, 8, {v(tN)}")
    a(f"s_cmp_eq_u32 {s(sFIRST)}, 0")
    a("s_cbranch_scc1 K2_NOTAB")
    a(f"v_and_b32 {v(t0)}, 255, {v(vTID)}")
    a(f"v_lshlrev_b32 {v(t0)}, 1, {v(t0)}")
    a(f"v_add_u32 {v(t0)}, {LWX}, {v(t0)}")
    a(f"ds_write_b16 {v(t0)}, {v(tWX)}")
    a(f"v_lshlrev_b32 {v(t0)}, 2, {v(vLN)}")
    a(f"v_add_u32 {v(t0)}, {LPD}, {v(t0)}")
    a(f"ds_write_b32 {v(t0)}, {v(tPP)}")
    a.label("K2_NOTAB")
    a("s_cbranch_vccnz K2_MORE")
    a.label("K2_NOMORE")
    main, a = a, Asm()
    a.label("K2_MORE")
    a(f"v_add_u32 {v(tO0)}, 32, {v(tO0)}")
    a(f"v_subrev_u32 {v(tN)}, 4, {v(tN)}")
    a(f"buffer_load_dwordx4 {v(tR, 4)}, {v(tO0)}, {s(S_REC, 4)}, 0 offen offset:32")
    a("s_waitcnt vmcnt(0)")
    scatter(tR, 4)
    scatter(tR + 2, 5)
    a(f"v_cmp_lt_i32 vcc, 8, {v(tN)}")
    a("s_nop 4")
    a("s_cbranch_vccnz K2_MORE")
    a("s_branch K2_NOMORE")
    far += a.lines
    a = main
    a("s_waitcnt lgkmcnt(0)")
    a("s_barrier")
    a.stamp()

    a(f"ds_read2st64_b32 {v(tW, 2)}, {v(tI)} offset1:8")
    a(list_read(0))
    a(f"v_add_u32 {v(tI)}, {LE - LL}, {v(tI)}")
    a(f"ds_read2st64_b32 {v(tM, 2)}, {v(tI)} offset1:8")
    a(f"v_cmp_gt_u32 vcc, {CAP - 512}, {v(vTID)}")
    a(f"v_mov_b32 {v(t0)}, {MARK}")
    a("s_waitcnt lgkmcnt(2)")
    a(f"v_cndmask_b32 {v(tW + 1)}, {v(t0)}, {v(tW + 1)}, vcc")
    for r in range(2):
        a(f"v_lshrrev_b32 {v(tPS + 2 * r)}, 9, {v(tW + r)}")
        a(f"v_mul_u32_u24 {v(tPS + 2 * r)}, 6, {v(tPS + 2 * r)}")
        a(f"v_and_b32 {v(tPS + 2 * r)}, -4, {v(tPS + 2 * r)}")
    POSL = [f"buffer_load_dwordx2 {v(tPS + 2 * r, 2)}, {v(tPS + 2 * r)}, {s(S_POS, 4)}, 0 offen" for r in range(2)]
    a(POSL[0])
    a("s_waitcnt lgkmcnt(0)")
    emit(a, LST_ADD)
    for r in range(2):
        a(f"v_bfe_u32 {v(t1)}, {v(tM + r)}, 16, 6")
        a(f"v_mul_u32_u24 {v(t1)}, 6, {v(t1)}")
        a(f"v_and_b32 {v(t1)}, -4, {v(t1)}")
        a(f"v_add_u32 {v(t1)}, {LPD}, {v(t1)}")
        a(f"ds_read2_b32 {v(tPD + 2 * r, 2)}, {v(t1)} offset1:1")
    LATE = [POSL[1]] + dma(0) + dma(1)

    def dense(b, r):
        ps, pd, w, m = tPS + 2 * r, tPD + 2 * r, tW + r, tM + r
        b(f"v_mov_b32 {v(t5)}, 0x3f80")
        b(f"s_mov_b32 {s(sT1)}, 0xffff0000")
        b(f"s_mov_b32 {s(sT2)}, 0x01000100")
        b(f"v_bfe_u32 {v(t0)}, {v(w)}, 9, 1")
        b(f"v_bfe_u32 {v(t1)}, {v(m)}, 16, 1")
        b(f"v_lshlrev_b32 {v(t0)}, 4, {v(t0)}")
        b(f"v_lshlrev_b32 {v(t1)}, 4, {v(t1)}")
        b(f"v_alignbit_b32 {v(ps)}, {v(ps + 1)}, {v(ps)}, {v(t0)}")
        b(f"v_lshrrev_b32 {v(ps + 1)}, {v(t0)}, {v(ps + 1)}")
        b(f"v_alignbit_b32 {v(pd)}, {v(pd + 1)}, {v(pd)}, {v(t1)}")
        b(f"v_lshrrev_b32 {v(pd + 1)}, {v(t1)}, {v(pd + 1)}")
        b(f"v_lshlrev_b32 {v(t0)}, 16, {v(pd)}")
        b(f"v_lshlrev_b32 {v(t2)}, 16, {v(ps)}")
        b(f"v_and_b32 {v(t1)}, {s(sT1)}, {v(pd)}")
        b(f"v_and_b32 {v(t3)}, {s(sT1)}, {v(ps)}")
        b(f"v_sub_f32 {v(t0)}, {v(t0)}, {v(t2)}")
        b(f"v_sub_f32 {v(t1)}, {v(t1)}, {v(t3)}")
        b(f"v_lshlrev_b32 {v(t2)}, 16, {v(pd + 1)}")
        b(f"v_lshlrev_b32 {v(t3)}, 16, {v(ps + 1)}")
        b(f"v_sub_f32 {v(t2)}, {v(t2)}, {v(t3)}")
        b(f"v_cvt_pk_bf16_f32 {v(ps)}, {v(t0)}, {v(t1)}")
        b(f"v_cvt_pk_bf16_f32 {v(ps + 1)}, {v(t2)}, {v(t2)}")
        b(f"v_lshlrev_b32 {v(t0)}, 16, {v(ps)}")
        b(f"v_and_b32 {v(t1)}, {s(sT1)}, {v(ps)}")
        b(f"v_and_b32 {v(t2)}, {s(sT1)}, {v(ps + 1)}")
        for k in range(3):
            b(f"v_mul_f32 {v(t0 + k)}, {v(t0 + k)}, {v(t0 + k)}")
        b(f"v_cvt_pk_bf16_f32 {v(t0)}, {v(t0)}, {v(t1)}")
        b(f"v_cvt_pk_bf16_f32 {v(t2)}, {v(t2)}, {v(t2)}")
        b(f"v_and_b32 {v(t1)}, {s(sT1)}, {v(t0)}")
        b(f"v_lshlrev_b32 {v(t0)}, 16, {v(t0)}")
        b(f"v_and_b32 {v(t2)}, {s(sT1)}, {v(t2)}")
        b(f"v_add_f32 {v(t0)}, {v(t0)}, {v(t1)}")
        b(f"v_add_f32 {v(t0)}, {v(t0)}, {v(t2)}")
        b(f"v_cmp_gt_u32 vcc, {MARK}, {v(w)}")
        b(f"v_cvt_pk_bf16_f32 {v(pd)}, {v(t0)}, {v(t0)}")
        b(f"v_perm_b32 {v(pd + 1)}, {v(m)}, {v(m)}, {s(sT2)}")
        b(f"v_bfe_u32 {v(t1)}, {v(m)}, 16, 3")
        b(f"v_lshl_add_u32 {v(t0)}, {v(t1)}, 4, {v(tAS)}")
        b(f"v_lshl_add_u32 {v(t1)}, {v(t1)}, 1, {v(tAX)}")
        return ["s_mov_b64 exec, vcc",
                f"ds_write_b16 {v(t0)}, {v(t5)} offset:{32768 * r}",
                f"ds_write_b16 {v(t0)}, {v(ps)} offset:{32768 * r + 128}",
                f"ds_write_b16_d16_hi {v(t0)}, {v(ps)} offset:{32768 * r + 256}",
                f"ds_write_b16 {v(t0)}, {v(ps + 1)} offset:{32768 * r + 384}",
                f"ds_write_b16 {v(t1)}, {v(t5)} offset:{32 * XT * r}",
                f"ds_write_b64 {v(tAX + 1)}, {v(pd, 2)} offset:{256 + 32 * XT * r}",
                "s_mov_b64 exec, -1"]

    def dense_second():
        n = fresh()
        a(f"s_lshl_b32 {s(sT0)}, {s(sWV)}, 2")
        a(f"s_add_u32 {s(sT0)}, {s(sT0)}, 32")
        a(f"s_cmp_ge_u32 {s(sT0)}, {s(sTB + 5)}")
        a(f"s_cbranch_scc1 K2_ND{n}")
        emit(a, dense(a, 1))
        a.label(f"K2_ND{n}")

    a(f"s_cmp_eq_u32 {s(sFIRST)}, 0")
    a("s_cbranch_scc1 K2_NOA")

    def hreads(hf, kk):
        return [f"ds_read_b128 {v(hf + 12 * (kk & 1) + 4 * nt, 4)}, {v(vHB + (kk & 3))} offset:{8192 * nt + 256 * (kk >> 2)}" for nt in range(3)]

    def a_steps(kks, fill, late=()):
        per = (len(fill) + len(kks) - 1) // len(kks)
        late = list(late)
        for i, kk in enumerate(kks):
            a("s_waitcnt vmcnt(1) lgkmcnt(0)" if kk == 0 else "s_waitcnt lgkmcnt(0)")
            if kk < 7:
                emit(a, hreads(HF, kk + 1))
            mf = []
            for nt in range(3):
                for ct in range(2):
                    d = AG + 8 * nt + 4 * ct
                    mf.append(mf16(d, HF + 12 * (kk & 1) + 4 * nt, 8 * kk + 4 * ct, "0" if kk == 0 else d))
            mine = fill[i * per:(i + 1) * per]
            emit(a, place(mine, [((j * len(mine)) // 6, mf[j]) for j in range(6)]))
            for _ in range(LPS[i] if late else 0):
                a(late.pop(0))
        assert not late

    assert NW4 == 0
    LPS = [int(x) for x in os.environ.get("LPS", "1,0,2,2").split(",")]
    DK = len(LPS)
    emit(a, hreads(HF, 0))
    a_steps(list(range(DK)), capture(wde_consts) + capture(batch_consts), LATE)
    a.stamp()
    a("s_waitcnt vmcnt(4)")
    a.stamp()
    b = Asm()
    tail = dense(b, 0)
    a_steps(list(range(DK, 8)), b.lines)
    emit(a, tail)
    dense_second()
    a.stamp()
    a(f"s_lshl_b32 {s(sT0)}, {s(sWV)}, 9")
    a(f"s_add_u32 {s(sT0)}, {s(sT0)}, {LM}")
    a(f"v_and_b32 {v(t0)}, 15, {v(vLN)}")
    a(f"v_lshlrev_b32 {v(t0)}, 4, {v(t0)}")
    a(f"v_bfe_u32 {v(t1)}, {v(vLN)}, 4, 1")
    a(f"v_lshl_or_b32 {v(t0)}, {v(t1)}, 3, {v(t0)}")
    a(f"v_lshrrev_b32 {v(t1)}, 5, {v(vLN)}")
    a(f"v_lshl_or_b32 {v(t0)}, {v(t1)}, 12, {v(t0)}")
    a(f"v_add_u32 {v(t0)}, {s(sT0)}, {v(t0)}")
    for nt in range(3):
        for p in range(4):
            a(f"v_pk_mul_f32 {v(AG + 8 * nt + 2 * p, 2)}, {v(AG + 8 * nt + 2 * p, 2)}, {s(sC0, 2)}")
        for p in range(4):
            a(f"v_cvt_pk_bf16_f32 {v(HF + 4 * nt + p)}, {v(AG + 8 * nt + 2 * p)}, {v(AG + 8 * nt + 2 * p + 1)}")
        for ct in range(2):
            a(f"ds_write_b64 {v(t0)}, {v(HF + 4 * nt + 2 * ct, 2)} offset:{8192 * nt + 256 * ct}")
    a(f"s_lshl_b32 {s(sT0)}, {s(sQ)}, 10")
    a(f"s_add_u32 {s(sT0)}, {s(sT0)}, {LM}")
    a(f"v_add_u32 {v(t0)}, {s(sT0)}, {v(tF)}")
    a("s_waitcnt vmcnt(0) lgkmcnt(0)")
    a("s_barrier")
    a.stamp()
    for g in range(5):
        a(f"ds_read_b128 {v(Y2Q + 4 * g, 4)}, {v(t0)} offset:{4096 * g}")
    a.label("K2_READY")
    emit(a, frag_reads(0))
    a(list_read(1))
    a("s_waitcnt lgkmcnt(0)")
    a("s_barrier")
    a.stamp()
    a(f"s_cmp_lt_i32 {s(sREM)}, 0")
    a("s_cbranch_scc1 K2_DONE")
    emit(a, LST_ADD + dma(0))
    chk, o = site(None, 0, None)
    far += o
    emit(a, chk + p_mfmas(YA))
    emit(a, frag_reads(1))
    a(f"v_add_u32 {v(vX1)}, {v(vXS)}, {v(vX1)}")
    a(f"v_add_u32 {v(vX2)}, {v(vXS)}, {v(vX2)}")
    a(".p2align 6")
    a.label("K2_LOOP")
    abl = os.environ.get("ABL", "")
    for ln in loop_body(far):
        if ("w" in abl and ln.startswith("s_waitcnt vmcnt")) or ("d" in abl and ln.startswith("buffer_load")) or \
           ("l" in abl and ln.startswith("ds_read")) or ("m" in abl and ln.startswith("v_mfma")) or \
           ("t" in abl and (ln.startswith("v_exp") or ln.startswith("v_rcp"))) or \
           ("i" in abl and ln.startswith("v_mfma") and (v(ID, 4) in ln or v(ID + 4, 4) in ln)) or \
           ("o" in abl and ln.startswith("v_mfma") and v(QUA, 4) in ln) or \
           ("s" in abl and ln.startswith("v_mfma") and v(SP, 4) in ln) or \
           ("y" in abl and ln.startswith("v_mfma") and (v(Y2C, 4) in ln or v(Y2K, 4) in ln)) or \
           ("f" in abl and ln.startswith("s_cbranch_scc1 K2_H")):
            continue
        a(ln)
    a("s_cbranch_scc0 K2_LOOP")
    chk, o = site(-1, None, YB)
    far += o
    a("s_setprio 0")
    a("s_waitcnt lgkmcnt(0)")
    emit(a, chk + cvts(EB) + ["s_nop 1", S1, S2, "s_nop 9"])
    far += flush(a, YB)
    a.label("K2_DONE")
    a.stamp()
    a(f"s_cmp_lg_u32 {s(sSLOW)}, 0")
    a("s_cbranch_scc1 K2_NEXT")

    a.label("K2_FINAL")
    a(f"s_cmp_ge_u32 {s(sIT)}, 4")
    a("s_cbranch_scc0 K2_WREST")
    MA, CA, HR, W1, MF, XR, G = 0, 24, 48, 64, 128, 152, 160
    eO, eM, eF, e0 = 172, 175, 178, 179

    def w_load(ct, kk):
        return f"buffer_load_dwordx4 {v(W1 + 32 * ct + 4 * kk, 4)}, {v(eF)}, {s(S_FR, 4)}, {s(S_TMP + 2 * ct + (kk >> 2))} offen offset:{1024 * (kk & 3)}"

    a(f"v_lshlrev_b32 {v(eF)}, 4, {v(vLN)}")
    a(f"s_sub_u32 {s(S_TMP)}, {s(sWB)}, {FR_ONE}")
    for i in range(1, 4):
        a(f"s_add_u32 {s(S_TMP + i)}, {s(S_TMP)}, {4096 * i}")
    a(f"v_and_b32 {v(XR)}, 15, {v(vLN)}")
    a(f"v_and_b32 {v(XR + 2)}, 48, {v(vLN)}")
    a(f"v_mul_u32_u24 {v(XR + 3)}, {MROW}, {v(XR)}")
    a(f"v_add_u32 {v(XR + 3)}, {v(XR + 3)}, {v(XR + 2)}")
    a(f"v_lshrrev_b32 {v(XR + 1)}, 3, {v(XR)}")
    a(f"v_lshrrev_b32 {v(XR + 1)}, {v(XR + 1)}, {s(sWRT)}")
    a(f"v_mov_b32 {v(XR + 4)}, {LZ}")
    for nt in range(3):
        a(f"v_and_b32 {v(XR + 5)}, {1 << (2 * nt)}, {v(XR + 1)}")
        a(f"v_cmp_ne_u32 vcc, 0, {v(XR + 5)}")
        a(f"v_add_u32 {v(XR + 6)}, {LM + 16 * MROW * nt}, {v(XR + 3)}")
        a("s_waitcnt lgkmcnt(0)" if nt == 0 else w_load(0, nt - 1))
        a(f"v_cndmask_b32 {v(eM + nt)}, {v(XR + 4)}, {v(XR + 6)}, vcc")
    a(w_load(0, 2))
    a(w_load(0, 3))
    a.stamp()
    a("s_barrier")
    a.stamp()

    def mreads(kk):
        return [f"ds_read_b128 {v(MF + 12 * (kk & 1) + 4 * nt, 4)}, {v(eM + nt)} offset:{64 * kk}" for nt in range(3)]

    def late_setup(b):
        b(f"s_lshl_b32 {s(sT0)}, {s(sWV)}, 6")
        b(f"s_and_b32 {s(sT1)}, {s(sT0)}, 192")
        b(f"s_and_b32 {s(sT2)}, {s(sT0)}, 256")
        b(f"v_xor_b32 {v(e0)}, {s(sT1)}, {v(vHB)}")
        b(f"v_add_u32 {v(e0)}, {s(sT2)}, {v(e0)}")
        for nt in range(3):
            b(f"ds_read_b128 {v(HR + 4 * nt, 4)}, {v(e0)} offset:{8192 * nt}")
        b(f"s_mul_i32 {s(sT1)}, s2, {40 * 512}")
        b(f"s_add_u32 {s(sWRT)}, {s(sT0)}, {s(sT1)}")
        b(f"v_bfe_u32 {v(XR + 1)}, {v(vLN)}, 1, 2")
        b(f"v_lshlrev_b32 {v(XR + 1)}, 4, {v(XR + 1)}")
        b(f"v_xor_b32 {v(XR + 1)}, {v(XR + 1)}, {v(XR + 2)}")
        b(f"v_lshl_or_b32 {v(XR + 1)}, {v(XR)}, 6, {v(XR + 1)}")
        b(f"v_add_u32 {v(eO + 1)}, {s(sRB)}, {v(XR + 1)}")
        b(f"v_bfe_u32 {v(XR + 1)}, {v(vLN)}, 3, 2")
        b(f"v_xor_b32 {v(XR + 1)}, {v(XR + 1)}, {v(vLN)}")
        b(f"v_lshl_add_u32 {v(eO + 2)}, {v(XR + 1)}, 4, {s(sRB)}")
        b(f"v_lshrrev_b32 {v(XR + 1)}, 2, {v(vLN)}")
        b(f"v_and_b32 {v(XR + 3)}, 3, {v(vLN)}")
        b(f"v_lshlrev_b32 {v(XR + 3)}, 4, {v(XR + 3)}")
        b(f"v_lshl_or_b32 {v(eO)}, {v(XR + 1)}, 9, {v(XR + 3)}")
        b(f"s_mov_b32 {s(sE0)}, 0x00ff00ff")
        b(f"s_bitcmp1_b32 {s(sGX)}, 0")
        b(f"s_cselect_b32 {s(sE0)}, 0xff00ff00, {s(sE0)}")
        b(f"s_mov_b32 {s(sE0 + 1)}, {s(sE0)}")
        b(f"s_mov_b32 {s(sC0)}, {LOG2E}")
        b(f"s_mov_b32 {s(sC0 + 1)}, {LOG2E}")
        b(f"s_mov_b32 {s(sE1)}, {LN2}")
        b(f"s_mov_b32 {s(sE1 + 1)}, {LN2}")
        b(f"s_mov_b32 {s(sT1)}, 0xffff0000")

    rest = [(0, 4), (0, 5), (0, 6), (0, 7)] + [(1, kk) for kk in range(8)]
    per = [2, 2, 2, 2, 1, 1, 1, 1]
    fill = capture(late_setup)
    emit(a, mreads(0))
    for kk in range(8):
        a("s_waitcnt vmcnt(4) lgkmcnt(0)" if kk == 0 else "s_waitcnt lgkmcnt(0)")
        emit(a, mreads(kk + 1) if kk < 7 else hreads(MF, 0))
        mine = fill[5 * kk:5 * kk + 5] + [w_load(*rest.pop(0)) for _ in range(per[kk])]
        mf = [mf16(MA + 8 * nt + 4 * ct, WH2 + 32 * ct + 4 * kk, MF + 12 * (kk & 1) + 4 * nt, "0" if kk == 0 else MA + 8 * nt + 4 * ct)
              for nt in range(3) for ct in range(2)]
        emit(a, place(mine, [((j * len(mine)) // 6, mf[j]) for j in range(6)]))
    assert len(fill) <= 40

    def c_step(ct, kk):
        out = [f"s_waitcnt vmcnt({(8 if kk == 0 else 63) if ct == 0 else 7 - kk}) lgkmcnt(0)".replace("vmcnt(63) ", "")]
        if kk < 7:
            out += hreads(MF, kk + 1)
        elif ct == 0:
            out += hreads(MF, 0)
        for nt in range(3):
            d = CA + 8 * nt + 4 * ct
            out.append(mf16(d, W1 + 32 * ct + 4 * kk, MF + 12 * (kk & 1) + 4 * nt, "0" if kk == 0 else d))
        return out

    emit(a, c_step(0, 0) + c_step(0, 1))
    a(f"s_bitcmp1_b32 {s(sGX)}, 0")
    a("s_cbranch_scc1 K2_XODD")
    for i in range(8):
        a(f"v_mov_b32_dpp {v(XR + i)}, {v(MA + 16 + i)} row_ror:8 row_mask:0xf bank_mask:0xf")
    a.label("K2_XDONE")
    emit(a, c_step(0, 2))
    a(f"s_lshr_b32 {s(sT0)}, {s(sGX)}, 1")
    a(f"s_lshl_b32 {s(sT0)}, {s(sT0)}, 3")
    a(f"s_mov_b64 exec, {s(sE0, 2)}")
    a(f"s_set_gpr_idx_on {s(sT0)}, gpr_idx(SRC1,DST)")
    for i in range(8):
        a(f"v_add_f32 {v(MA + i)}, {v(XR + i)}, {v(MA + i)}")
    a("s_set_gpr_idx_off")
    a("s_mov_b64 exec, -1")
    far.append("K2_XODD:")
    far += [f"v_mov_b32 {v(XR + i)}, {v(MA + 16 + i)}" for i in range(8)] + ["s_branch K2_XDONE"]
    for kk in range(3, 8):
        emit(a, c_step(0, kk))
    a.stamp()

    def silu(ct, packed):
        regs = [(nt, p) for nt in range(3) for p in range(2)]
        z = lambda nt, p: MA + 8 * nt + 4 * ct + 2 * p
        c = lambda nt, p: CA + 8 * nt + 4 * ct + 2 * p
        g = lambda nt, p: G + 4 * nt + 2 * p
        out = []

        def two(pk, plain):
            for nt, p in regs:
                if packed:
                    out.append(pk(z(nt, p), c(nt, p), g(nt, p)))
                else:
                    out.extend(plain(z(nt, p) + i, c(nt, p) + i, g(nt, p) + i) for i in range(2))
        two(lambda z_, c_, g_: f"v_pk_fma_f32 {v(z_, 2)}, {v(c_, 2)}, {s(sC0, 2)}, {v(z_, 2)}",
            lambda z_, c_, g_: f"v_fmac_f32 {v(z_)}, {s(sC0)}, {v(c_)}")
        for nt, p in regs:
            out += [f"v_exp_f32 {v(g(nt, p) + i)}, -{v(z(nt, p) + i)}" for i in range(2)]
        two(lambda z_, c_, g_: f"v_pk_add_f32 {v(g_, 2)}, {v(g_, 2)}, 1.0 op_sel_hi:[1,0]",
            lambda z_, c_, g_: f"v_add_f32 {v(g_)}, 1.0, {v(g_)}")
        for nt, p in regs:
            out += [f"v_rcp_f32 {v(g(nt, p) + i)}, {v(g(nt, p) + i)}" for i in range(2)]
        two(lambda z_, c_, g_: f"v_pk_mul_f32 {v(g_, 2)}, {v(g_, 2)}, {v(z_, 2)}",
            lambda z_, c_, g_: f"v_mul_f32 {v(g_)}, {v(g_)}, {v(z_)}")
        for nt, p in regs:
            out.append(f"v_lshlrev_b32 {v(z(nt, p))}, 16, {v(HR + 4 * nt + 2 * ct + p)}")
            out.append(f"v_and_b32 {v(z(nt, p) + 1)}, {s(sT1)}, {v(HR + 4 * nt + 2 * ct + p)}")
        two(lambda z_, c_, g_: f"v_pk_fma_f32 {v(g_, 2)}, {v(g_, 2)}, {s(sE1, 2)}, {v(z_, 2)}",
            lambda z_, c_, g_: f"v_fma_f32 {v(g_)}, {v(g_)}, {s(sE1)}, {v(z_)}")
        for nt, p in regs:
            out.append(f"v_cvt_pk_bf16_f32 {v(HR + 4 * nt + 2 * ct + p)}, {v(g(nt, p))}, {v(g(nt, p) + 1)}")
        return out

    sl = silu(0, False)
    emit(a, c_step(1, 0) + ["s_nop 0"] + place(sl, [(9 * kk - 6, c_step(1, kk)) for kk in range(1, 8)]))
    emit(a, silu(1, True))
    for nt in range(3):
        a(f"ds_write_b128 {v(eO + 1)}, {v(HR + 4 * nt, 4)} offset:{1024 * nt}")
    for nt in range(3):
        a(f"ds_read_b128 {v(CA + 4 * nt, 4)}, {v(eO + 2)} offset:{1024 * nt}")
    for nt in range(3):
        a(f"s_waitcnt lgkmcnt({2 - nt})")
        if nt == 2:
            a("s_mov_b32 exec_hi, 0")
        a(f"buffer_store_dwordx4 {v(CA + 4 * nt, 4)}, {v(eO)}, {s(S_OUT, 4)}, {s(sWRT)} offen")
        a(f"s_add_u32 {s(sWRT)}, {s(sWRT)}, 8192" if nt < 2 else "s_mov_b32 exec_hi, -1")
    a(f"s_cmp_ge_u32 {s(sWV)}, 2")
    a("s_cbranch_scc1 K2_EXIT")
    a(f"v_mul_u32_u24 v4, 21846, {v(vTID)}")
    a(f"v_lshrrev_b32 v4, 16, v4")
    a(f"v_mul_u32_u24 v5, 3, v4")
    a(f"v_sub_u32 v5, {v(vTID)}, v5")
    a(f"v_and_b32 v6, 7, v4")
    a(f"v_lshl_add_u32 v5, v5, 3, v6")
    a(f"v_lshlrev_b32 v5, 2, v5")
    a(f"v_add_u32 v5, {LPOS + 32}, v5")
    a(f"v_lshrrev_b32 v4, 3, v4")
    a(f"v_lshl_add_u32 v6, v4, 9, v5")
    a(f"v_add_u32 v5, {5 * 512}, v5")
    a("ds_read2_b32 v[8:9], v6 offset1:32")
    a("ds_read2_b32 v[10:11], v6 offset0:64 offset1:96")
    a("ds_read2_b32 v[12:13], v5 offset1:32")
    a("ds_read2_b32 v[14:15], v5 offset0:64 offset1:96")
    a(f"v_lshlrev_b32 v2, 1, {v(vTID)}")
    a(f"v_add_u32 v7, {LPD}, v2")
    a(f"ds_read_u16 v3, v7")
    a(f"v_cmp_gt_u32 vcc, 120, {v(vTID)}")
    a(f"s_mul_i32 {s(sT0)}, s2, 240")
    a(f"s_add_u32 {s(sT0)}, {s(sT0)}, {N * 512}")
    a(f"v_mov_b32 v1, {MARK}")
    a(f"v_cndmask_b32 v1, v1, v2, vcc")
    a(f"v_cmp_eq_u32 vcc, {s(sGX)}, v4")
    a("s_waitcnt lgkmcnt(0)")
    a("v_pk_add_f32 v[8:9], v[8:9], v[10:11]")
    a("v_pk_add_f32 v[12:13], v[12:13], v[14:15]")
    a("v_lshlrev_b32 v3, 16, v3")
    a("v_add_f32 v8, v8, v9")
    a("v_add_f32 v12, v12, v13")
    a("v_cndmask_b32 v12, 0, v12, vcc")
    a("v_add_f32 v8, v8, v12")
    a(f"v_fma_f32 v3, v8, {s(sE1)}, v3")
    a("v_cvt_pk_bf16_f32 v3, v3, v3")
    a(f"buffer_store_short v3, v1, {s(S_OUT, 4)}, {s(sT0)} offen")
    a.label("K2_EXIT")
    a.stamp()
    a.stamp(True)
    if a.stamps:
        a(f"s_mov_b32 {s(S_BP + 2)}, {16 << 20}")
    a.dump_stamps(S_BP, STAMP2_OFF - BP_OFF + 3072, 0, sWV, sT0)
    a.label("K2_END")
    a("s_endpgm")

    emit(a, far)
    a.label("K2_WREST")
    wh2_part(a, fresh(), "K2_FINAL")

    a.label("K2_NOA")
    emit(a, LATE)
    batch_consts(a)
    dense_addr(a)
    a("s_waitcnt vmcnt(0) lgkmcnt(0)")
    emit(a, dense(a, 0))
    dense_second()
    a("s_waitcnt lgkmcnt(0)")
    a("s_barrier")
    a("s_branch K2_READY")
    a.label("K2_OVER")
    a(f"s_cmp_lg_u32 {s(sSLOW)}, 0")
    a("s_cbranch_scc1 K2_FITS")
    a(f"s_mov_b32 {s(sSLOW)}, 1")
    a(f"s_mov_b32 {s(sLO)}, 0")
    a(f"s_mov_b32 {s(sTOT)}, {s(sBT)}")
    a(f"v_add_u32 {v(tT)}, {s(sTL)}, {v(tT)}")
    lane_setup()
    a(f"v_lshrrev_b32 {v(t2)}, 1, {v(t2)}")
    a(f"v_add_u32 {v(t2)}, 40960, {v(t2)}")
    a(f"buffer_store_dword {v(tT)}, {v(t2)}, {s(S_TMP, 4)}, 0 offen")
    a(f"v_lshlrev_b32 {v(t0)}, 4, {v(vTID)}")
    for r in range(5):
        a(f"buffer_store_dwordx4 {v(ZER, 4)}, {v(t0)}, {s(S_TMP, 4)}, 0 offen")
        a(f"v_add_u32 {v(t0)}, 8192, {v(t0)}")
    a("s_waitcnt vmcnt(0) lgkmcnt(0)")
    a("s_barrier")
    a("s_branch K2_SETUP")
    a.label("K2_NEXT")
    a("s_waitcnt vmcnt(0) lgkmcnt(0)")
    a("s_barrier")
    a(f"s_mov_b32 {s(sFIRST)}, 0")
    a(f"s_add_u32 {s(sLO)}, {s(sLO)}, {s(sBT)}")
    a(f"s_cmp_ge_u32 {s(sLO)}, {s(sTOT)}")
    a("s_cbranch_scc1 K2_LAST")
    a(f"s_cmp_eq_u32 {s(sBT)}, 0")
    a("s_cbranch_scc1 K2_LAST")
    emit(a, lds_init(a, False))
    a.label("K2_SETUP")
    lane_setup()
    a(f"buffer_load_dwordx2 {v(tDL, 2)}, {v(t2)}, {s(S_DESC, 4)}, 0 offen")
    a(f"v_lshrrev_b32 {v(t2)}, 1, {v(t2)}")
    a(f"v_add_u32 {v(t2)}, 40960, {v(t2)}")
    a(f"buffer_load_dword {v(t2)}, {v(t2)}, {s(S_TMP, 4)}, 0 offen sc1")
    lane_setup2()
    w1_pages()
    a("s_waitcnt vmcnt(0) lgkmcnt(0)")
    a(f"v_and_b32 {v(t0)}, 1023, {v(tDL)}")
    a(f"v_lshrrev_b32 {v(t1)}, 20, {v(tDH)}")
    a(f"v_sub_u32 {v(t0)}, {v(t1)}, {v(t0)}")
    a(f"v_sub_u32 {v(t0)}, {v(t2)}, {v(t0)}")
    a(f"s_add_u32 {s(sT0)}, {s(sLO)}, {LIMIT}")
    a(f"v_cmp_le_u32 vcc, {s(sLO)}, {v(t0)}")
    a(f"v_cmp_ge_u32 {s(sT2, 2)}, {s(sT0)}, {v(t2)}")
    a("s_nop 1")
    a(f"s_and_b64 vcc, vcc, {s(sT2, 2)}")
    a("s_nop 1")
    a(f"v_cndmask_b32 {v(tDL)}, 0, {v(tDL)}, vcc")
    a(f"v_cndmask_b32 {v(tDH)}, 0, {v(tDH)}, vcc")
    a("s_branch K2_BATCH")
    a.label("K2_LAST")
    a(f"v_lshlrev_b32 v0, 6, {v(vTID)}")
    a(f"v_lshrrev_b32 v1, 4, {v(vTID)}")
    a(f"v_mul_u32_u24 v1, {MROW}, v1")
    a(f"v_and_b32 v2, 15, {v(vTID)}")
    a(f"v_lshl_add_u32 v1, v2, 5, v1")
    a(f"v_add_u32 v1, {LM}, v1")
    for r in range(2):
        for k in range(4):
            a(f"buffer_load_dwordx4 {v(4 + 4 * k, 4)}, v0, {s(S_TMP, 4)}, 0 offen offset:{16 * k} sc1")
        a("s_waitcnt vmcnt(0)")
        for p in range(8):
            a(f"v_cvt_pk_bf16_f32 {v(20 + p)}, {v(4 + 2 * p)}, {v(5 + 2 * p)}")
        a(f"ds_write_b128 v1, v[20:23] offset:{32 * MROW * r}")
        a(f"ds_write_b128 v1, v[24:27] offset:{32 * MROW * r + 16}")
        if r == 0:
            a(f"v_cmp_gt_u32 vcc, 128, {v(vTID)}")
            a("v_add_u32 v0, 32768, v0")
            a("s_waitcnt lgkmcnt(0)")
            a("s_and_saveexec_b64 s[4:5], vcc")
            a("s_cbranch_execz K2_LAST2")
    a.label("K2_LAST2")
    a("s_mov_b64 exec, -1")
    a("s_branch K2_FINAL")
    return dict(name="edge_kernel", vgpr=256, sgpr=102, grid=256, block=512, lds=K2_LDS)
```

```python
import os
from asmlib import Asm, v, s
from cfg import *
from k1 import srd, srd_off

NTMAX = 52
CAP = NTMAX * 16
LIMIT = CAP - 75
XT = 384
LS = 0
LX = LS + NTMAX * 1024
LL = LX + NTMAX * XT
LE = LL + (CAP + 64) * 4
LZ = LE + CAP * 4
LPOS = LZ + 512
LWX = LPOS + 6 * 512
LTOT = LWX + 512
LPD = LTOT + 128
LM = LPD + 256
MROW = 528
LH = (LM + 48 * MROW + 255) // 256 * 256
LR = LH + 40 * 512
RING = 4096
K2_LDS = LR + 8 * RING
assert LM % 16 == 0 and LR % 64 == 0 and LZ % 16 == 0 and K2_LDS <= 163840
MARK = 0x40000000
SPLIT_NUM = int(os.environ.get("SPLIT", "42"))

YA, YB, EA_, EB = 0, 16, 32, 48
ACC, MP, AF, X2, SP, LST = 64, 96, 104, 112, 120, 124
Y2Q, Y2C, Y2K, ID, QUA, ZER = 128, 148, 152, 156, 164, 168
vS, vL, vX1, vX2, vXS, vR0, vG, vR1, vMA, vWXA, vT0, vT1, vLN, vTID = range(172, 186)
vHB = 186
WH2 = 192
T = WH2
S_BP, S_REC, S_DESC, S_FR, S_H, S_POS, S_OUT, S_TMP = 24, 28, 32, 36, 40, 44, 48, 52
sK3, sK2, sK1, sIT = 56, 57, 58, 59
sWV, sQ, sST, sFIRST, sSLOW, sLO, sTOT = 60, 61, 62, 63, 64, 65, 66
sTB = 67
sINIT = 73
sMASK = 74
sREM, sPEND, sGA, sRB, sT0, sT1, sT2, sT3 = 76, 77, 78, 79, 80, 81, 82, 83
sC0 = 84
sWB, sTL, sBT, sPS = 86, 87, 88, 89
sE0, sE1 = 90, 92
sWRT, sGX, sW1 = 23, 21, 99
sSTR = 100

uid = [0]


def fresh():
    uid[0] += 1
    return uid[0]


def emit(a, lines):
    for ln in lines:
        a(ln)


def group_of(a, dst, tile):
    a(f"s_mov_b32 {s(dst)}, 0")
    for g in range(1, 5):
        a(f"s_cmp_ge_u32 {s(tile)}, {s(sTB + g)}")
        a(f"s_addc_u32 {s(dst)}, {s(dst)}, 0")


def tile_index(a, off):
    a(f"s_sub_u32 {s(sTL)}, {s(sPEND)}, {s(sREM)}")
    a(f"s_lshl_b32 {s(sTL)}, {s(sTL)}, 1")
    a(f"s_add_u32 {s(sTL)}, {s(sTL)}, {(off - 2) & 0xffffffff}")


def mf32(d, x, y, c):
    return f"v_mfma_f32_32x32x16_bf16 {v(d, 16)}, {v(x, 4)}, {v(y, 4)}, {c if c == '0' else v(c, 16)}"


def mf8(d, x, y, c):
    return f"v_mfma_f32_32x32x8_bf16 {v(d, 16)}, {v(x, 2)}, {v(y, 2)}, {c if c == '0' else v(c, 16)}"


def mf16(d, x, y, c):
    return f"v_mfma_f32_16x16x32_bf16 {v(d, 4)}, {v(x, 4)}, {v(y, 4)}, {c if c == '0' else v(c, 4)}"


def p_mfmas(Y):
    return [mf32(Y, AF, ID, "0"), mf32(Y, AF + 4, ID + 4, Y), mf32(Y, X2, Y2C, Y), mf8(Y, X2 + 4, Y2K, Y)]


S1, S2 = mf32(ACC, MP, SP, ACC), mf32(ACC + 16, MP + 4, SP, ACC + 16)


def flush(b, F, WX, fill=()):
    n = fresh()
    fill = list(fill)
    b(f"s_cmp_lg_u32 {s(sSLOW)}, 0")
    b(f"s_cbranch_scc1 K2_FA{n}")
    b.label(f"K2_FB{n}")
    rd = [f"ds_read_b128 {v(WX[k], 4)}, {v(vWXA)} offset:{32 * k}" for k in range(4)]
    early = [k for k in range(4) if not ACC <= WX[k] < ACC + 32]
    emit(b, [rd[k] for k in early])
    b(f"s_mul_i32 {s(sT0)}, {s(sGA)}, {8 * MROW}")
    b(f"s_lshl_b32 {s(sT1)}, {s(sGA)}, 9")
    b(f"s_lshl_b32 {s(sT2)}, {s(sQ)}, 7")
    b(f"s_add_u32 {s(sT1)}, {s(sT1)}, {s(sT2)}")
    b(f"s_add_u32 {s(sT1)}, {s(sT1)}, {LPOS}")
    for st in range(2):
        for p in range(8):
            b(f"v_cvt_pk_bf16_f32 {v(F + 8 * st + p)}, {v(ACC + 16 * st + 2 * p)}, {v(ACC + 16 * st + 2 * p + 1)}")
        if st == 0:
            emit(b, [rd[k] for k in range(4) if k not in early])
    b(f"v_add_u32 {v(vT0)}, {s(sT0)}, {v(vMA)}")
    b(f"v_lshl_add_u32 {v(vT1)}, {v(vLN)}, 2, {s(sT1)}")
    for k in range(4):
        if k == 0 or k == len(early):
            b(f"s_waitcnt lgkmcnt({4 - len(early) if k == 0 else 0})")
        b(mf32(ACC + 16, WX[k], F + 4 * k, "0" if k == 0 else ACC + 16))
        emit(b, fill[(k * len(fill)) // 4:((k + 1) * len(fill)) // 4])
    b(f"s_mov_b64 exec, {s(sE0, 2)}")
    for st in range(2):
        for p in range(4):
            b(f"ds_write_b64 {v(vT0)}, {v(F + 8 * st + 2 * p, 2)} offset:{64 * st + 16 * p}")
    b(f"s_mov_b64 exec, {s(sE1, 2)}")
    b(f"s_cmp_lg_u32 {s(sSLOW)}, 0")
    b(f"s_cbranch_scc1 K2_FC{n}")
    b(f"ds_write_b32 {v(vT1)}, {v(ACC + 16)}")
    b.label(f"K2_FD{n}")
    b("s_mov_b64 exec, -1")
    o = Asm()
    o.label(f"K2_FA{n}")
    o(f"s_lshl_b32 {s(sT0)}, {s(sGA)}, 13")
    o(f"s_lshl_b32 {s(sT1)}, {s(sQ)}, 8")
    o(f"s_add_u32 {s(sT0)}, {s(sT0)}, {s(sT1)}")
    o(f"v_and_b32 {v(vT0)}, 7, {v(vLN)}")
    o(f"v_lshrrev_b32 {v(vT1)}, 5, {v(vLN)}")
    o(f"v_lshlrev_b32 {v(vT1)}, 4, {v(vT1)}")
    o(f"v_lshl_or_b32 {v(vT0)}, {v(vT0)}, 10, {v(vT1)}")
    o(f"s_mov_b64 exec, {s(sE0, 2)}")
    for st in range(2):
        for k in range(4):
            o(f"buffer_load_dwordx4 {v(F + 4 * k, 4)}, {v(vT0)}, {s(S_TMP, 4)}, {s(sT0)} offen offset:{128 * st + 32 * k} sc1")
        o("s_waitcnt vmcnt(0)")
        for p in range(8):
            o(f"v_pk_add_f32 {v(F + 2 * p, 2)}, {v(F + 2 * p, 2)}, {v(ACC + 16 * st + 2 * p, 2)}")
        for k in range(4):
            o(f"buffer_store_dwordx4 {v(F + 4 * k, 4)}, {v(vT0)}, {s(S_TMP, 4)}, {s(sT0)} offen offset:{128 * st + 32 * k}")
        o("s_waitcnt vmcnt(0)")
    o("s_mov_b64 exec, -1")
    o(f"s_branch K2_FB{n}")
    o.label(f"K2_FC{n}")
    o(f"ds_add_f32 {v(vT1)}, {v(ACC + 16)}")
    o(f"s_branch K2_FD{n}")
    return o.lines


def late_state(b):
    b(f"s_lshl_b32 {s(sTL)}, {s(sPS)}, 1")
    b(f"s_mov_b32 {s(sWRT)}, 0")
    for g in range(5):
        b(f"s_cmp_lg_u32 {s(sTB + g)}, {s(sTB + g + 1)}")
        b(f"s_cselect_b32 {s(sT0)}, {1 << g}, 0")
        b(f"s_cmp_lg_u32 {s(sTB + g)}, {s(sTL)}")
        b(f"s_cselect_b32 {s(sT0)}, {s(sT0)}, 0")
        b(f"s_or_b32 {s(sWRT)}, {s(sWRT)}, {s(sT0)}")
    b(f"s_cmp_lt_u32 {s(sTL)}, {s(sTB + 5)}")
    b(f"s_cselect_b32 {s(sT0)}, 32, 0")
    b(f"s_or_b32 {s(sWRT)}, {s(sWRT)}, {s(sT0)}")
    b(f"s_cmp_lg_u32 {s(sSLOW)}, 0")
    b(f"s_cselect_b32 {s(sWRT)}, 31, {s(sWRT)}")
    group_of(b, sGX, sTL)


def wh2_part(o, n, done):
    o(f"v_lshlrev_b32 {v(vT0)}, 4, {v(vLN)}")
    o(f"s_lshl_b32 {s(sT0)}, {s(sIT)}, 12")
    o(f"s_add_u32 {s(sT0)}, {s(sT0)}, {s(sWB)}")
    o(f"s_add_u32 {s(sIT)}, {s(sIT)}, 1")
    for part in range(4):
        if part < 3:
            o(f"s_cmp_lg_u32 {s(sIT)}, {part + 1}")
            o(f"s_cbranch_scc1 K2_W{n}_{part + 1}")
        for f in range(4):
            o(f"buffer_load_dwordx4 {v(WH2 + 16 * part + 4 * f, 4)}, {v(vT0)}, {s(S_FR, 4)}, {s(sT0)} offen offset:{1024 * f}")
        o(f"s_branch {done}")
        if part < 3:
            o.label(f"K2_W{n}_{part + 1}")


def site(off_s, off_p, F, WX=None):
    n = fresh()
    bits = (0 if off_s is None else 1 << (off_s + 1)) | (0 if off_p is None else 1 << (off_p + 1))
    chk = [f"s_and_b32 {s(sT0)}, {s(sMASK)}, {bits}", f"s_cbranch_scc1 K2_H{n}", f"K2_R{n}:"]
    o = Asm()
    far = []
    o.label(f"K2_H{n}")
    if off_s is not None:
        if off_p is not None:
            o(f"s_bitcmp1_b32 {s(sMASK)}, {off_s + 1}")
            o(f"s_cbranch_scc0 K2_HP{n}")
        if off_s == 0:
            o(f"s_cmp_eq_u32 {s(sGA)}, -1")
            o(f"s_cbranch_scc1 K2_H0{n}")
        far = flush(o, F, WX)
        tile_index(o, off_s)
        group_of(o, sGA, sTL)
        o.label(f"K2_HZ{n}")
        o(mf8(ACC, ZER, ZER, "0"))
        o(mf8(ACC + 16, ZER, ZER, "0"))
    if off_p is not None:
        if off_s is not None:
            o(f"s_bitcmp1_b32 {s(sMASK)}, {off_p + 1}")
            o(f"s_cbranch_scc0 K2_HD{n}")
        o.label(f"K2_HP{n}")
        tile_index(o, off_p)
        group_of(o, sT0, sTL)
        o(f"s_lshl_b32 {s(sT0)}, {s(sT0)}, 2")
        o(f"s_set_gpr_idx_on {s(sT0)}, gpr_idx(SRC0)")
        for i in range(4):
            o(f"v_mov_b32 {v(Y2C + i)}, {v(Y2Q + i)}")
        o("s_set_gpr_idx_off")
        o(f"s_mov_b32 m0, {s(sRB)}")
    o.label(f"K2_HD{n}")
    if "x" in os.environ.get("ABL", ""):
        o(f"s_branch K2_R{n}")
    o(f"s_cmp_ge_u32 {s(sIT)}, 4")
    o(f"s_cbranch_scc1 K2_R{n}")
    wh2_part(o, n, f"K2_R{n}")
    if off_s == 0:
        o.label(f"K2_H0{n}")
        late_state(o)
        tile_index(o, off_s)
        group_of(o, sGA, sTL)
        o(f"s_cmp_eq_u32 {s(sST)}, 0")
        o(f"s_cselect_b32 {s(sGA)}, {s(sGA)}, 5")
        o(f"s_branch K2_HZ{n}")
    return chk, o.lines + far


def dma(slot):
    so = [s(sK3), s(sK2), s(sK1), "0"]
    return [f"buffer_load_dwordx4 {v(LST + 2 * slot + i)}, {s(S_BP, 4)}, {so[2 * slot + i]} offen offset:{2048 * slot + 1024 * i} {os.environ.get('F4', '')} lds" for i in range(2)]


LST_ADD = [f"v_pk_add_f32 {v(LST + 2 * i, 2)}, {v(LST + 2 * i, 2)}, {v(vG, 2)} op_sel_hi:[1,0]" for i in range(2)]


def frag_reads(slot):
    return [f"ds_read_b128 {v(AF, 4)}, {v(vR0)} offset:{slot * 2048}",
            f"ds_read_b128 {v(AF + 4, 4)}, {v(vR1)} offset:{slot * 2048}",
            f"ds_read_b128 {v(X2, 4)}, {v(vX1)} offset:{slot * XT}",
            f"ds_read_b64 {v(X2 + 4, 2)}, {v(vX2)} offset:{slot * XT}"]


def list_read(ahead):
    return f"ds_read2_b64 {v(LST, 4)}, {v(vL)} offset0:{16 * ahead} offset1:{16 * ahead + 8}"


ADV_X = f"v_pk_add_f32 {v(vX1, 2)}, {v(vX1, 2)}, {v(vXS, 2)} op_sel_hi:[1,0]"
ADV_S = f"v_pk_add_f32 {v(vS, 2)}, {v(vS, 2)}, {s(sSTR, 2)}"


def exps(Y, Ex):
    return [f"v_exp_f32 {v(Ex + i)}, -{v(Y + i)}" for i in range(16)]


def rcps(Ex):
    return [f"v_rcp_f32 {v(Ex + i)}, {v(Ex + i)}" for i in range(16)]


def pkmuls(Y, Ex):
    return [f"v_pk_mul_f32 {v(Ex + 2 * i, 2)}, {v(Ex + 2 * i, 2)}, {v(Y + 2 * i, 2)}" for i in range(8)]


def cvts(Ex):
    return [f"v_cvt_pk_bf16_f32 {v(MP + i)}, {v(Ex + 2 * i)}, {v(Ex + 2 * i + 1)}" for i in range(8)]


def plus_one(Ex):
    return mf8(Ex, QUA, QUA, Ex)


def place(main, items):
    out = []
    for i, ins in enumerate(main + [None]):
        for pos, lines in items:
            if pos == i:
                out.extend(lines if isinstance(lines, list) else [lines])
        if ins is not None:
            out.append(ins)
    return out


def loop_body(far, mm=(0, 6, 10, 13, 16, 19), dm=(2, 4), op=2, r0=7, r1=14, pw=11, prio=os.environ.get('PRIO', '1') == '1'):
    hi = ["s_setprio 3"] if prio else []
    lo = ["s_setprio 0"] if prio else []
    chk, o = site(-1, 1, YB, [EA_ + 4 * k for k in range(4)])
    far.extend(o)
    m, d = p_mfmas(YB) + [S1, S2], dma(1)
    blk = place(cvts(EB) + exps(YA, EA_) + exps(YB, EB), [(0, lo + ["s_waitcnt lgkmcnt(0)"] + chk)] +
                [(mm[i], m[i]) for i in range(6)] + [(dm[0], d[0]), (dm[1], d[1])] +
                [(mm[5] + 1, [f"ds_read_b128 {v(SP, 4)}, {v(vS)}", list_read(2)]), (24 + op, plus_one(EA_))])
    blk += place(rcps(EA_) + pkmuls(YA, EA_) + LST_ADD, [
        (op, plus_one(EB)), (r0, ["s_waitcnt vmcnt(2) lgkmcnt(0)"] + frag_reads(0)), (pw, hi)])
    chk, o = site(0, 2, YA, [MP, MP + 4, ACC, ACC + 4])
    far.extend(o)
    m, d = p_mfmas(YA) + [S1, S2], dma(0)
    blk += place(cvts(EA_) + rcps(EB) + pkmuls(YB, EB) + [ADV_S, ADV_X], [(0, lo + ["s_waitcnt lgkmcnt(0)"] + chk)] +
                 [(mm[i], m[i]) for i in range(6)] + [(dm[0], d[0]), (dm[1], d[1])] +
                 [(r1, ["s_waitcnt vmcnt(2)"] + frag_reads(1)),
                  (r1 + 3, [f"s_lshr_b64 {s(sMASK, 2)}, {s(sMASK, 2)}, 2", f"s_sub_u32 {s(sREM)}, {s(sREM)}, 1"]),
                  (mm[5] + 1, [f"ds_read_b128 {v(SP, 4)}, {v(vS)} offset:1024"] + hi)])
    return blk


def spread(main, extra):
    n, k = len(main), len(extra)
    return place(main, [(min(n, (i * n) // k + (n // k) // 2), x) for i, x in enumerate(extra)])


def capture(fn):
    b = Asm()
    fn(b)
    return b.lines


def colmap_v(a, dst, src, tmp):
    a(f"v_and_b32 {v(dst)}, 0x23, {v(src)}")
    a(f"v_bfe_u32 {v(tmp)}, {v(src)}, 2, 1")
    a(f"v_lshl_or_b32 {v(dst)}, {v(tmp)}, 4, {v(dst)}")
    a(f"v_bfe_u32 {v(tmp)}, {v(src)}, 3, 2")
    a(f"v_lshl_or_b32 {v(dst)}, {v(tmp)}, 2, {v(dst)}")


def gen_k2(a, stamps=False):
    if stamps:
        a.stamps = (94, [96, 97, 98] + list(range(4, 20)))
    tDL, tDH, tN, tO0, tP2, tRA = T, T + 1, T + 2, T + 3, T + 4, T + 5
    tA, tB, tT = T + 6, T + 7, T + 8
    tF = T + 9
    tV = T + 10
    tR = T + 12
    tWD, tWE, tWX, tPP = T + 20, T + 21, T + 22, T + 23
    t0, t1, t2, t3, t4, t5 = range(T + 24, T + 30)
    tW, tM = T + 36, T + 38
    tPS, tPD = T + 40, T + 30
    tAS, tAX, tI = T + 48, T + 49, T + 51
    tH = T + 60
    AG, HF = ACC, ACC + 24
    far = []

    def lane_setup():
        a(f"v_lshrrev_b32 {v(t0)}, 1, {v(vLN)}")
        a(f"s_lshl_b32 {s(sT0)}, {s(sWV)}, 8")
        a(f"v_lshl_add_u32 {v(t2)}, {v(t0)}, 3, {s(sT0)}")
        a(f"v_lshl_add_u32 {v(tRA)}, {v(t0)}, 3, {s(sWV)}")

    def lane_setup2():
        a(f"v_mul_u32_u24 {v(tRA)}, {CH}, {v(tRA)}")
        a(f"v_and_b32 {v(tP2)}, 1, {v(vLN)}")
        a(f"v_lshlrev_b32 {v(tP2)}, 1, {v(tP2)}")
        a(f"v_lshlrev_b32 {v(tF)}, 4, {v(vLN)}")

    def w1_load(kk, ct):
        page = 2 * ct + (kk >> 2)
        return f"buffer_load_dwordx4 {v(8 * kk + 4 * ct, 4)}, {v(tF if page == 0 else T + 52 + page)}, {s(S_FR, 4)}, {s(sW1)} offen offset:{1024 * (kk & 3)}"

    def w1_pages():
        for page in range(1, 4):
            a(f"v_add_u32 {v(T + 52 + page)}, {4096 * page}, {v(tF)}")

    W1L = [w1_load(kk, ct) for kk in range(8) for ct in range(2)]

    def lds_init(b, first):
        b(f"v_lshlrev_b32 {v(t4)}, 4, {v(vTID)}")
        b(f"v_add_u32 {v(t5)}, 65536, {v(t4)}")
        total = LL // 16
        assert total // 512 == 8 and (LWX - LZ) // 16 == 224 and (CAP + 64) // 4 == 224
        for r in range(8):
            b(f"ds_write_b128 {v(t4)}, {v(ZER, 4)} offset:{8192 * r}")
        b(f"v_cmp_gt_u32 vcc, {total - 4096}, {v(vTID)}")
        for i in range(4):
            b(f"v_mov_b32 {v(T + 56 + i)}, {MARK}")
        tail = ["s_mov_b64 exec, vcc", f"v_cmp_gt_u32 vcc, 224, {v(vTID)}", f"ds_write_b128 {v(t5)}, {v(ZER, 4)}", "s_mov_b64 exec, vcc"]
        if first:
            tail.append(f"ds_write_b128 {v(t5)}, {v(ZER, 4)} offset:{LZ - 65536}")
        tail += [f"ds_write_b128 {v(t5)}, {v(T + 56, 4)} offset:{LL - 65536}", "s_mov_b64 exec, -1"]
        return tail

    def once_consts(b):
        b(f"s_mov_b32 {s(sE0)}, 0xff")
        b(f"s_mov_b32 {s(sE0 + 1)}, 0xff")
        b(f"s_mov_b32 {s(sE1)}, -1")
        b(f"s_mov_b32 {s(sE1 + 1)}, 0")
        b(f"s_mov_b32 {s(sSTR)}, 2048")
        b(f"s_mov_b32 {s(sSTR + 1)}, 128")
        b(f"s_add_u32 {s(sWB)}, {s(sW1)}, {2 * FR_ONE}")
        b(f"v_and_b32 {v(t0)}, 15, {v(vLN)}")
        b(f"v_bfe_u32 {v(t1)}, {v(vLN)}, 4, 1")
        b(f"v_lshrrev_b32 {v(t2)}, 5, {v(vLN)}")
        b(f"v_lshl_or_b32 {v(t3)}, {v(t1)}, 2, {v(t2)}")
        b(f"v_bfe_u32 {v(t4)}, {v(vLN)}, 1, 2")
        b(f"v_xor_b32 {v(t3)}, {v(t3)}, {v(t4)}")
        b(f"v_lshlrev_b32 {v(t3)}, 4, {v(t3)}")
        b(f"v_lshl_or_b32 {v(t3)}, {v(t0)}, 7, {v(t3)}")
        b(f"v_add_u32 {v(vR0)}, {s(sRB)}, {v(t3)}")
        b(f"v_xor_b32 {v(vR1)}, 32, {v(vR0)}")
        b(f"v_cmp_eq_u32 vcc, {v(t1)}, {v(t2)}")
        b(f"v_mov_b32 {v(t3)}, {2 * XT}")
        b(f"v_and_b32 {v(t4)}, 7, {v(vLN)}")
        b(f"v_cndmask_b32 {v(vXS)}, 0, {v(t3)}, vcc")
        b(f"s_lshl_b32 {s(sT0)}, {s(sQ)}, 7")
        b(f"v_mul_u32_u24 {v(t3)}, {MROW}, {v(t4)}")
        b(f"v_lshl_add_u32 {v(t3)}, {v(t2)}, 3, {v(t3)}")
        b(f"s_add_u32 {s(sT1)}, {s(sT0)}, {LM}")
        b(f"v_add_u32 {v(vMA)}, {s(sT1)}, {v(t3)}")
        b(f"s_add_u32 {s(sT1)}, {s(sT0)}, {LWX}")
        b(f"v_lshl_add_u32 {v(vWXA)}, {v(t2)}, 4, {s(sT1)}")
        b(f"v_cmp_gt_u32 vcc, 32, {v(vLN)}")
        b(f"v_mov_b32 {v(t1)}, 0x3f80")
        b(f"v_mov_b32 {v(QUA + 1)}, 0")
        b(f"v_cndmask_b32 {v(QUA)}, 0, {v(t1)}, vcc")
        b(f"v_and_b32 {v(t0)}, 1, {v(vLN)}")
        b(f"v_lshlrev_b32 {v(t0)}, 4, {v(t0)}")
        b(f"v_lshlrev_b32 {v(t0)}, {v(t0)}, {v(t1)}")
        b(f"v_bfe_u32 {v(t1)}, {v(vLN)}, 1, 4")
        b(f"v_lshlrev_b32 {v(t2)}, 2, {v(t2)}")
        b(f"v_sub_u32 {v(t1)}, {v(t1)}, {v(t2)}")
        for p in range(4):
            b(f"v_cmp_eq_u32 vcc, {p}, {v(t1)}")
            b(f"v_cmp_eq_u32 {s(sT2, 2)}, {8 + p}, {v(t1)}")
            b("s_nop 0")
            b(f"v_cndmask_b32 {v(ID + p)}, 0, {v(t0)}, vcc")
            b(f"v_cndmask_b32 {v(ID + 4 + p)}, 0, {v(t0)}, {s(sT2, 2)}")

    def wde_consts(b):
        b(f"s_mov_b32 {s(sC0)}, {LOG2E}")
        b(f"s_mov_b32 {s(sC0 + 1)}, {LOG2E}")
        for i, w in enumerate((tWD, tWE)):
            b(f"v_lshlrev_b32 {v(t0)}, 16, {v(w)}")
            b(f"v_mul_f32 {v(t0)}, {s(sC0)}, {v(t0)}")
            b(f"v_cvt_pk_bf16_f32 {v(t1)}, {v(t0)}, {v(t0)}")
            b(f"v_lshlrev_b32 {v(t1)}, 16, {v(t1)}")
            b(f"v_sub_f32 {v(t1)}, {v(t0)}, {v(t1)}")
            b(f"v_cvt_pk_bf16_f32 {v(Y2K + i)}, {v(t0)}, {v(t1)}")

    def dense_addr(b):
        b(f"v_lshrrev_b32 {v(t0)}, 3, {v(vTID)}")
        b(f"v_lshlrev_b32 {v(tAS)}, 9, {v(t0)}")
        b(f"v_and_b32 {v(t1)}, 1, {v(vTID)}")
        b(f"v_lshl_or_b32 {v(tAS)}, {v(t1)}, 3, {v(tAS)}")
        b(f"v_and_b32 {v(t2)}, 6, {v(vTID)}")
        b(f"v_or_b32 {v(tAS)}, {v(tAS)}, {v(t2)}")
        b(f"v_lshrrev_b32 {v(t0)}, 4, {v(vTID)}")
        b(f"v_mul_u32_u24 {v(t0)}, {XT}, {v(t0)}")
        b(f"v_bfe_u32 {v(t3)}, {v(vTID)}, 1, 3")
        b(f"v_lshl_or_b32 {v(t3)}, {v(t1)}, 3, {v(t3)}")
        b(f"v_add_u32 {v(t0)}, {LX}, {v(t0)}")
        b(f"v_lshl_add_u32 {v(tAX)}, {v(t3)}, 4, {v(t0)}")
        b(f"v_lshl_add_u32 {v(tAX + 1)}, {v(t3)}, 3, {v(t0)}")

    a.label("edge_kernel")
    a("s_cmp_ge_u32 s2, 256")
    a("s_cbranch_scc1 K2_END")
    a("s_and_b32 s3, s2, 7")
    a("s_lshl_b32 s3, s3, 5")
    a("s_lshr_b32 s2, s2, 3")
    a("s_add_u32 s2, s2, s3")
    a(f"s_cmp_ge_u32 s2, {NB}")
    a("s_cbranch_scc1 K2_END")
    a.stamp(True)
    a.stamp()
    a("s_load_dwordx2 s[22:23], s[0:1], 80")
    a("s_load_dwordx16 s[4:19], s[0:1], 0")
    a("s_load_dwordx2 s[20:21], s[0:1], 64")
    a(f"v_lshrrev_b32 {v(t0)}, 6, v0")
    a(f"v_and_b32 {v(vLN)}, 63, v0")
    a(f"v_readfirstlane_b32 {s(sWV)}, {v(t0)}")
    a(f"v_mov_b32 {v(vTID)}, v0")
    a(f"s_mul_i32 {s(sTL)}, s2, {DESC_ROW}")
    a(f"s_add_u32 {s(sTL)}, {s(sTL)}, {DESC_OFF}")
    a(f"s_mov_b32 {s(S_DESC + 2)}, {DESC_ROW}")
    a(f"s_mov_b32 {s(S_DESC + 3)}, 0x20000")
    lane_setup()
    a(f"v_lshrrev_b32 {v(t3)}, 5, {v(vLN)}")
    a(f"v_and_b32 {v(t0)}, 31, {v(vLN)}")
    a(f"v_xor_b32 {v(t1)}, {v(t0)}, {v(t3)}")
    a(f"s_lshl_b32 {s(sT2)}, {s(sWV)}, 1")
    a(f"v_xor_b32 {v(t1)}, {s(sT2)}, {v(t1)}")
    a(f"v_lshlrev_b32 {v(t1)}, 4, {v(t1)}")
    a(f"v_lshl_or_b32 {v(t1)}, {v(t3)}, 9, {v(t1)}")
    lane_setup2()
    w1_pages()
    a(f"s_and_b32 {s(sQ)}, {s(sWV)}, 3")
    a(f"s_lshr_b32 {s(sST)}, {s(sWV)}, 2")
    a(f"s_lshl_b32 {s(sW1)}, {s(sWV)}, 14")
    a(f"s_mov_b32 {s(sFIRST)}, 1")
    a(f"s_mov_b32 {s(sSLOW)}, 0")
    a(f"s_lshl_b32 {s(sRB)}, {s(sWV)}, 12")
    a(f"s_add_u32 {s(sRB)}, {s(sRB)}, {LR}")
    a(f"v_mov_b32 {v(tH)}, {v(t1)}")
    a(f"v_mov_b32 {v(tH + 1)}, {v(t2)}")
    for i in range(4):
        a(f"v_mov_b32 {v(ZER + i)}, 0")
    b = Asm()
    tail = lds_init(b, True)
    writes = [ln for ln in b.lines if ln.startswith("ds_")]
    NE = int(os.environ.get("NE", "0"))
    emit(a, [ln for ln in b.lines if not ln.startswith("ds_")] + tail)
    a(f"v_mov_b32 {v(tH + 2)}, {v(t4)}")
    writes = [ln.replace(f"ds_write_b128 {v(t4)},", f"ds_write_b128 {v(tH + 2)},") for ln in writes]
    early = capture(once_consts) + capture(dense_addr)
    emit(a, place(early, [(2 * i, w) for i, w in enumerate(writes[:NE])]))
    a("s_waitcnt lgkmcnt(0)")
    a.stamp()
    a(f"s_add_u32 {s(S_DESC)}, s22, {s(sTL)}")
    a(f"s_addc_u32 {s(S_DESC + 1)}, s23, 0")
    a(f"s_and_b32 {s(S_DESC + 1)}, {s(S_DESC + 1)}, 0xffff")
    a(f"buffer_load_dwordx2 {v(tDL, 2)}, {v(tH + 1)}, {s(S_DESC, 4)}, 0 offen")
    srd(a, S_H, 4, H_SIZE)
    a(f"s_mul_i32 {s(sT0)}, s2, {40 * 512}")
    a(f"s_lshl_b32 {s(sT1)}, {s(sWV)}, 10")
    a(f"s_add_u32 {s(sT0)}, {s(sT0)}, {s(sT1)}")
    for j in range(3):
        if j == 2:
            a(f"s_cmp_ge_u32 {s(sWV)}, 4")
            a("s_cbranch_scc1 K2_NOH")
        a(f"s_add_u32 m0, {s(sT1)}, {LH + 8192 * j}")
        a("s_nop 0")
        a(f"buffer_load_dwordx4 {v(tH)}, {s(S_H, 4)}, {s(sT0)} offen lds")
        a(f"s_add_u32 {s(sT0)}, {s(sT0)}, 8192")
    a.label("K2_NOH")
    srd_off(a, S_FR, 22, FR_OFF, 3 * FR_ONE)

    def small_loads(b):
        colmap_v(b, t0, vLN, t1)
        srd(b, S_TMP, 14, WE_SIZE)
        b(f"s_lshl_b32 {s(sT0)}, {s(sQ)}, 7")
        b(f"s_add_u32 {s(sT0)}, {s(sT0)}, {512 * 512}")
        b(f"v_lshlrev_b32 {v(t0)}, 1, {v(t0)}")
        b(f"buffer_load_ushort {v(tWD)}, {v(t0)}, {s(S_TMP, 4)}, {s(sT0)} offen")
        b(f"buffer_load_ushort {v(tWE)}, {v(t0)}, {s(S_TMP, 4)}, {s(sT0)} offen offset:512")
        b(f"v_and_b32 {v(t0)}, 0xe7, {v(vTID)}")
        b(f"v_bfe_u32 {v(t1)}, {v(vTID)}, 3, 1")
        b(f"v_lshl_or_b32 {v(t0)}, {v(t1)}, 4, {v(t0)}")
        b(f"v_bfe_u32 {v(t1)}, {v(vTID)}, 4, 1")
        b(f"v_lshl_or_b32 {v(t0)}, {v(t1)}, 3, {v(t0)}")
        b(f"v_lshlrev_b32 {v(t0)}, 1, {v(t0)}")
        srd(b, S_TMP, 16, 512)
        b(f"buffer_load_ushort {v(tWX)}, {v(t0)}, {s(S_TMP, 4)}, 0 offen")
        srd(b, S_POS, 6, POS_SIZE)
        b(f"s_mul_i32 {s(sT0)}, s2, 240")
        b(f"v_lshlrev_b32 {v(t0)}, 2, {v(vLN)}")
        b(f"buffer_load_dword {v(tPP)}, {v(t0)}, {s(S_POS, 4)}, {s(sT0)} offen")
        srd_off(b, S_REC, 22, REC_OFF, REC_SIZE)
        srd_off(b, S_BP, 22, BP_OFF - 3072, BP_SIZE + 3072)
        srd(b, S_OUT, 20, OUT_SIZE)
        b(f"s_mul_i32 {s(sT0)}, s2, {SLOW_ROW}")
        b(f"s_add_u32 {s(sT0)}, {s(sT0)}, {SLOW_OFF}")
        b(f"s_add_u32 {s(S_TMP)}, s22, {s(sT0)}")
        b(f"s_addc_u32 {s(S_TMP + 1)}, s23, 0")
        b(f"s_and_b32 {s(S_TMP + 1)}, {s(S_TMP + 1)}, 0xffff")
        b(f"s_mov_b32 {s(S_TMP + 2)}, {SLOW_ROW}")
        b(f"s_mov_b32 {s(S_TMP + 3)}, 0x20000")
        b(f"s_mov_b32 {s(sK3)}, 3072")
        b(f"s_mov_b32 {s(sK2)}, 2048")
        b(f"s_mov_b32 {s(sK1)}, 1024")
        b(f"v_bfe_u32 {v(t3)}, {v(vLN)}, 4, 2")
        b(f"v_and_b32 {v(t2)}, 7, {v(vLN)}")
        b(f"v_xor_b32 {v(t3)}, {v(t3)}, {v(t2)}")
        b(f"s_lshl_b32 {s(sT0)}, {s(sQ)}, 7")
        b(f"v_lshl_add_u32 {v(vG)}, {v(t3)}, 4, {s(sT0)}")
        b(f"v_and_b32 {v(t0)}, 15, {v(vLN)}")
        b(f"v_lshrrev_b32 {v(t1)}, 4, {v(vLN)}")
        b(f"v_xor_b32 {v(t1)}, {v(t1)}, {v(t0)}")
        b(f"v_lshlrev_b32 {v(t1)}, 4, {v(t1)}")
        b(f"v_lshl_or_b32 {v(t1)}, {v(t0)}, 9, {v(t1)}")
        b(f"v_add_u32 {v(vHB)}, {LH}, {v(t1)}")
        for k in range(1, 4):
            b(f"v_xor_b32 {v(vHB + k)}, {64 * k}, {v(vHB)}")

    NW1, NW2a, NW2b, NW3 = [int(x) for x in os.environ.get("NW", "6,2,2,6").split(",")]
    NW2 = NW2a + NW2b
    NW4 = 16 - NW1 - NW2 - NW3
    win1 = spread(capture(small_loads), W1L[:NW1])
    emit(a, spread(win1, writes[NE:]) if NE < 8 else win1)
    a(f"s_waitcnt vmcnt({2 + 4 + NW1})")
    a.stamp()

    a.label("K2_BATCH")
    a(f"v_and_b32 {v(tO0)}, 1023, {v(tDL)}")
    a(f"v_lshrrev_b32 {v(tT)}, 20, {v(tDH)}")
    a(f"v_sub_u32 {v(tT)}, {v(tT)}, {v(tO0)}")
    a(f"v_add3_u32 {v(tO0)}, {v(tRA)}, {v(tO0)}, {v(tP2)}")
    a(f"v_sub_u32 {v(tN)}, {v(tT)}, {v(tP2)}")
    a(f"v_lshlrev_b32 {v(tO0)}, 3, {v(tO0)}")
    a(f"v_cmp_lt_i32 vcc, 0, {v(tN)}")
    a(f"v_cmp_lt_i32 {s(sT2, 2)}, 4, {v(tN)}")
    a(f"v_mov_b32 {v(t2)}, {MARK}")
    a(f"v_cndmask_b32 {v(t1)}, {v(t2)}, {v(tO0)}, vcc")
    a(f"v_cndmask_b32 {v(t2)}, {v(t2)}, {v(tO0)}, {s(sT2, 2)}")
    a(f"buffer_load_dwordx4 {v(tR, 4)}, {v(t1)}, {s(S_REC, 4)}, 0 offen")
    a(f"buffer_load_dwordx4 {v(tR + 4, 4)}, {v(t2)}, {s(S_REC, 4)}, 0 offen offset:32")
    main, a = a, Asm()
    a(f"v_lshrrev_b32 {v(t0)}, 10, {v(tDL)}")
    a(f"v_lshl_or_b32 {v(t0)}, {v(tDH)}, 20, {v(t0)}")
    a(f"v_and_b32 {v(t0)}, 0x3fffffff, {v(t0)}")
    a(f"v_sub_u32 {v(t0)}, {v(t0)}, {v(tDL)}")
    a(f"v_lshrrev_b32 {v(t1)}, 10, {v(tDH)}")
    a(f"v_and_b32 {v(t2)}, 0xfffff, {v(tDH)}")
    a(f"v_mov_b32 {v(tA)}, {v(t0)}")
    a(f"v_sub_u32 {v(t1)}, {v(t1)}, {v(t2)}")
    a(f"v_mov_b32 {v(tB)}, {v(t1)}")
    order = [tT, tA, tB]
    for sh in ("row_shr:2", "row_shr:4", "row_shr:8"):
        for r in order:
            a(f"v_add_u32_dpp {v(r)}, {v(r)}, {v(r)} {sh} row_mask:0xf bank_mask:0xf bound_ctrl:0")
    for sh in ("row_bcast:15 row_mask:0xa", "row_bcast:31 row_mask:0xc"):
        for r in order:
            a(f"v_add_u32_dpp {v(r)}, {v(r)}, {v(r)} {sh} bank_mask:0xf")
    a(f"s_lshl_b32 {s(sT0)}, {s(sWV)}, 2")
    a(f"s_add_u32 {s(sT0)}, {s(sT0)}, {LTOT}")
    a(f"v_mov_b32 {v(t3)}, {s(sT0)}")
    emit(main, spread(a.lines, W1L[NW1:NW1 + NW2a]) if NW2a else a.lines)
    a = main
    a("s_mov_b32 exec_lo, 0")
    a("s_mov_b32 exec_hi, 0x80000000")
    for i in range(3):
        a(f"ds_write_b32 {v(t3)}, {v(tA + i)} offset:{32 * i}")
    a("s_mov_b64 exec, -1")
    a(f"v_sub_u32 {v(tA)}, {v(tA)}, {v(t0)}")
    a(f"v_sub_u32 {v(tB)}, {v(tB)}, {v(t1)}")
    a(f"v_and_b32 {v(t3)}, 7, {v(vLN)}")
    a(f"v_lshlrev_b32 {v(t3)}, 2, {v(t3)}")
    a(f"v_add_u32 {v(t3)}, {LTOT}, {v(t3)}")
    a("s_waitcnt lgkmcnt(0)")
    a("s_barrier")
    a.stamp()
    for i in range(3):
        a(f"ds_read_b32 {v(t0 + i)}, {v(t3)} offset:{32 * i}")
    emit(a, W1L[NW1 + NW2a:NW1 + NW2])
    a(f"s_mov_b32 {s(sTB)}, 0")
    a("s_waitcnt lgkmcnt(0)")
    for i in range(3):
        a(f"v_mov_b32 {v(t3 + i)}, {v(t0 + i)}")
    for sh in ("row_shr:1", "row_shr:2", "row_shr:4"):
        for i in range(3):
            a(f"v_add_u32_dpp {v(t0 + i)}, {v(t0 + i)}, {v(t0 + i)} {sh} row_mask:0xf bank_mask:0xf bound_ctrl:0")
    for i in range(3):
        a(f"v_sub_u32 {v(t3 + i)}, {v(t0 + i)}, {v(t3 + i)}")
    a(f"v_readlane_b32 {s(sT0)}, {v(t0)}, 7")
    a(f"v_readlane_b32 {s(sT1)}, {v(t1)}, 7")
    a(f"v_readlane_b32 {s(sBT)}, {v(t2)}, 7")
    a(f"v_readlane_b32 {s(sT2)}, {v(t3)}, {s(sWV)}")
    a(f"v_readlane_b32 {s(sT3)}, {v(t4)}, {s(sWV)}")
    a(f"v_readlane_b32 {s(sTL)}, {v(t5)}, {s(sWV)}")
    a(f"s_add_u32 {s(sT0)}, {s(sT0)}, {15 | 15 << 10 | 15 << 20}")
    a(f"s_add_u32 {s(sT1)}, {s(sT1)}, {15 | 15 << 10}")
    for g in range(5):
        src = sT0 if g < 3 else sT1
        a(f"s_bfe_u32 {s(sPS)}, {s(src)}, {hex((6 << 16) | (10 * (g % 3) + 4))}")
        a(f"s_add_u32 {s(sTB + g + 1)}, {s(sTB + g)}, {s(sPS)}")
    a(f"s_cmp_gt_u32 {s(sBT)}, {CAP}")
    a(f"s_cselect_b32 {s(sT0)}, 255, {s(sTB + 5)}")
    a(f"s_cmp_gt_u32 {s(sT0)}, {NTMAX}")
    a("s_cbranch_scc1 K2_OVER")
    a.label("K2_FITS")
    a(f"s_lshl_b32 {s(sT0)}, {s(sTB + 1)}, 14")
    a(f"s_lshl_b32 {s(sT1)}, {s(sTB + 2)}, 24")
    a(f"s_add_u32 {s(sT2)}, {s(sT2)}, {s(sT0)}")
    a(f"s_add_u32 {s(sT2)}, {s(sT2)}, {s(sT1)}")
    a(f"s_lshl_b32 {s(sT0)}, {s(sTB + 3)}, 4")
    a(f"s_lshl_b32 {s(sT1)}, {s(sTB + 4)}, 14")
    a(f"s_add_u32 {s(sT3)}, {s(sT3)}, {s(sT0)}")
    a(f"s_add_u32 {s(sT3)}, {s(sT3)}, {s(sT1)}")
    a(f"v_add_u32 {v(tA)}, {s(sT2)}, {v(tA)}")
    a(f"v_add_u32 {v(tB)}, {s(sT3)}, {v(tB)}")
    a(f"v_lshl_or_b32 {v(tV)}, {v(tB)}, 30, {v(tA)}")
    a(f"v_lshrrev_b32 {v(tV + 1)}, 2, {v(tB)}")
    a(f"s_add_u32 {s(sT0)}, {s(sTB + 5)}, 1")
    a(f"s_lshr_b32 {s(sT0)}, {s(sT0)}, 1")
    a(f"s_mul_i32 {s(sPS)}, {s(sT0)}, {SPLIT_NUM}")
    a(f"s_add_u32 {s(sPS)}, {s(sPS)}, 32")
    a(f"s_lshr_b32 {s(sPS)}, {s(sPS)}, 6")
    a(f"s_cmp_lg_u32 {s(sSLOW)}, 0")
    a(f"s_cselect_b32 {s(sPS)}, {s(sT0)}, {s(sPS)}")
    a(f"s_cmp_eq_u32 {s(sST)}, 0")
    a(f"s_cselect_b32 {s(sREM)}, 0, {s(sPS)}")
    a(f"s_cselect_b32 {s(sPEND)}, {s(sPS)}, {s(sT0)}")
    a(f"s_lshl_b32 {s(sT0)}, {s(sREM)}, 7")
    a(f"s_add_u32 {s(sT0)}, {s(sT0)}, {LL}")
    a(f"v_lshrrev_b32 {v(t0)}, 3, {v(vLN)}")
    a(f"v_lshl_add_u32 {v(vL)}, {v(t0)}, 3, {s(sT0)}")
    a(f"v_lshlrev_b32 {v(tI)}, 2, {v(vTID)}")
    a(f"v_add_u32 {v(tI)}, {LL}, {v(tI)}")
    a(f"s_mov_b32 m0, {s(sRB)}")

    def batch_consts(b):
        b(f"s_mov_b32 {s(sGA)}, -1")
        b(f"s_mov_b32 {s(sIT)}, 0")
        b(f"s_mov_b64 {s(sMASK, 2)}, 0")
        for g in range(1, 5):
            b(f"s_bitset1_b64 {s(sMASK, 2)}, {s(sTB + g)}")
        b(f"s_lshl_b32 {s(sTL)}, {s(sREM)}, 1")
        b(f"s_lshr_b64 {s(sMASK, 2)}, {s(sMASK, 2)}, {s(sTL)}")
        b(f"s_or_b32 {s(sMASK)}, {s(sMASK)}, 1")
        b(f"s_lshl_b64 {s(sMASK, 2)}, {s(sMASK, 2)}, 1")
        b(f"s_lshl_b32 {s(sT0)}, {s(sREM)}, 11")
        b(f"v_add_u32 {v(vS)}, {s(sT0)}, {v(tF)}")
        b(f"s_mul_i32 {s(sT0)}, {s(sREM)}, {2 * XT}")
        b(f"s_add_u32 {s(sT0)}, {s(sT0)}, {LX}")
        b(f"s_add_u32 {s(sT1)}, {s(sT0)}, 256")
        b(f"v_and_b32 {v(t0)}, 15, {v(vLN)}")
        b(f"v_cmp_eq_u32 vcc, 0, {v(vXS)}")
        b(f"v_lshl_add_u32 {v(t4)}, {v(t0)}, 4, {s(sT0)}")
        b(f"v_lshl_add_u32 {v(t5)}, {v(t0)}, 3, {s(sT1)}")
        b(f"v_mov_b32 {v(t1)}, {LZ}")
        b(f"v_cndmask_b32 {v(vX1)}, {v(t4)}, {v(t1)}, vcc")
        b(f"v_cndmask_b32 {v(vX2)}, {v(t5)}, {v(t1)}, vcc")
        b(f"s_sub_u32 {s(sREM)}, {s(sPEND)}, {s(sREM)}")
        b(f"s_sub_u32 {s(sREM)}, {s(sREM)}, 1")

    def scatter(r, slot):
        a(f"v_bfe_u32 {v(t0)}, {v(r + 1)}, 19, 3")
        a(f"v_cmp_lt_i32 vcc, {slot}, {v(tN)}")
        a(f"v_mul_u32_u24 {v(t0)}, 10, {v(t0)}")
        a(f"v_lshrrev_b32 {v(t1)}, 22, {v(r + 1)}")
        a(f"v_lshrrev_b64 {v(t2, 2)}, {v(t0)}, {v(tV, 2)}")
        a(f"v_and_b32 {v(t2)}, 1023, {v(t2)}")
        a(f"v_add_lshl_u32 {v(t2)}, {v(t2)}, {v(t1)}, 2")
        a(f"v_add_u32 {v(t2)}, {LL}, {v(t2)}")
        a("s_mov_b64 exec, vcc")
        a(f"ds_write_b32 {v(t2)}, {v(r)}")
        a(f"ds_write_b32 {v(t2)}, {v(r + 1)} offset:{LE - LL}")
        a("s_mov_b64 exec, -1")

    a(f"s_waitcnt vmcnt({NW2})")
    a.stamp()
    rest = W1L[NW1 + NW2:]
    for i, slot in enumerate((0, 1, 4, 5)):
        scatter(tR + 2 * i, slot)
        emit(a, rest[(i * NW3) // 4:((i + 1) * NW3) // 4])
    a(f"v_cmp_lt_i32 vcc, 8, {v(tN)}")
    a(f"s_cmp_eq_u32 {s(sFIRST)}, 0")
    a("s_cbranch_scc1 K2_NOTAB")
    a(f"v_and_b32 {v(t0)}, 255, {v(vTID)}")
    a(f"v_lshlrev_b32 {v(t0)}, 1, {v(t0)}")
    a(f"v_add_u32 {v(t0)}, {LWX}, {v(t0)}")
    a(f"ds_write_b16 {v(t0)}, {v(tWX)}")
    a(f"v_lshlrev_b32 {v(t0)}, 2, {v(vLN)}")
    a(f"v_add_u32 {v(t0)}, {LPD}, {v(t0)}")
    a(f"ds_write_b32 {v(t0)}, {v(tPP)}")
    a.label("K2_NOTAB")
    a("s_cbranch_vccnz K2_MORE")
    a.label("K2_NOMORE")
    main, a = a, Asm()
    a.label("K2_MORE")
    a(f"v_add_u32 {v(tO0)}, 32, {v(tO0)}")
    a(f"v_subrev_u32 {v(tN)}, 4, {v(tN)}")
    a(f"buffer_load_dwordx4 {v(tR, 4)}, {v(tO0)}, {s(S_REC, 4)}, 0 offen offset:32")
    a("s_waitcnt vmcnt(0)")
    scatter(tR, 4)
    scatter(tR + 2, 5)
    a(f"v_cmp_lt_i32 vcc, 8, {v(tN)}")
    a("s_nop 4")
    a("s_cbranch_vccnz K2_MORE")
    a("s_branch K2_NOMORE")
    far += a.lines
    a = main
    a("s_waitcnt lgkmcnt(0)")
    a("s_barrier")
    a.stamp()

    a(f"ds_read2st64_b32 {v(tW, 2)}, {v(tI)} offset1:8")
    a(list_read(0))
    a(f"v_add_u32 {v(tI)}, {LE - LL}, {v(tI)}")
    a(f"ds_read2st64_b32 {v(tM, 2)}, {v(tI)} offset1:8")
    a(f"v_cmp_gt_u32 vcc, {CAP - 512}, {v(vTID)}")
    a(f"v_mov_b32 {v(t0)}, {MARK}")
    a("s_waitcnt lgkmcnt(2)")
    a(f"v_cndmask_b32 {v(tW + 1)}, {v(t0)}, {v(tW + 1)}, vcc")
    for r in range(2):
        a(f"v_lshrrev_b32 {v(tPS + 2 * r)}, 9, {v(tW + r)}")
        a(f"v_mul_u32_u24 {v(tPS + 2 * r)}, 6, {v(tPS + 2 * r)}")
        a(f"v_and_b32 {v(tPS + 2 * r)}, -4, {v(tPS + 2 * r)}")
    POSL = [f"buffer_load_dwordx2 {v(tPS + 2 * r, 2)}, {v(tPS + 2 * r)}, {s(S_POS, 4)}, 0 offen" for r in range(2)]
    ORDER = os.environ.get("ORDER", "dd:ppdd")
    ops = {"p": list(POSL), "d": dma(0) + dma(1)}
    first, later = ORDER.split(":")
    if first.startswith("p"):
        a(ops["p"].pop(0))
        first = first[1:]
    a(f"s_mov_b32 {s(sT0)}, {LPD}")
    a("s_waitcnt lgkmcnt(0)")
    emit(a, LST_ADD)
    emit(a, [ops[c].pop(0) for c in first])
    for r in range(2):
        a(f"v_bfe_u32 {v(t1)}, {v(tM + r)}, 16, 6")
        a(f"v_mad_u32_u24 {v(t1)}, {v(t1)}, 6, {s(sT0)}")
        for c in range(3):
            a(f"ds_read_u16_d16_hi {v(tPD + 3 * r + c)}, {v(t1)} offset:{2 * c}")
    LATE = [ops[c].pop(0) for c in later]
    NEARLY = 6 - len(LATE)
    allops = ORDER.replace(":", "")
    POSW = 5 - allops.rindex("p")

    def dense(b, r):
        ps, pd, w, m, de = tPS + 2 * r, tPD + 3 * r, tW + r, tM + r, T + 44
        b(f"v_mov_b32 {v(t5)}, 0x3f80")
        b(f"s_mov_b32 {s(sT1)}, 0xffff0000")
        b(f"s_mov_b32 {s(sT2)}, 0x01000100")
        b(f"v_bfe_u32 {v(t0)}, {v(w)}, 9, 1")
        b(f"v_lshlrev_b32 {v(t0)}, 4, {v(t0)}")
        b(f"v_alignbit_b32 {v(ps)}, {v(ps + 1)}, {v(ps)}, {v(t0)}")
        b(f"v_lshrrev_b32 {v(ps + 1)}, {v(t0)}, {v(ps + 1)}")
        b(f"v_lshlrev_b32 {v(t0)}, 16, {v(ps)}")
        b(f"v_and_b32 {v(t1)}, {s(sT1)}, {v(ps)}")
        b(f"v_lshlrev_b32 {v(t2)}, 16, {v(ps + 1)}")
        for c in range(3):
            b(f"v_sub_f32 {v(t0 + c)}, {v(pd + c)}, {v(t0 + c)}")
        b(f"v_cvt_pk_bf16_f32 {v(ps)}, {v(t0)}, {v(t1)}")
        b(f"v_cvt_pk_bf16_f32 {v(ps + 1)}, {v(t2)}, {v(t2)}")
        b(f"v_lshlrev_b32 {v(t0)}, 16, {v(ps)}")
        b(f"v_and_b32 {v(t1)}, {s(sT1)}, {v(ps)}")
        b(f"v_and_b32 {v(t2)}, {s(sT1)}, {v(ps + 1)}")
        b(f"v_mul_f32 {v(t0)}, {v(t0)}, {v(t0)}")
        b(f"v_fmac_f32 {v(t0)}, {v(t1)}, {v(t1)}")
        b(f"v_fmac_f32 {v(t0)}, {v(t2)}, {v(t2)}")
        b(f"v_cmp_gt_u32 vcc, {MARK}, {v(w)}")
        b(f"v_cvt_pk_bf16_f32 {v(de)}, {v(t0)}, {v(t0)}")
        b(f"v_perm_b32 {v(de + 1)}, {v(m)}, {v(m)}, {s(sT2)}")
        b(f"v_bfe_u32 {v(t1)}, {v(m)}, 16, 3")
        b(f"v_lshl_add_u32 {v(t0)}, {v(t1)}, 4, {v(tAS)}")
        b(f"v_lshl_add_u32 {v(t1)}, {v(t1)}, 1, {v(tAX)}")
        return ["s_mov_b64 exec, vcc",
                f"ds_write_b16 {v(t0)}, {v(t5)} offset:{32768 * r}",
                f"ds_write_b16 {v(t0)}, {v(ps)} offset:{32768 * r + 128}",
                f"ds_write_b16_d16_hi {v(t0)}, {v(ps)} offset:{32768 * r + 256}",
                f"ds_write_b16 {v(t0)}, {v(ps + 1)} offset:{32768 * r + 384}",
                f"ds_write_b16 {v(t1)}, {v(t5)} offset:{32 * XT * r}",
                f"ds_write_b64 {v(tAX + 1)}, {v(de, 2)} offset:{256 + 32 * XT * r}",
                "s_mov_b64 exec, -1"]

    def dense_second():
        n = fresh()
        a(f"s_lshl_b32 {s(sT0)}, {s(sWV)}, 2")
        a(f"s_add_u32 {s(sT0)}, {s(sT0)}, 32")
        a(f"s_cmp_ge_u32 {s(sT0)}, {s(sTB + 5)}")
        a(f"s_cbranch_scc1 K2_ND{n}")
        emit(a, dense(a, 1))
        a.label(f"K2_ND{n}")

    a(f"s_cmp_eq_u32 {s(sFIRST)}, 0")
    a("s_cbranch_scc1 K2_NOA")

    def hreads(hf, kk):
        return [f"ds_read_b128 {v(hf + 12 * (kk & 1) + 4 * nt, 4)}, {v(vHB + (kk & 3))} offset:{8192 * nt + 256 * (kk >> 2)}" for nt in range(3)]

    def a_steps(kks, fill, late=()):
        per = (len(fill) + len(kks) - 1) // len(kks)
        late = list(late)
        for i, kk in enumerate(kks):
            a(f"s_waitcnt vmcnt({NEARLY}) lgkmcnt(0)" if kk == 0 else "s_waitcnt lgkmcnt(0)")
            if kk < 7:
                emit(a, hreads(HF, kk + 1))
            mf = []
            for nt in range(3):
                for ct in range(2):
                    d = AG + 8 * nt + 4 * ct
                    mf.append(mf16(d, HF + 12 * (kk & 1) + 4 * nt, 8 * kk + 4 * ct, "0" if kk == 0 else d))
            mine = fill[i * per:(i + 1) * per]
            emit(a, place(mine, [((j * len(mine)) // 6, mf[j]) for j in range(6)]))
            for _ in range(LPS[i] if late else 0):
                a(late.pop(0))
        assert not late

    assert NW4 == 0
    LPS = [int(x) for x in os.environ.get("LPS", "2,2,0,0,0").split(",")]
    DK = len(LPS)
    emit(a, hreads(HF, 0))
    a_steps(list(range(DK)), capture(wde_consts) + capture(batch_consts), LATE)
    a.stamp()
    a(f"s_waitcnt vmcnt({POSW})")
    a.stamp()
    b = Asm()
    tail = dense(b, 0)
    a_steps(list(range(DK, 8)), b.lines)
    emit(a, tail)
    dense_second()
    a.stamp()
    a(f"s_lshl_b32 {s(sT0)}, {s(sWV)}, 9")
    a(f"s_add_u32 {s(sT0)}, {s(sT0)}, {LM}")
    a(f"v_and_b32 {v(t0)}, 15, {v(vLN)}")
    a(f"v_lshlrev_b32 {v(t0)}, 4, {v(t0)}")
    a(f"v_bfe_u32 {v(t1)}, {v(vLN)}, 4, 1")
    a(f"v_lshl_or_b32 {v(t0)}, {v(t1)}, 3, {v(t0)}")
    a(f"v_lshrrev_b32 {v(t1)}, 5, {v(vLN)}")
    a(f"v_lshl_or_b32 {v(t0)}, {v(t1)}, 12, {v(t0)}")
    a(f"v_add_u32 {v(t0)}, {s(sT0)}, {v(t0)}")
    for nt in range(3):
        for p in range(4):
            a(f"v_pk_mul_f32 {v(AG + 8 * nt + 2 * p, 2)}, {v(AG + 8 * nt + 2 * p, 2)}, {s(sC0, 2)}")
        for p in range(4):
            a(f"v_cvt_pk_bf16_f32 {v(HF + 4 * nt + p)}, {v(AG + 8 * nt + 2 * p)}, {v(AG + 8 * nt + 2 * p + 1)}")
        for ct in range(2):
            a(f"ds_write_b64 {v(t0)}, {v(HF + 4 * nt + 2 * ct, 2)} offset:{8192 * nt + 256 * ct}")
    a(f"s_lshl_b32 {s(sT0)}, {s(sQ)}, 10")
    a(f"s_add_u32 {s(sT0)}, {s(sT0)}, {LM}")
    a(f"v_add_u32 {v(t0)}, {s(sT0)}, {v(tF)}")
    assert allops.endswith("dd")
    a("s_waitcnt vmcnt(2) lgkmcnt(0)")
    emit(a, frag_reads(0)[:2] + [list_read(1)])
    a("s_barrier")
    a.stamp()
    for g in range(5):
        a(f"ds_read_b128 {v(Y2Q + 4 * g, 4)}, {v(t0)} offset:{4096 * g}")
    a.label("K2_READY")
    emit(a, frag_reads(0)[2:])
    tile_index(a, 0)
    group_of(a, sT0, sTL)
    a(f"s_lshl_b32 {s(sT0)}, {s(sT0)}, 2")
    a("s_waitcnt lgkmcnt(0)")
    a("s_barrier")
    a.stamp()
    a(f"s_set_gpr_idx_on {s(sT0)}, gpr_idx(SRC0)")
    for i in range(4):
        a(f"v_mov_b32 {v(Y2C + i)}, {v(Y2Q + i)}")
    a("s_set_gpr_idx_off")
    a(f"s_mov_b32 m0, {s(sRB)}")
    a(f"s_cmp_lt_i32 {s(sREM)}, 0")
    a("s_cbranch_scc1 K2_IDLE")
    emit(a, LST_ADD + dma(0))
    emit(a, p_mfmas(YA))
    a("s_waitcnt vmcnt(2)")
    emit(a, frag_reads(1))
    a(f"v_add_u32 {v(vX1)}, {v(vXS)}, {v(vX1)}")
    a(f"v_add_u32 {v(vX2)}, {v(vXS)}, {v(vX2)}")
    a(".p2align 6")
    a.label("K2_LOOP")
    abl = os.environ.get("ABL", "")
    for ln in loop_body(far):
        if ("w" in abl and ln.startswith("s_waitcnt vmcnt")) or ("d" in abl and ln.startswith("buffer_load")) or \
           ("l" in abl and ln.startswith("ds_read")) or ("m" in abl and ln.startswith("v_mfma")) or \
           ("t" in abl and (ln.startswith("v_exp") or ln.startswith("v_rcp"))) or \
           ("i" in abl and ln.startswith("v_mfma") and (v(ID, 4) in ln or v(ID + 4, 4) in ln)) or \
           ("o" in abl and ln.startswith("v_mfma") and v(QUA, 2) in ln) or \
           ("s" in abl and ln.startswith("v_mfma") and v(SP, 4) in ln) or \
           ("y" in abl and ln.startswith("v_mfma") and (v(Y2C, 4) in ln or v(Y2K, 2) in ln)) or \
           ("f" in abl and ln.startswith("s_cbranch_scc1 K2_H")):
            continue
        a(ln)
    a("s_cbranch_scc0 K2_LOOP")
    chk, o = site(-1, None, YB, [EA_ + 4 * k for k in range(4)])
    far += o
    a("s_setprio 0")
    a("s_waitcnt lgkmcnt(0)")
    MA, CA, HR, W1, MF, XR, XF = 0, 24, 48, 64, 128, AF, 60
    GR = [164, 166, 168, 170, 180, 182]
    eO, eM, eF, e0 = 176, 173, 172, 179

    def row_bases(b):
        b(f"v_and_b32 {v(XR)}, 15, {v(vLN)}")
        b(f"v_and_b32 {v(XR + 2)}, 48, {v(vLN)}")
        b(f"v_mul_u32_u24 {v(XR + 3)}, {MROW}, {v(XR)}")
        b(f"v_add_u32 {v(XR + 3)}, {v(XR + 3)}, {v(XR + 2)}")
        b(f"v_lshrrev_b32 {v(XR + 1)}, 3, {v(XR)}")
        b(f"v_lshrrev_b32 {v(XR + 1)}, {v(XR + 1)}, {s(sWRT)}")
        b(f"v_mov_b32 {v(XR + 4)}, {LZ}")
        for nt in range(3):
            b(f"v_and_b32 {v(XR + 5)}, {1 << (2 * nt)}, {v(XR + 1)}")
            b(f"v_cmp_ne_u32 vcc, 0, {v(XR + 5)}")
            b(f"v_add_u32 {v(XR + 6)}, {LM + 16 * MROW * nt}, {v(XR + 3)}")
            b("s_nop 0")
            b(f"v_cndmask_b32 {v(eM + nt)}, {v(XR + 4)}, {v(XR + 6)}, vcc")

    rbl = capture(row_bases)
    emit(a, chk + cvts(EB) + rbl[:2] + [S1, S2] + rbl[2:12])
    far += flush(a, YB, [EA_ + 4 * k for k in range(4)], rbl[12:])
    a.label("K2_DONE")
    a.stamp()
    a(f"s_cmp_lg_u32 {s(sSLOW)}, 0")
    a("s_cbranch_scc1 K2_NEXT")

    a.label("K2_FINAL")
    a(f"s_cmp_ge_u32 {s(sIT)}, 4")
    a("s_cbranch_scc0 K2_WREST")
    def w_load(ct, kk):
        return f"buffer_load_dwordx4 {v(W1 + 32 * ct + 4 * kk, 4)}, {v(eF)}, {s(S_FR, 4)}, {s(S_TMP + 2 * ct + (kk >> 2))} offen offset:{1024 * (kk & 3)}"

    a(f"v_lshlrev_b32 {v(eF)}, 4, {v(vLN)}")
    a(f"s_sub_u32 {s(S_TMP)}, {s(sWB)}, {FR_ONE}")
    for i in range(1, 4):
        a(f"s_add_u32 {s(S_TMP + i)}, {s(S_TMP)}, {4096 * i}")
    a("s_waitcnt lgkmcnt(0)")
    NB4 = int(os.environ.get("NB4", "4"))
    allw = [w_load(ct, kk) for ct in range(2) for kk in range(8)]
    emit(a, allw[:NB4])
    a(f"s_lshl_b32 {s(sT0)}, {s(sWV)}, 6")
    a(f"s_and_b32 {s(sT1)}, {s(sT0)}, 192")
    a(f"s_and_b32 {s(sT2)}, {s(sT0)}, 256")
    a(f"v_xor_b32 {v(e0)}, {s(sT1)}, {v(vHB)}")
    a(f"v_add_u32 {v(e0)}, {s(sT2)}, {v(e0)}")
    for nt in range(3):
        a(f"ds_read_b128 {v(HR + 4 * nt, 4)}, {v(e0)} offset:{8192 * nt}")
    a.stamp()
    a("s_barrier")
    a.stamp()

    def late_setup(b):
        XR = CA
        b(f"v_and_b32 {v(XR)}, 15, {v(vLN)}")
        b(f"v_and_b32 {v(XR + 2)}, 48, {v(vLN)}")
        b(f"s_lshl_b32 {s(sT0)}, {s(sWV)}, 6")
        b(f"s_mul_i32 {s(sT1)}, s2, {40 * 512}")
        b(f"s_add_u32 {s(sWRT)}, {s(sT0)}, {s(sT1)}")
        b(f"v_bfe_u32 {v(XR + 1)}, {v(vLN)}, 1, 2")
        b(f"v_lshlrev_b32 {v(XR + 1)}, 4, {v(XR + 1)}")
        b(f"v_xor_b32 {v(XR + 1)}, {v(XR + 1)}, {v(XR + 2)}")
        b(f"v_lshl_or_b32 {v(XR + 1)}, {v(XR)}, 6, {v(XR + 1)}")
        b(f"v_add_u32 {v(eO + 1)}, {s(sRB)}, {v(XR + 1)}")
        b(f"v_bfe_u32 {v(XR + 1)}, {v(vLN)}, 3, 2")
        b(f"v_xor_b32 {v(XR + 1)}, {v(XR + 1)}, {v(vLN)}")
        b(f"v_lshl_add_u32 {v(eO + 2)}, {v(XR + 1)}, 4, {s(sRB)}")
        b(f"v_lshrrev_b32 {v(XR + 1)}, 2, {v(vLN)}")
        b(f"v_and_b32 {v(XR + 3)}, 3, {v(vLN)}")
        b(f"v_lshlrev_b32 {v(XR + 3)}, 4, {v(XR + 3)}")
        b(f"v_lshl_or_b32 {v(eO)}, {v(XR + 1)}, 9, {v(XR + 3)}")
        b(f"s_mov_b32 {s(sE0)}, 0x00ff00ff")
        b(f"s_bitcmp1_b32 {s(sGX)}, 0")
        b(f"s_cselect_b32 {s(sE0)}, 0xff00ff00, {s(sE0)}")
        b(f"s_mov_b32 {s(sE0 + 1)}, {s(sE0)}")
        b(f"s_mov_b32 {s(sC0)}, {LOG2E}")
        b(f"s_mov_b32 {s(sC0 + 1)}, {LOG2E}")
        b(f"s_mov_b32 {s(sE1)}, {LN2}")
        b(f"s_mov_b32 {s(sE1 + 1)}, {LN2}")
        b(f"s_mov_b32 {s(sT1)}, 0xffff0000")

    seq = [(kind, ct, kk) for kind, ct in (("m", 0), ("c", 0), ("c", 1)) for kk in range(8)]

    def ereads(n):
        kind, ct, kk = seq[n]
        r = MF + 12 * (n % 3)
        if kind == "m":
            return [f"ds_read_b128 {v(r + 4 * nt, 4)}, {v(eM + nt)} offset:{64 * kk}" for nt in range(3)]
        return [f"ds_read_b128 {v(r + 4 * nt, 4)}, {v(vHB + (kk & 3))} offset:{8192 * nt + 256 * (kk >> 2)}" for nt in range(3)]

    def step(n):
        kind, ct, kk = seq[n]
        vm = {("m", 0, 0): f"vmcnt({NB4}) ", ("c", 0, 0): "vmcnt(8) "}.get(seq[n], f"vmcnt({7 - kk}) " if (kind, ct) == ("c", 1) else "")
        out = [f"s_waitcnt {vm}lgkmcnt({3 if n + 1 < len(seq) else 0})"]
        if n + 2 < len(seq):
            out += ereads(n + 2)
        for nt in range(3):
            for c in ((0, 1) if kind == "m" else (ct,)):
                d = (MA if kind == "m" else CA) + 8 * nt + 4 * c
                out.append(mf16(d, (WH2 if kind == "m" else W1) + 32 * c + 4 * kk, MF + 12 * (n % 3) + 4 * nt, "0" if kk == 0 else d))
        return out

    def fix_move(ct):
        n = fresh()
        far.extend([f"K2_XO{n}:"] + [f"v_mov_b32 {v(XF + i)}, {v(MA + 16 + 4 * ct + i)}" for i in range(4)] + [f"s_branch K2_XD{n}"])
        return [f"s_bitcmp1_b32 {s(sGX)}, 0", f"s_cbranch_scc1 K2_XO{n}"] + \
               [f"v_mov_b32_dpp {v(XF + i)}, {v(MA + 16 + 4 * ct + i)} row_ror:8 row_mask:0xf bank_mask:0xf" for i in range(4)] + [f"K2_XD{n}:"]

    def fix_add(ct):
        return [f"s_lshr_b32 {s(sT0)}, {s(sGX)}, 1", f"s_lshl_b32 {s(sT0)}, {s(sT0)}, 3", f"s_mov_b64 exec, {s(sE0, 2)}",
                f"s_set_gpr_idx_on {s(sT0)}, gpr_idx(SRC1,DST)"] + \
               [f"v_add_f32 {v(MA + 4 * ct + i)}, {v(XF + i)}, {v(MA + 4 * ct + i)}" for i in range(4)] + \
               ["s_set_gpr_idx_off", "s_mov_b64 exec, -1"]

    rest = allw[NB4:]
    per = [len(rest) // 8 + (1 if n < len(rest) % 8 else 0) for n in range(8)]
    fill = capture(late_setup)
    assert len(fill) <= 40
    emit(a, ereads(0) + ereads(1))
    for n in range(8):
        st, mine = step(n), fill[5 * n:5 * n + 5] + [rest.pop(0) for _ in range(per[n])]
        emit(a, st[:4] + place(mine, [((j * len(mine)) // 6, st[4 + j]) for j in range(6)]))
    for n in range(8, 16):
        emit(a, step(n) + (fix_move(n - 10) + fix_add(n - 10) if n in (10, 11) else []))
    a.stamp()

    def silu(ct, packed):
        regs = [(nt, p) for nt in range(3) for p in range(2)]
        z = lambda nt, p: MA + 8 * nt + 4 * ct + 2 * p
        c = lambda nt, p: CA + 8 * nt + 4 * ct + 2 * p
        g = lambda nt, p: GR[2 * nt + p]
        out = []

        def two(pk, plain):
            for nt, p in regs:
                if packed:
                    out.append(pk(z(nt, p), c(nt, p), g(nt, p)))
                else:
                    out.extend(plain(z(nt, p) + i, c(nt, p) + i, g(nt, p) + i) for i in range(2))
        two(lambda z_, c_, g_: f"v_pk_fma_f32 {v(z_, 2)}, {v(c_, 2)}, {s(sC0, 2)}, {v(z_, 2)}",
            lambda z_, c_, g_: f"v_fmac_f32 {v(z_)}, {s(sC0)}, {v(c_)}")
        for nt, p in regs:
            out += [f"v_exp_f32 {v(g(nt, p) + i)}, -{v(z(nt, p) + i)}" for i in range(2)]
        two(lambda z_, c_, g_: f"v_pk_add_f32 {v(g_, 2)}, {v(g_, 2)}, 1.0 op_sel_hi:[1,0]",
            lambda z_, c_, g_: f"v_add_f32 {v(g_)}, 1.0, {v(g_)}")
        for nt, p in regs:
            out += [f"v_rcp_f32 {v(g(nt, p) + i)}, {v(g(nt, p) + i)}" for i in range(2)]
        two(lambda z_, c_, g_: f"v_pk_mul_f32 {v(g_, 2)}, {v(g_, 2)}, {v(z_, 2)}",
            lambda z_, c_, g_: f"v_mul_f32 {v(g_)}, {v(g_)}, {v(z_)}")
        for nt, p in regs:
            out.append(f"v_lshlrev_b32 {v(z(nt, p))}, 16, {v(HR + 4 * nt + 2 * ct + p)}")
            out.append(f"v_and_b32 {v(z(nt, p) + 1)}, {s(sT1)}, {v(HR + 4 * nt + 2 * ct + p)}")
        two(lambda z_, c_, g_: f"v_pk_fma_f32 {v(g_, 2)}, {v(g_, 2)}, {s(sE1, 2)}, {v(z_, 2)}",
            lambda z_, c_, g_: f"v_fma_f32 {v(g_)}, {v(g_)}, {s(sE1)}, {v(z_)}")
        for nt, p in regs:
            out.append(f"v_cvt_pk_bf16_f32 {v(HR + 4 * nt + 2 * ct + p)}, {v(g(nt, p))}, {v(g(nt, p) + 1)}")
        return out

    sl = silu(0, False)
    emit(a, step(16) + ["s_nop 0"] + place(sl, [(9 * (n - 17) + 3, step(n)) for n in range(17, 24)]))
    emit(a, silu(1, True))
    for nt in range(3):
        a(f"ds_write_b128 {v(eO + 1)}, {v(HR + 4 * nt, 4)} offset:{1024 * nt}")
    for nt in range(3):
        a(f"ds_read_b128 {v(CA + 4 * nt, 4)}, {v(eO + 2)} offset:{1024 * nt}")
    for nt in range(3):
        a(f"s_waitcnt lgkmcnt({2 - nt})")
        if nt == 2:
            a("s_mov_b32 exec_hi, 0")
        a(f"buffer_store_dwordx4 {v(CA + 4 * nt, 4)}, {v(eO)}, {s(S_OUT, 4)}, {s(sWRT)} offen {os.environ.get('F3', 'sc0 sc1')}")
        a(f"s_add_u32 {s(sWRT)}, {s(sWRT)}, 8192" if nt < 2 else "s_mov_b32 exec_hi, -1")
    a(f"s_cmp_ge_u32 {s(sWV)}, 2")
    a("s_cbranch_scc1 K2_EXIT")
    a(f"v_mul_u32_u24 v4, 21846, {v(vTID)}")
    a(f"v_lshrrev_b32 v4, 16, v4")
    a(f"v_mul_u32_u24 v5, 3, v4")
    a(f"v_sub_u32 v5, {v(vTID)}, v5")
    a(f"v_and_b32 v6, 7, v4")
    a(f"v_lshl_add_u32 v5, v5, 3, v6")
    a(f"v_lshlrev_b32 v5, 2, v5")
    a(f"v_add_u32 v5, {LPOS + 32}, v5")
    a(f"v_lshrrev_b32 v4, 3, v4")
    a(f"v_lshl_add_u32 v6, v4, 9, v5")
    a(f"v_add_u32 v5, {5 * 512}, v5")
    a("ds_read2_b32 v[8:9], v6 offset1:32")
    a("ds_read2_b32 v[10:11], v6 offset0:64 offset1:96")
    a("ds_read2_b32 v[12:13], v5 offset1:32")
    a("ds_read2_b32 v[14:15], v5 offset0:64 offset1:96")
    a(f"v_lshlrev_b32 v2, 1, {v(vTID)}")
    a(f"v_add_u32 v7, {LPD}, v2")
    a(f"ds_read_u16 v3, v7")
    a(f"v_cmp_gt_u32 vcc, 120, {v(vTID)}")
    a(f"s_mul_i32 {s(sT0)}, s2, 240")
    a(f"s_add_u32 {s(sT0)}, {s(sT0)}, {N * 512}")
    a(f"v_mov_b32 v1, {MARK}")
    a(f"v_cndmask_b32 v1, v1, v2, vcc")
    a(f"v_cmp_eq_u32 vcc, {s(sGX)}, v4")
    a("s_waitcnt lgkmcnt(0)")
    a("v_pk_add_f32 v[8:9], v[8:9], v[10:11]")
    a("v_pk_add_f32 v[12:13], v[12:13], v[14:15]")
    a("v_lshlrev_b32 v3, 16, v3")
    a("v_add_f32 v8, v8, v9")
    a("v_add_f32 v12, v12, v13")
    a("v_cndmask_b32 v12, 0, v12, vcc")
    a("v_add_f32 v8, v8, v12")
    a(f"v_fma_f32 v3, v8, {s(sE1)}, v3")
    a("v_cvt_pk_bf16_f32 v3, v3, v3")
    a(f"buffer_store_short v3, v1, {s(S_OUT, 4)}, {s(sT0)} offen {os.environ.get('F5', 'sc0 sc1')}")
    a.label("K2_EXIT")
    a.stamp()
    a.stamp(True)
    if a.stamps:
        a(f"s_mov_b32 {s(S_BP + 2)}, {16 << 20}")
    a.dump_stamps(S_BP, STAMP2_OFF - BP_OFF + 3072, 0, sWV, sT0)
    a.label("K2_END")
    a("s_endpgm")

    emit(a, far)
    a.label("K2_WREST")
    wh2_part(a, fresh(), "K2_FINAL")

    a.label("K2_NOA")
    emit(a, LATE)
    batch_consts(a)
    dense_addr(a)
    a("s_waitcnt vmcnt(0) lgkmcnt(0)")
    emit(a, dense(a, 0))
    dense_second()
    a("s_waitcnt lgkmcnt(0)")
    emit(a, frag_reads(0)[:2] + [list_read(1)])
    a("s_barrier")
    a("s_branch K2_READY")
    a.label("K2_IDLE")
    late_state(a)
    emit(a, capture(row_bases))
    a("s_branch K2_DONE")
    a.label("K2_OVER")
    a(f"s_cmp_lg_u32 {s(sSLOW)}, 0")
    a("s_cbranch_scc1 K2_FITS")
    a(f"s_mov_b32 {s(sSLOW)}, 1")
    a(f"s_mov_b32 {s(sLO)}, 0")
    a(f"s_mov_b32 {s(sTOT)}, {s(sBT)}")
    a(f"v_add_u32 {v(tT)}, {s(sTL)}, {v(tT)}")
    lane_setup()
    a(f"v_lshrrev_b32 {v(t2)}, 1, {v(t2)}")
    a(f"v_add_u32 {v(t2)}, 40960, {v(t2)}")
    a(f"buffer_store_dword {v(tT)}, {v(t2)}, {s(S_TMP, 4)}, 0 offen")
    a(f"v_lshlrev_b32 {v(t0)}, 4, {v(vTID)}")
    for r in range(5):
        a(f"buffer_store_dwordx4 {v(ZER, 4)}, {v(t0)}, {s(S_TMP, 4)}, 0 offen")
        a(f"v_add_u32 {v(t0)}, 8192, {v(t0)}")
    a("s_waitcnt vmcnt(0) lgkmcnt(0)")
    a("s_barrier")
    a("s_branch K2_SETUP")
    a.label("K2_NEXT")
    a("s_waitcnt vmcnt(0) lgkmcnt(0)")
    a("s_barrier")
    a(f"s_mov_b32 {s(sFIRST)}, 0")
    a(f"s_add_u32 {s(sLO)}, {s(sLO)}, {s(sBT)}")
    a(f"s_cmp_ge_u32 {s(sLO)}, {s(sTOT)}")
    a("s_cbranch_scc1 K2_LAST")
    a(f"s_cmp_eq_u32 {s(sBT)}, 0")
    a("s_cbranch_scc1 K2_LAST")
    emit(a, lds_init(a, False))
    a.label("K2_SETUP")
    lane_setup()
    a(f"buffer_load_dwordx2 {v(tDL, 2)}, {v(t2)}, {s(S_DESC, 4)}, 0 offen")
    a(f"v_lshrrev_b32 {v(t2)}, 1, {v(t2)}")
    a(f"v_add_u32 {v(t2)}, 40960, {v(t2)}")
    a(f"buffer_load_dword {v(t2)}, {v(t2)}, {s(S_TMP, 4)}, 0 offen sc1")
    lane_setup2()
    w1_pages()
    a("s_waitcnt vmcnt(0) lgkmcnt(0)")
    a(f"v_and_b32 {v(t0)}, 1023, {v(tDL)}")
    a(f"v_lshrrev_b32 {v(t1)}, 20, {v(tDH)}")
    a(f"v_sub_u32 {v(t0)}, {v(t1)}, {v(t0)}")
    a(f"v_sub_u32 {v(t0)}, {v(t2)}, {v(t0)}")
    a(f"s_add_u32 {s(sT0)}, {s(sLO)}, {LIMIT}")
    a(f"v_cmp_le_u32 vcc, {s(sLO)}, {v(t0)}")
    a(f"v_cmp_ge_u32 {s(sT2, 2)}, {s(sT0)}, {v(t2)}")
    a("s_nop 1")
    a(f"s_and_b64 vcc, vcc, {s(sT2, 2)}")
    a("s_nop 1")
    a(f"v_cndmask_b32 {v(tDL)}, 0, {v(tDL)}, vcc")
    a(f"v_cndmask_b32 {v(tDH)}, 0, {v(tDH)}, vcc")
    a("s_branch K2_BATCH")
    a.label("K2_LAST")
    a(f"v_lshlrev_b32 v0, 6, {v(vTID)}")
    a(f"v_lshrrev_b32 v1, 4, {v(vTID)}")
    a(f"v_mul_u32_u24 v1, {MROW}, v1")
    a(f"v_and_b32 v2, 15, {v(vTID)}")
    a(f"v_lshl_add_u32 v1, v2, 5, v1")
    a(f"v_add_u32 v1, {LM}, v1")
    for r in range(2):
        for k in range(4):
            a(f"buffer_load_dwordx4 {v(4 + 4 * k, 4)}, v0, {s(S_TMP, 4)}, 0 offen offset:{16 * k} sc1")
        a("s_waitcnt vmcnt(0)")
        for p in range(8):
            a(f"v_cvt_pk_bf16_f32 {v(20 + p)}, {v(4 + 2 * p)}, {v(5 + 2 * p)}")
        a(f"ds_write_b128 v1, v[20:23] offset:{32 * MROW * r}")
        a(f"ds_write_b128 v1, v[24:27] offset:{32 * MROW * r + 16}")
        if r == 0:
            a(f"v_cmp_gt_u32 vcc, 128, {v(vTID)}")
            a("v_add_u32 v0, 32768, v0")
            a("s_waitcnt lgkmcnt(0)")
            a("s_and_saveexec_b64 s[4:5], vcc")
            a("s_cbranch_execz K2_LAST2")
    a.label("K2_LAST2")
    a("s_mov_b64 exec, -1")
    a("s_branch K2_FINAL")
    return dict(name="edge_kernel", vgpr=256, sgpr=102, grid=256, block=512, lds=K2_LDS)
```

```python
import os
import sys
from asmlib import Asm, check_hazards
from k1 import gen_k1
from k2 import gen_k2

HEAD = open("standalone__cheap_equivariant_egnn__graph.s.ref").read().split("; Override launch")[0]


def build(gens, stamps=False):
    bodies, infos = [], []
    for g in gens:
        a = Asm()
        infos.append(g(a, stamps))
        pab = os.environ.get("PAB", "")
        if pab and infos[-1]["name"] == "edge_kernel":
            cut = a.lines.index("K2_LOOP:")
            keep = []
            for ln in a.lines[:cut]:
                if ("A" in pab and ln.startswith("v_mfma_f32_16x16")) or \
                   ("H" in pab and ln.startswith("ds_read_b128") and any(f"v{r} " in ln + " " for r in range(186, 190))) or \
                   ("P" in pab and ln.startswith("buffer_load_dwordx2") and "s[44:47]" in ln) or \
                   ("D" in pab and "s[24:27]" in ln and "lds" in ln) or \
                   ("W" in pab and ln.startswith("buffer_load_dwordx4") and "s[36:39]" in ln) or \
                   ("Z" in pab and ln.startswith("ds_write_b128") and "v[168:171]" in ln) or \
                   ("R" in pab and ln.startswith("ds_write_b16")):
                    continue
                keep.append(ln)
            a.lines = keep + a.lines[cut:]
        bodies.append(a.text())
    out = HEAD
    for k in infos:
        out += f"; @launch kernel={k['name']} grid=({k['grid']},1,1) block=({k['block']},1,1) lds={k['lds']}\n"
    out += '.amdgcn_target "amdgcn-amd-amdhsa--gfx950"\n.text\n'
    for k, b in zip(infos, bodies):
        out += f".globl {k['name']}\n.p2align 8\n.type {k['name']},@function\n" + b
    out += 'CODE_END:\n    s_endpgm\n.section .rodata,"a"\n'
    for k in infos:
        acc = (k["vgpr"] + 3) // 4 * 4
        out += f""".p2align 6
.amdhsa_kernel {k['name']}
  .amdhsa_next_free_vgpr {k['vgpr']}
  .amdhsa_next_free_sgpr {k['sgpr']}
  .amdhsa_accum_offset {acc}
  .amdhsa_group_segment_fixed_size 0
  .amdhsa_kernarg_size 88
  .amdhsa_user_sgpr_count 2
  .amdhsa_user_sgpr_kernarg_segment_ptr 1
  .amdhsa_system_sgpr_workgroup_id_x 1
  .amdhsa_float_denorm_mode_32 3
.end_amdhsa_kernel
"""
    for k, b in zip(infos, bodies):
        for p in check_hazards(b):
            print("HAZARD", k["name"], p)
    return out


if __name__ == "__main__":
    dst = sys.argv[1] if len(sys.argv) > 1 else "standalone__cheap_equivariant_egnn__graph.s"
    open(dst, "w").write(build([gen_k1, gen_k2], "--stamps" in sys.argv))
    print("wrote", dst)
```

```python
import os
from asmlib import Asm, v, s
from cfg import *

HALF_H, HALF_W = 80 * 256, 128 * 256
LH, LW = 0, 2 * HALF_H
LBINS = LW + 2 * HALF_W
K1_LDS = LBINS + 1280 * 4
SCAN_WAVE, FRAG_WAVE = 2, 6


def srd(a, d, base, size):
    a(f"s_mov_b32 {s(d)}, {s(base)}")
    a(f"s_and_b32 {s(d + 1)}, {s(base + 1)}, 0xffff")
    a(f"s_mov_b32 {s(d + 2)}, {size}")
    a(f"s_mov_b32 {s(d + 3)}, 0x20000")


def srd_off(a, d, base, off, size):
    a(f"s_add_u32 {s(d)}, {s(base)}, {off}")
    a(f"s_addc_u32 {s(d + 1)}, {s(base + 1)}, 0")
    a(f"s_and_b32 {s(d + 1)}, {s(d + 1)}, 0xffff")
    a(f"s_mov_b32 {s(d + 2)}, {size}")
    a(f"s_mov_b32 {s(d + 3)}, 0x20000")


def wave_scan(a, r):
    for sh in (1, 2, 4, 8):
        a("s_nop 1")
        a(f"v_add_u32_dpp {v(r)}, {v(r)}, {v(r)} row_shr:{sh} row_mask:0xf bank_mask:0xf bound_ctrl:0")
    a("s_nop 1")
    a(f"v_add_u32_dpp {v(r)}, {v(r)}, {v(r)} row_bcast:15 row_mask:0xa bank_mask:0xf")
    a("s_nop 1")
    a(f"v_add_u32_dpp {v(r)}, {v(r)}, {v(r)} row_bcast:31 row_mask:0xc bank_mask:0xf")


def gen_k1(a, stamps=False):
    if stamps:
        a.stamps = (70, list(range(72, 90)))
        a.keep_env = "KEEP1"
    S_H, S_WE, S_DST, S_SRC, S_EA, S_WS, S_WH, S_DESC = 24, 28, 32, 36, 40, 44, 48, 52
    S_OUT = S_DST
    sWV, sRB, sCB, sFRAG, sT0, sT1, sT2, sSO, sHO, sWO = 56, 57, 58, 59, 60, 61, 62, 63, 64, 65
    sC, sLB = 66, 68
    vLANE, vDST, vSRC, vEA, vBIN, vRANK, vREC = 1, 2, 3, 4, 5, 6, 8
    vT0, vT1, vT2, vT3 = 10, 11, 25, 26
    vFL, vFP, vFA = 12, 20, 24
    vDH, vDW = 28, 30
    vA, vQ, vDESC, vDA = 32, 52, 74, 82
    vACC, vHF, vWF, vHB, vWB, vOA = 88, 104, 32, 112, 116, 120
    vOUT = 32

    a.label("prep_kernel")
    a("s_cmp_ge_u32 s2, 256")
    a("s_cbranch_scc1 K1_END")
    a.stamp(True)
    a.stamp()
    a("s_load_dwordx16 s[4:19], s[0:1], 0")
    a("s_load_dwordx2 s[20:21], s[0:1], 80")
    if os.environ.get("PF", "1") == "1":
        a.comment("workgroups 0..7: read the code of both kernels once so that instruction fetch finds it in L2")
        a("s_cmp_ge_u32 s2, 8")
        a("s_cbranch_scc1 K1_NOPF")
        a("s_getpc_b64 s[22:23]")
        a("s_and_b32 s22, s22, 0xffffff80")
        a("v_lshlrev_b32 v2, 6, v0")
        a(f"v_min_u32 v2, CODE_END - prep_kernel - 256, v2")
        a("global_load_dword v123, v2, s[22:23]")
        a.label("K1_NOPF")
    a(f"v_lshrrev_b32 {v(vT0)}, 6, v0")
    a(f"v_and_b32 {v(vLANE)}, 63, v0")
    a(f"v_readfirstlane_b32 {s(sWV)}, {v(vT0)}")
    a(f"v_mov_b32 {v(vREC)}, 0")
    a(f"v_mov_b32 {v(vREC + 1)}, 0")
    a(f"v_lshlrev_b32 {v(vT0)}, 3, v0")
    a(f"v_add_u32 {v(vT0)}, {LBINS}, {v(vT0)}")
    a(f"ds_write_b64 {v(vT0)}, {v(vREC, 2)}")
    a(f"s_and_b32 {s(sT0)}, s2, 7")
    a(f"s_lshl_b32 {s(sT0)}, {s(sT0)}, 4")
    a(f"s_lshr_b32 {s(sT1)}, s2, 4")
    a(f"s_add_u32 {s(sRB)}, {s(sT0)}, {s(sT1)}")
    a(f"s_bfe_u32 {s(sCB)}, s2, 0x10003")
    a(f"s_mul_i32 {s(sT0)}, s2, {CH}")
    a(f"v_add_u32 {v(vT0)}, {s(sT0)}, v0")
    a(f"v_lshlrev_b32 {v(vT1)}, 2, {v(vT0)}")
    a(f"v_lshlrev_b32 {v(vT0)}, 1, {v(vT0)}")
    a(f"v_lshrrev_b32 {v(vT2)}, 4, {v(vLANE)}")
    a(f"v_and_b32 {v(vT3)}, 15, {v(vLANE)}")
    a(f"v_xor_b32 {v(vDH)}, {v(vT3)}, {v(vT2)}")
    a(f"v_lshlrev_b32 {v(vDH)}, 4, {v(vDH)}")
    a(f"v_lshl_or_b32 {v(vDH)}, {v(vT2)}, 9, {v(vDH)}")
    a(f"v_lshlrev_b32 {v(vDW)}, 1, {v(vT2)}")
    a(f"v_xor_b32 {v(vDW)}, {v(vT3)}, {v(vDW)}")
    a(f"v_lshlrev_b32 {v(vDW)}, 4, {v(vDW)}")
    a(f"v_lshl_or_b32 {v(vDW)}, {v(vT2)}, 9, {v(vDW)}")
    a(f"s_lshl_b32 {s(sT0)}, {s(sWV)}, 6")
    a(f"s_and_b32 {s(sT1)}, {s(sT0)}, 192")
    a(f"v_xor_b32 {v(vDH)}, {s(sT1)}, {v(vDH)}")
    a(f"v_xor_b32 {v(vDH + 1)}, 128, {v(vDH)}")
    a(f"s_and_b32 {s(sT1)}, {s(sT0)}, 128")
    a(f"v_xor_b32 {v(vDW)}, {s(sT1)}, {v(vDW)}")
    a(f"v_xor_b32 {v(vDW + 1)}, 128, {v(vDW)}")
    a(f"s_mul_i32 {s(sHO)}, {s(sRB)}, {80 * 512}")
    a(f"s_lshl_b32 {s(sT0)}, {s(sWV)}, 11")
    a(f"s_add_u32 {s(sHO)}, {s(sHO)}, {s(sT0)}")
    a(f"s_lshl_b32 {s(sWO)}, {s(sCB)}, 8")
    a(f"s_add_u32 {s(sWO)}, {s(sWO)}, {256 * 512}")
    a(f"s_add_u32 {s(sWO)}, {s(sWO)}, {s(sT0)}")
    a("s_waitcnt lgkmcnt(0)")
    a.stamp()
    srd(a, S_DST, 12, E * 4)
    a(f"buffer_load_dword {v(vDST)}, {v(vT1)}, {s(S_DST, 4)}, 0 offen {os.environ.get('F7', 'nt')}")
    srd(a, S_SRC, 10, E * 4)
    a(f"buffer_load_dword {v(vSRC)}, {v(vT1)}, {s(S_SRC, 4)}, 0 offen {os.environ.get('F7', 'nt')}")
    srd(a, S_EA, 8, E * 2)
    a(f"buffer_load_ushort {v(vEA)}, {v(vT0)}, {s(S_EA, 4)}, 0 offen {os.environ.get('F7', 'nt')}")
    srd(a, S_H, 4, H_SIZE)
    srd(a, S_WE, 14, WE_SIZE)
    a("s_barrier")

    def dma_items(kh):
        items = []
        for j in range(2):
            items.append([f"s_add_u32 m0, {s(sLB)}, {LH + HALF_H * kh + 10240 * j}",
                          f"s_add_u32 {s(sT1)}, {s(sHO)}, {20480 * j + 256 * kh}",
                          f"buffer_load_dwordx4 {v(vDH + (j & 1))}, {s(S_H, 4)}, {s(sT1)} offen {os.environ.get('F6', 'nt')} lds"])
        for j in range(4):
            it = [f"s_add_u32 m0, {s(sLB)}, {LW + HALF_W * kh + 10240 * j}",
                  f"s_add_u32 {s(sT1)}, {s(sWO)}, {20480 * j + 65536 * kh}",
                  f"buffer_load_dwordx4 {v(vDW + (j & 1))}, {s(S_WE, 4)}, {s(sT1)} offen {os.environ.get('F8', '')} lds"]
            if j == 3:
                it = [f"s_cmp_ge_u32 {s(sWV)}, 2", f"s_cbranch_scc1 K1_ND{kh}"] + it + [f"K1_ND{kh}:"]
            items.append(it)
        return items

    a(f"s_lshl_b32 {s(sLB)}, {s(sWV)}, 10")
    d0, d1 = dma_items(0), dma_items(1)
    first = d0
    for it in first:
        for ln in it:
            a(ln)
    a.stamp()
    a(f"s_waitcnt vmcnt(5)")
    a.stamp()
    a(f"v_lshrrev_b32 {v(vT0)}, 3, {v(vDST)}")
    a(f"v_lshlrev_b32 {v(vBIN)}, 2, {v(vT0)}")
    a(f"v_add_u32 {v(vBIN)}, {LBINS}, {v(vBIN)}")
    a(f"s_cmp_lt_u32 s2, {NC}")
    a(f"s_cselect_b32 {s(sT0)}, 1, 0")
    a(f"v_mov_b32 {v(vT1)}, {s(sT0)}")
    a(f"ds_add_rtn_u32 {v(vRANK)}, {v(vBIN)}, {v(vT1)}")

    srd(a, S_WS, 20, WS_USED)
    a(f"s_lshl_b32 {s(sT1)}, s2, 11")
    a(f"s_add_u32 {s(sT1)}, {s(sT1)}, {FR_OFF - FRAG_WAVE * 1024}")
    a(f"v_lshl_add_u32 {v(vFA)}, v0, 4, {s(sT1)}")
    a(f"s_sub_u32 {s(sT0)}, {s(sWV)}, {FRAG_WAVE}")
    a(f"s_cmp_lt_u32 {s(sT0)}, 2")
    a(f"s_cselect_b32 {s(sFRAG)}, 1, 0")
    a(f"s_cmp_lt_u32 s2, 192")
    a(f"s_cselect_b32 {s(sFRAG)}, {s(sFRAG)}, 0")
    a(f"s_cmp_eq_u32 {s(sFRAG)}, 0")
    a("s_cbranch_scc1 K1_NOFRAG")
    a(f"s_cmp_lt_u32 s2, 64")
    a(f"s_cselect_b32 {s(S_WH)}, s14, s18")
    a(f"s_cselect_b32 {s(S_WH + 1)}, s15, s19")
    a(f"s_cselect_b32 {s(sT2)}, 1, 0")
    a(f"s_and_b32 {s(S_WH + 1)}, {s(S_WH + 1)}, 0xffff")
    a(f"s_mov_b32 {s(S_WH + 2)}, {WH_SIZE}")
    a(f"s_mov_b32 {s(S_WH + 3)}, 0x20000")
    a(f"s_and_b32 {s(sT1)}, s2, 63")
    a(f"s_lshl_b32 {s(sT1)}, {s(sT1)}, 1")
    a(f"s_add_u32 {s(sT0)}, {s(sT0)}, {s(sT1)}")
    a(f"s_and_b32 {s(sT1)}, {s(sT0)}, 8")
    a(f"s_lshl_b32 {s(sT2)}, {s(sT1)}, {s(sT2)}")
    a(f"s_lshr_b32 {s(sT1)}, {s(sT0)}, 4")
    a(f"s_lshl_b32 {s(sT1)}, {s(sT1)}, 6")
    a(f"s_add_u32 {s(sT1)}, {s(sT1)}, {s(sT2)}")
    a(f"s_and_b32 {s(sT0)}, {s(sT0)}, 7")
    a(f"s_lshl_b32 {s(sT0)}, {s(sT0)}, 14")
    a(f"s_add_u32 {s(sT1)}, {s(sT1)}, {s(sT0)}")
    a(f"v_and_b32 {v(vT1)}, 3, {v(vLANE)}")
    a(f"v_bfe_u32 {v(vT2)}, {v(vLANE)}, 2, 2")
    a(f"v_lshl_or_b32 {v(vT3)}, {v(vT2)}, 3, {v(vT1)}")
    a(f"s_cmp_ge_u32 s2, 64")
    a("s_cbranch_scc1 K1_FCOL")
    a(f"v_bfe_u32 {v(vT2)}, {v(vLANE)}, 2, 1")
    a(f"v_lshl_or_b32 {v(vT1)}, {v(vT2)}, 4, {v(vT1)}")
    a(f"v_bfe_u32 {v(vT2)}, {v(vLANE)}, 3, 1")
    a(f"v_lshl_or_b32 {v(vT3)}, {v(vT2)}, 2, {v(vT1)}")
    a.label("K1_FCOL")
    a(f"v_lshlrev_b32 {v(vT1)}, 1, {v(vT3)}")
    a(f"v_lshrrev_b32 {v(vT2)}, 4, {v(vLANE)}")
    a(f"s_cmp_ge_u32 s2, 128")
    a(f"s_cselect_b32 {s(sT2)}, 11, 12")
    a(f"s_cselect_b32 {s(sSO)}, 6144, 0")
    a(f"s_cselect_b32 {s(sT0)}, {256 * 512}, 0")
    a(f"s_add_u32 {s(sT1)}, {s(sT1)}, {s(sT0)}")
    a(f"v_lshlrev_b32 {v(vT2)}, {s(sT2)}, {v(vT2)}")
    a(f"v_add3_u32 {v(vT1)}, {v(vT1)}, {v(vT2)}, {s(sT1)}")
    for t in range(8):
        so = "0" if t < 4 else s(sSO)
        a(f"buffer_load_ushort {v(vFL + t)}, {v(vT1)}, {s(S_WH, 4)}, {so} offen offset:{t * 512}")
    a.label("K1_NOFRAG")

    a(f"v_mul_u32_u24 {v(vT1)}, 52429, {v(vT0)}")
    a(f"v_lshrrev_b32 {v(vT1)}, 18, {v(vT1)}")
    a(f"v_mul_u32_u24 {v(vT1)}, 5, {v(vT1)}")
    a(f"v_sub_u32 {v(vT0)}, {v(vT0)}, {v(vT1)}")
    a(f"v_and_b32 {v(vT1)}, 7, {v(vDST)}")
    a(f"v_lshl_or_b32 {v(vT1)}, {v(vT0)}, 3, {v(vT1)}")
    a(f"v_lshlrev_b32 {v(vREC)}, 9, {v(vSRC)}")
    a(f"v_lshl_or_b32 {v(vEA)}, {v(vT1)}, 16, {v(vEA)}")
    a(f"s_cmp_ge_u32 {s(sWV)}, 5")
    a(f"s_cselect_b32 {s(sT0)}, 1, 0")
    a(f"s_cselect_b32 {s(sT1)}, 5, 0")
    a(f"s_sub_u32 {s(sT1)}, {s(sWV)}, {s(sT1)}")
    a(f"v_and_b32 {v(vT0)}, 15, {v(vLANE)}")
    a(f"v_lshrrev_b32 {v(vT1)}, 4, {v(vLANE)}")
    a(f"v_xor_b32 {v(vT2)}, {v(vT0)}, {v(vT1)}")
    a(f"v_lshlrev_b32 {v(vT2)}, 4, {v(vT2)}")
    a(f"v_lshl_or_b32 {v(vT2)}, {v(vT0)}, 8, {v(vT2)}")
    a(f"s_lshl_b32 {s(sT2)}, {s(sT1)}, 12")
    a(f"v_add_u32 {v(vHB)}, {s(sT2)}, {v(vT2)}")
    for k in range(1, 4):
        a(f"v_xor_b32 {v(vHB + k)}, {64 * k}, {v(vHB)}")
    a(f"v_bfe_u32 {v(vT0)}, {v(vLANE)}, 2, 2")
    a(f"v_lshl_or_b32 {v(vT2)}, {v(vT1)}, 3, {v(vT0)}")
    a(f"v_lshlrev_b32 {v(vT2)}, 8, {v(vT2)}")
    a(f"v_and_b32 {v(vT1)}, 1, {v(vT1)}")
    a(f"v_xor_b32 {v(vT1)}, {s(sT0)}, {v(vT1)}")
    a(f"v_lshl_or_b32 {v(vT0)}, {v(vT1)}, 2, {v(vT0)}")
    a(f"v_lshl_or_b32 {v(vT2)}, {v(vT0)}, 5, {v(vT2)}")
    a(f"v_and_b32 {v(vT0)}, 3, {v(vLANE)}")
    a(f"v_lshl_or_b32 {v(vT2)}, {v(vT0)}, 3, {v(vT2)}")
    a(f"v_add_u32 {v(vWB)}, {LW}, {v(vT2)}")
    for ti in range(1, 4):
        a(f"v_xor_b32 {v(vWB + ti)}, {32 * ti}, {v(vWB)}")
    a(f"s_mul_i32 {s(sSO)}, {s(sRB)}, 80")
    a(f"s_lshl_b32 {s(sT1)}, {s(sT1)}, 4")
    a(f"s_add_u32 {s(sSO)}, {s(sSO)}, {s(sT1)}")
    a(f"s_lshl_b32 {s(sSO)}, {s(sSO)}, 9")
    a(f"s_lshl_b32 {s(sT1)}, {s(sCB)}, 1")
    a(f"s_add_u32 {s(sT0)}, {s(sT0)}, {s(sT1)}")
    a(f"s_lshl_b32 {s(sT0)}, {s(sT0)}, 7")
    a(f"s_add_u32 {s(sSO)}, {s(sSO)}, {s(sT0)}")
    a(f"v_and_b32 {v(vT0)}, 15, {v(vLANE)}")
    a(f"v_lshrrev_b32 {v(vT1)}, 4, {v(vLANE)}")
    a(f"v_and_b32 {v(vT2)}, 7, {v(vLANE)}")
    a(f"v_xor_b32 {v(vT1)}, {v(vT1)}, {v(vT2)}")
    a(f"v_lshlrev_b32 {v(vT1)}, 4, {v(vT1)}")
    a(f"v_lshl_or_b32 {v(vT1)}, {v(vT0)}, 7, {v(vT1)}")
    a(f"s_lshl_b32 {s(sT0)}, {s(sWV)}, 11")
    a(f"v_add_u32 {v(vOA + 1)}, {s(sT0)}, {v(vT1)}")
    a(f"v_lshrrev_b32 {v(vT0)}, 3, {v(vLANE)}")
    a(f"v_xor_b32 {v(vT1)}, {v(vT0)}, {v(vT2)}")
    a(f"v_lshlrev_b32 {v(vT1)}, 4, {v(vT1)}")
    a(f"v_lshl_or_b32 {v(vT1)}, {v(vT0)}, 7, {v(vT1)}")
    a(f"v_add_u32 {v(vOA + 2)}, {s(sT0)}, {v(vT1)}")
    a(f"v_lshlrev_b32 {v(vT2)}, 4, {v(vT2)}")
    a(f"v_lshl_or_b32 {v(vOA)}, {v(vT0)}, 9, {v(vT2)}")
    a(f"s_and_b32 {s(sT0)}, s2, 7")
    a(f"s_lshl_b32 {s(sT0)}, {s(sT0)}, 8")
    a(f"s_and_b32 {s(sT1)}, s2, 0xf8")
    a(f"s_add_u32 {s(sT0)}, {s(sT0)}, {s(sT1)}")
    a(f"v_lshl_add_u32 {v(vDA)}, {v(vLANE)}, 13, {s(sT0)}")
    a(f"s_cmp_eq_u32 {s(sFRAG)}, 0")
    a("s_cbranch_scc1 K1_W0")
    a(f"s_waitcnt vmcnt(8) lgkmcnt(0)")
    a("s_branch K1_W1")
    a.label("K1_W0")
    a(f"s_waitcnt vmcnt(0) lgkmcnt(0)")
    a.label("K1_W1")
    a(f"v_lshl_or_b32 {v(vREC + 1)}, {v(vRANK)}, 22, {v(vEA)}")
    a("s_barrier")
    late = d1
    NPRE = int(os.environ.get("NPRE", "6"))
    for it in late[:NPRE]:
        for ln in it:
            a(ln)
    late = late[NPRE:]
    a.stamp()
    a(f"s_cmp_lg_u32 {s(sWV)}, {SCAN_WAVE}")
    a("s_cbranch_scc1 K1_NOSCAN")
    a(f"v_mul_u32_u24 {v(vT0)}, 80, {v(vLANE)}")
    a(f"v_add_u32 {v(vT0)}, {LBINS}, {v(vT0)}")
    for i in range(5):
        a(f"ds_read_b128 {v(vA + 4 * i, 4)}, {v(vT0)} offset:{16 * i}")
    a("s_waitcnt lgkmcnt(0)")
    for i in range(1, 20):
        a(f"v_add_u32 {v(vA + i)}, {v(vA + i - 1)}, {v(vA + i)}")
    a(f"v_mov_b32 {v(vT1)}, {v(vA + 19)}")
    wave_scan(a, vT1)
    a(f"v_sub_u32 {v(vQ)}, {v(vT1)}, {v(vA + 19)}")
    for i in range(1, 21):
        a(f"v_add_u32 {v(vQ + i)}, {v(vQ)}, {v(vA + i - 1)}")
    for i in range(5):
        a(f"ds_write_b128 {v(vT0)}, {v(vQ + 4 * i, 4)} offset:{16 * i}")
    for j in range(4):
        for hl in range(2):
            r = vQ + 5 * j + 3 * hl
            d = vDESC + 2 * j + hl
            a(f"v_lshl_or_b32 {v(d)}, {v(r + 1)}, 10, {v(r)}")
            a(f"v_lshl_or_b32 {v(d)}, {v(r + 2)}, 20, {v(d)}")
    a("s_waitcnt lgkmcnt(0)")
    a.label("K1_NOSCAN")
    a.stamp()

    def reads(kk):
        b, kh, k4 = kk & 1, kk >> 2, kk & 3
        out = [f"ds_read_b128 {v(vHF + 4 * b, 4)}, {v(vHB + k4)} offset:{HALF_H * kh}"]
        for ti in range(4):
            for half in range(2):
                out.append(f"ds_read_b64_tr_b16 {v(vWF + 16 * b + 4 * ti + 2 * half, 2)}, {v(vWB + ti)} offset:{HALF_W * kh + 8192 * k4 + 1024 * half}")
        return out

    def gemm_half(kh):
        for ln in reads(4 * kh):
            a(ln)
        for kk in range(4 * kh, 4 * kh + 4):
            b = kk & 1
            a("s_waitcnt lgkmcnt(0)")
            nxt = reads(kk + 1) if (kk & 3) < 3 else []
            for ti in range(4):
                d = vACC + 4 * ti
                for _ in range(3):
                    if nxt:
                        a(nxt.pop(0))
                a(f"v_mfma_f32_16x16x32_bf16 {v(d, 4)}, {v(vWF + 16 * b + 4 * ti, 4)}, {v(vHF + 4 * b, 4)}, {'0' if kk == 0 else v(d, 4)}")
                if late and ti & 1:
                    for ln in late.pop(0):
                        a(ln)

    def middle(tag):
        a("s_waitcnt vmcnt(0)")
        a("s_barrier")
        a.stamp()
        a(f"ds_read_b32 {v(vT0)}, {v(vBIN)}")
        srd_off(a, S_SRC, 20, REC_OFF, REC_SIZE)
        a(f"s_mul_i32 {s(sT0)}, s2, {CH * 8}")
        a("s_waitcnt lgkmcnt(0)")
        a(f"v_add_lshl_u32 {v(vT0)}, {v(vT0)}, {v(vRANK)}, 3")
        a(f"buffer_store_dwordx2 {v(vREC, 2)}, {v(vT0)}, {s(S_SRC, 4)}, {s(sT0)} offen {os.environ.get('F2', '')}")
        a(f"s_cmp_lg_u32 {s(sWV)}, {SCAN_WAVE}")
        a(f"s_cbranch_scc1 K1_NOREC{tag}")
        srd_off(a, S_DESC, 20, DESC_OFF, DESC_SIZE)
        for j in range(4):
            a(f"s_mov_b32 {s(sT0)}, {j * DESC_ROW}")
            a(f"buffer_store_dwordx2 {v(vDESC + 2 * j, 2)}, {v(vDA)}, {s(S_DESC, 4)}, {s(sT0)} offen {os.environ.get('F2', '')}")
        a.label(f"K1_NOREC{tag}")
        a.stamp()

    def frag_out():
        a(f"s_cmp_eq_u32 {s(sFRAG)}, 0")
        a("s_cbranch_scc1 K1_NOFST")
        for p in range(4):
            a(f"v_lshl_or_b32 {v(vFP + p)}, {v(vFL + 2 * p + 1)}, 16, {v(vFL + 2 * p)}")
        a(f"buffer_store_dwordx4 {v(vFP, 4)}, {v(vFA)}, {s(S_WS, 4)}, 0 offen {os.environ.get('F1', 'sc0 sc1')}")
        a.label("K1_NOFST")

    def scale_pack():
        a(f"s_mov_b32 {s(sC)}, {LOG2E}")
        a(f"s_mov_b32 {s(sC + 1)}, {LOG2E}")
        for p in range(8):
            a(f"v_pk_mul_f32 {v(vACC + 2 * p, 2)}, {v(vACC + 2 * p, 2)}, {s(sC, 2)}")
        for p in range(8):
            a(f"v_cvt_pk_bf16_f32 {v(vOUT + p)}, {v(vACC + 2 * p)}, {v(vACC + 2 * p + 1)}")

    def b_out():
        a.stamp()
        srd_off(a, S_OUT, 20, BP_OFF, BP_SIZE)
        a("s_nop 0")
        scale_pack()
        a(f"v_xor_b32 {v(vT0)}, 64, {v(vOA + 1)}")
        a(f"ds_write_b128 {v(vOA + 1)}, {v(vOUT, 4)}")
        a(f"ds_write_b128 {v(vT0)}, {v(vOUT + 4, 4)}")
        a(f"ds_read_b128 {v(vOUT + 8, 4)}, {v(vOA + 2)}")
        a(f"ds_read_b128 {v(vOUT + 12, 4)}, {v(vOA + 2)} offset:1024")
        a(f"s_add_u32 {s(sT0)}, {s(sSO)}, 4096")
        a("s_waitcnt lgkmcnt(1)")
        a(f"buffer_store_dwordx4 {v(vOUT + 8, 4)}, {v(vOA)}, {s(S_OUT, 4)}, {s(sSO)} offen {os.environ.get('F1', 'sc0 sc1')}")
        a("s_waitcnt lgkmcnt(0)")
        a(f"buffer_store_dwordx4 {v(vOUT + 12, 4)}, {v(vOA)}, {s(S_OUT, 4)}, {s(sT0)} offen {os.environ.get('F1', 'sc0 sc1')}")

    def finish():
        a.stamp()
        if a.stamps:
            a("s_waitcnt vmcnt(0)")
        a.stamp()
        a.stamp(True)
        if a.stamps:
            srd(a, S_WS, 20, 16 << 20)
        a.dump_stamps(S_WS, STAMP1_OFF, 0, sWV, sT0)

    gemm_half(0)
    middle("")
    srd(a, S_EA, 6, POS_SIZE)
    a(f"s_lshr_b32 {s(sT0)}, s2, 3")
    a(f"s_lshl_b32 {s(sT0)}, {s(sT0)}, 11")
    a(f"v_lshlrev_b32 {v(vT1)}, 2, v0")
    a(f"buffer_load_dword {v(vT2)}, {v(vT1)}, {s(S_EA, 4)}, {s(sT0)} offen")
    gemm_half(1)
    b_out()
    frag_out()
    finish()
    a.label("K1_END")
    a("s_endpgm")
    return dict(name="prep_kernel", vgpr=124, sgpr=96, grid=256, block=640, lds=K1_LDS)
```

```python
import os
from asmlib import Asm, v, s
from cfg import *

HALF_H, HALF_W = 80 * 256, 128 * 256
LH, LW = 0, 2 * HALF_H
LBINS = LW + 2 * HALF_W
K1_LDS = LBINS + 1280 * 4
SCAN_WAVE, FRAG_WAVE = 2, 6


def srd(a, d, base, size):
    a(f"s_mov_b32 {s(d)}, {s(base)}")
    a(f"s_and_b32 {s(d + 1)}, {s(base + 1)}, 0xffff")
    a(f"s_mov_b32 {s(d + 2)}, {size}")
    a(f"s_mov_b32 {s(d + 3)}, 0x20000")


def srd_off(a, d, base, off, size):
    a(f"s_add_u32 {s(d)}, {s(base)}, {off}")
    a(f"s_addc_u32 {s(d + 1)}, {s(base + 1)}, 0")
    a(f"s_and_b32 {s(d + 1)}, {s(d + 1)}, 0xffff")
    a(f"s_mov_b32 {s(d + 2)}, {size}")
    a(f"s_mov_b32 {s(d + 3)}, 0x20000")


def wave_scan(a, r):
    for sh in (1, 2, 4, 8):
        a("s_nop 1")
        a(f"v_add_u32_dpp {v(r)}, {v(r)}, {v(r)} row_shr:{sh} row_mask:0xf bank_mask:0xf bound_ctrl:0")
    a("s_nop 1")
    a(f"v_add_u32_dpp {v(r)}, {v(r)}, {v(r)} row_bcast:15 row_mask:0xa bank_mask:0xf")
    a("s_nop 1")
    a(f"v_add_u32_dpp {v(r)}, {v(r)}, {v(r)} row_bcast:31 row_mask:0xc bank_mask:0xf")


def gen_k1(a, stamps=False):
    if stamps:
        a.stamps = (70, list(range(72, 90)))
        a.keep_env = "KEEP1"
    S_H, S_WE, S_DST, S_SRC, S_EA, S_WS, S_WH, S_DESC = 24, 28, 32, 36, 40, 44, 48, 52
    S_OUT = S_DST
    sWV, sRB, sCB, sFRAG, sT0, sT1, sT2, sSO, sHO, sWO = 56, 57, 58, 59, 60, 61, 62, 63, 64, 65
    sC, sLB = 66, 68
    vLANE, vDST, vSRC, vEA, vBIN, vRANK, vREC = 1, 2, 3, 4, 5, 6, 8
    vT0, vT1, vT2, vT3 = 10, 11, 25, 26
    vFL, vFP, vFA = 12, 20, 24
    vDH, vDW = 28, 30
    vA, vQ, vDESC, vDA = 32, 52, 74, 82
    vACC, vHF, vWF, vHB, vWB, vOA = 88, 104, 32, 112, 116, 120
    vOUT = 32

    a.label("prep_kernel")
    a("s_cmp_ge_u32 s2, 256")
    a("s_cbranch_scc1 K1_END")
    a.stamp(True)
    a.stamp()
    a("s_load_dwordx16 s[4:19], s[0:1], 0")
    a("s_load_dwordx2 s[20:21], s[0:1], 80")
    if os.environ.get("PF", "1") == "1":
        a.comment("workgroups 0..7: read the code of both kernels once so that instruction fetch finds it in L2")
        a("s_cmp_ge_u32 s2, 8")
        a("s_cbranch_scc1 K1_NOPF")
        a("s_getpc_b64 s[22:23]")
        a("s_and_b32 s22, s22, 0xffffff80")
        a("v_lshlrev_b32 v2, 6, v0")
        a(f"v_min_u32 v2, CODE_END - prep_kernel - 256, v2")
        a("global_load_dword v123, v2, s[22:23]")
        a.label("K1_NOPF")
    a(f"v_lshrrev_b32 {v(vT0)}, 6, v0")
    a(f"v_and_b32 {v(vLANE)}, 63, v0")
    a(f"v_readfirstlane_b32 {s(sWV)}, {v(vT0)}")
    a(f"v_mov_b32 {v(vREC)}, 0")
    a(f"v_mov_b32 {v(vREC + 1)}, 0")
    a(f"v_lshlrev_b32 {v(vT0)}, 3, v0")
    a(f"v_add_u32 {v(vT0)}, {LBINS}, {v(vT0)}")
    a(f"ds_write_b64 {v(vT0)}, {v(vREC, 2)}")
    a(f"s_and_b32 {s(sT0)}, s2, 7")
    a(f"s_lshl_b32 {s(sT0)}, {s(sT0)}, 4")
    a(f"s_lshr_b32 {s(sT1)}, s2, 4")
    a(f"s_add_u32 {s(sRB)}, {s(sT0)}, {s(sT1)}")
    a(f"s_bfe_u32 {s(sCB)}, s2, 0x10003")
    a(f"s_mul_i32 {s(sT0)}, s2, {CH}")
    a(f"v_add_u32 {v(vT0)}, {s(sT0)}, v0")
    a(f"v_lshlrev_b32 {v(vT1)}, 2, {v(vT0)}")
    a(f"v_lshlrev_b32 {v(vT0)}, 1, {v(vT0)}")
    a(f"v_lshrrev_b32 {v(vT2)}, 4, {v(vLANE)}")
    a(f"v_and_b32 {v(vT3)}, 15, {v(vLANE)}")
    a(f"v_xor_b32 {v(vDH)}, {v(vT3)}, {v(vT2)}")
    a(f"v_lshlrev_b32 {v(vDH)}, 4, {v(vDH)}")
    a(f"v_lshl_or_b32 {v(vDH)}, {v(vT2)}, 9, {v(vDH)}")
    a(f"v_lshlrev_b32 {v(vDW)}, 1, {v(vT2)}")
    a(f"v_xor_b32 {v(vDW)}, {v(vT3)}, {v(vDW)}")
    a(f"v_lshlrev_b32 {v(vDW)}, 4, {v(vDW)}")
    a(f"v_lshl_or_b32 {v(vDW)}, {v(vT2)}, 9, {v(vDW)}")
    a(f"s_lshl_b32 {s(sT0)}, {s(sWV)}, 6")
    a(f"s_and_b32 {s(sT1)}, {s(sT0)}, 192")
    a(f"v_xor_b32 {v(vDH)}, {s(sT1)}, {v(vDH)}")
    a(f"v_xor_b32 {v(vDH + 1)}, 128, {v(vDH)}")
    a(f"s_and_b32 {s(sT1)}, {s(sT0)}, 128")
    a(f"v_xor_b32 {v(vDW)}, {s(sT1)}, {v(vDW)}")
    a(f"v_xor_b32 {v(vDW + 1)}, 128, {v(vDW)}")
    a(f"s_mul_i32 {s(sHO)}, {s(sRB)}, {80 * 512}")
    a(f"s_lshl_b32 {s(sT0)}, {s(sWV)}, 11")
    a(f"s_add_u32 {s(sHO)}, {s(sHO)}, {s(sT0)}")
    a(f"s_lshl_b32 {s(sWO)}, {s(sCB)}, 8")
    a(f"s_add_u32 {s(sWO)}, {s(sWO)}, {256 * 512}")
    a(f"s_add_u32 {s(sWO)}, {s(sWO)}, {s(sT0)}")
    a("s_waitcnt lgkmcnt(0)")
    a.stamp()
    srd(a, S_DST, 12, E * 4)
    a(f"buffer_load_dword {v(vDST)}, {v(vT1)}, {s(S_DST, 4)}, 0 offen {os.environ.get('F7', 'nt')}")
    srd(a, S_SRC, 10, E * 4)
    a(f"buffer_load_dword {v(vSRC)}, {v(vT1)}, {s(S_SRC, 4)}, 0 offen {os.environ.get('F7', 'nt')}")
    srd(a, S_EA, 8, E * 2)
    a(f"buffer_load_ushort {v(vEA)}, {v(vT0)}, {s(S_EA, 4)}, 0 offen {os.environ.get('F7', 'nt')}")
    srd(a, S_H, 4, H_SIZE)
    srd(a, S_WE, 14, WE_SIZE)
    a("s_barrier")

    def dma_items(kh):
        items = []
        for j in range(2):
            items.append([f"s_add_u32 m0, {s(sLB)}, {LH + HALF_H * kh + 10240 * j}",
                          f"s_add_u32 {s(sT1)}, {s(sHO)}, {20480 * j + 256 * kh}",
                          f"buffer_load_dwordx4 {v(vDH + (j & 1))}, {s(S_H, 4)}, {s(sT1)} offen {os.environ.get('F6', 'nt')} lds"])
        for j in range(4):
            it = [f"s_add_u32 m0, {s(sLB)}, {LW + HALF_W * kh + 10240 * j}",
                  f"s_add_u32 {s(sT1)}, {s(sWO)}, {20480 * j + 65536 * kh}",
                  f"buffer_load_dwordx4 {v(vDW + (j & 1))}, {s(S_WE, 4)}, {s(sT1)} offen {os.environ.get('F8', '')} lds"]
            if j == 3:
                it = [f"s_cmp_ge_u32 {s(sWV)}, 2", f"s_cbranch_scc1 K1_ND{kh}"] + it + [f"K1_ND{kh}:"]
            items.append(it)
        return items

    a(f"s_lshl_b32 {s(sLB)}, {s(sWV)}, 10")
    d0, d1 = dma_items(0), dma_items(1)
    UP = int(os.environ.get("UP", "0"))
    first = d0 + d1[:UP]
    for it in first:
        for ln in it:
            a(ln)
    a.stamp()
    a(f"s_waitcnt vmcnt({5 + min(UP, 5)})")
    a.stamp()
    a(f"v_lshrrev_b32 {v(vT0)}, 3, {v(vDST)}")
    a(f"v_lshlrev_b32 {v(vBIN)}, 2, {v(vT0)}")
    a(f"v_add_u32 {v(vBIN)}, {LBINS}, {v(vBIN)}")
    a(f"s_cmp_lt_u32 s2, {NC}")
    a(f"s_cselect_b32 {s(sT0)}, 1, 0")
    a(f"v_mov_b32 {v(vT1)}, {s(sT0)}")
    a(f"ds_add_rtn_u32 {v(vRANK)}, {v(vBIN)}, {v(vT1)}")

    srd(a, S_WS, 20, WS_USED)
    a(f"s_lshl_b32 {s(sT1)}, s2, 11")
    a(f"s_add_u32 {s(sT1)}, {s(sT1)}, {FR_OFF - FRAG_WAVE * 1024}")
    a(f"v_lshl_add_u32 {v(vFA)}, v0, 4, {s(sT1)}")
    a(f"s_sub_u32 {s(sT0)}, {s(sWV)}, {FRAG_WAVE}")
    a(f"s_cmp_lt_u32 {s(sT0)}, 2")
    a(f"s_cselect_b32 {s(sFRAG)}, 1, 0")
    a(f"s_cmp_lt_u32 s2, 192")
    a(f"s_cselect_b32 {s(sFRAG)}, {s(sFRAG)}, 0")
    a(f"s_cmp_eq_u32 {s(sFRAG)}, 0")
    a("s_cbranch_scc1 K1_NOFRAG")
    a(f"s_cmp_lt_u32 s2, 64")
    a(f"s_cselect_b32 {s(S_WH)}, s14, s18")
    a(f"s_cselect_b32 {s(S_WH + 1)}, s15, s19")
    a(f"s_cselect_b32 {s(sT2)}, 1, 0")
    a(f"s_and_b32 {s(S_WH + 1)}, {s(S_WH + 1)}, 0xffff")
    a(f"s_mov_b32 {s(S_WH + 2)}, {WH_SIZE}")
    a(f"s_mov_b32 {s(S_WH + 3)}, 0x20000")
    a(f"s_and_b32 {s(sT1)}, s2, 63")
    a(f"s_lshl_b32 {s(sT1)}, {s(sT1)}, 1")
    a(f"s_add_u32 {s(sT0)}, {s(sT0)}, {s(sT1)}")
    a(f"s_and_b32 {s(sT1)}, {s(sT0)}, 8")
    a(f"s_lshl_b32 {s(sT2)}, {s(sT1)}, {s(sT2)}")
    a(f"s_lshr_b32 {s(sT1)}, {s(sT0)}, 4")
    a(f"s_lshl_b32 {s(sT1)}, {s(sT1)}, 6")
    a(f"s_add_u32 {s(sT1)}, {s(sT1)}, {s(sT2)}")
    a(f"s_and_b32 {s(sT0)}, {s(sT0)}, 7")
    a(f"s_lshl_b32 {s(sT0)}, {s(sT0)}, 14")
    a(f"s_add_u32 {s(sT1)}, {s(sT1)}, {s(sT0)}")
    a(f"v_and_b32 {v(vT1)}, 3, {v(vLANE)}")
    a(f"v_bfe_u32 {v(vT2)}, {v(vLANE)}, 2, 2")
    a(f"v_lshl_or_b32 {v(vT3)}, {v(vT2)}, 3, {v(vT1)}")
    a(f"s_cmp_ge_u32 s2, 64")
    a("s_cbranch_scc1 K1_FCOL")
    a(f"v_bfe_u32 {v(vT2)}, {v(vLANE)}, 2, 1")
    a(f"v_lshl_or_b32 {v(vT1)}, {v(vT2)}, 4, {v(vT1)}")
    a(f"v_bfe_u32 {v(vT2)}, {v(vLANE)}, 3, 1")
    a(f"v_lshl_or_b32 {v(vT3)}, {v(vT2)}, 2, {v(vT1)}")
    a.label("K1_FCOL")
    a(f"v_lshlrev_b32 {v(vT1)}, 1, {v(vT3)}")
    a(f"v_lshrrev_b32 {v(vT2)}, 4, {v(vLANE)}")
    a(f"s_cmp_ge_u32 s2, 128")
    a(f"s_cselect_b32 {s(sT2)}, 11, 12")
    a(f"s_cselect_b32 {s(sSO)}, 6144, 0")
    a(f"s_cselect_b32 {s(sT0)}, {256 * 512}, 0")
    a(f"s_add_u32 {s(sT1)}, {s(sT1)}, {s(sT0)}")
    a(f"v_lshlrev_b32 {v(vT2)}, {s(sT2)}, {v(vT2)}")
    a(f"v_add3_u32 {v(vT1)}, {v(vT1)}, {v(vT2)}, {s(sT1)}")
    for t in range(8):
        so = "0" if t < 4 else s(sSO)
        a(f"buffer_load_ushort {v(vFL + t)}, {v(vT1)}, {s(S_WH, 4)}, {so} offen offset:{t * 512}")
    a.label("K1_NOFRAG")

    a(f"v_mul_u32_u24 {v(vT1)}, 52429, {v(vT0)}")
    a(f"v_lshrrev_b32 {v(vT1)}, 18, {v(vT1)}")
    a(f"v_mul_u32_u24 {v(vT1)}, 5, {v(vT1)}")
    a(f"v_sub_u32 {v(vT0)}, {v(vT0)}, {v(vT1)}")
    a(f"v_and_b32 {v(vT1)}, 7, {v(vDST)}")
    a(f"v_lshl_or_b32 {v(vT1)}, {v(vT0)}, 3, {v(vT1)}")
    a(f"v_lshlrev_b32 {v(vREC)}, 9, {v(vSRC)}")
    a(f"v_lshl_or_b32 {v(vEA)}, {v(vT1)}, 16, {v(vEA)}")
    a(f"s_cmp_ge_u32 {s(sWV)}, 5")
    a(f"s_cselect_b32 {s(sT0)}, 1, 0")
    a(f"s_cselect_b32 {s(sT1)}, 5, 0")
    a(f"s_sub_u32 {s(sT1)}, {s(sWV)}, {s(sT1)}")
    a(f"v_and_b32 {v(vT0)}, 15, {v(vLANE)}")
    a(f"v_lshrrev_b32 {v(vT1)}, 4, {v(vLANE)}")
    a(f"v_xor_b32 {v(vT2)}, {v(vT0)}, {v(vT1)}")
    a(f"v_lshlrev_b32 {v(vT2)}, 4, {v(vT2)}")
    a(f"v_lshl_or_b32 {v(vT2)}, {v(vT0)}, 8, {v(vT2)}")
    a(f"s_lshl_b32 {s(sT2)}, {s(sT1)}, 12")
    a(f"v_add_u32 {v(vHB)}, {s(sT2)}, {v(vT2)}")
    for k in range(1, 4):
        a(f"v_xor_b32 {v(vHB + k)}, {64 * k}, {v(vHB)}")
    a(f"v_bfe_u32 {v(vT0)}, {v(vLANE)}, 2, 2")
    a(f"v_lshl_or_b32 {v(vT2)}, {v(vT1)}, 3, {v(vT0)}")
    a(f"v_lshlrev_b32 {v(vT2)}, 8, {v(vT2)}")
    a(f"v_and_b32 {v(vT1)}, 1, {v(vT1)}")
    a(f"v_xor_b32 {v(vT1)}, {s(sT0)}, {v(vT1)}")
    a(f"v_lshl_or_b32 {v(vT0)}, {v(vT1)}, 2, {v(vT0)}")
    a(f"v_lshl_or_b32 {v(vT2)}, {v(vT0)}, 5, {v(vT2)}")
    a(f"v_and_b32 {v(vT0)}, 3, {v(vLANE)}")
    a(f"v_lshl_or_b32 {v(vT2)}, {v(vT0)}, 3, {v(vT2)}")
    a(f"v_add_u32 {v(vWB)}, {LW}, {v(vT2)}")
    for ti in range(1, 4):
        a(f"v_xor_b32 {v(vWB + ti)}, {32 * ti}, {v(vWB)}")
    a(f"s_mul_i32 {s(sSO)}, {s(sRB)}, 80")
    a(f"s_lshl_b32 {s(sT1)}, {s(sT1)}, 4")
    a(f"s_add_u32 {s(sSO)}, {s(sSO)}, {s(sT1)}")
    a(f"s_lshl_b32 {s(sSO)}, {s(sSO)}, 9")
    a(f"s_lshl_b32 {s(sT1)}, {s(sCB)}, 1")
    a(f"s_add_u32 {s(sT0)}, {s(sT0)}, {s(sT1)}")
    a(f"s_lshl_b32 {s(sT0)}, {s(sT0)}, 7")
    a(f"s_add_u32 {s(sSO)}, {s(sSO)}, {s(sT0)}")
    a(f"v_and_b32 {v(vT0)}, 15, {v(vLANE)}")
    a(f"v_lshrrev_b32 {v(vT1)}, 4, {v(vLANE)}")
    a(f"v_and_b32 {v(vT2)}, 7, {v(vLANE)}")
    a(f"v_xor_b32 {v(vT1)}, {v(vT1)}, {v(vT2)}")
    a(f"v_lshlrev_b32 {v(vT1)}, 4, {v(vT1)}")
    a(f"v_lshl_or_b32 {v(vT1)}, {v(vT0)}, 7, {v(vT1)}")
    a(f"s_lshl_b32 {s(sT0)}, {s(sWV)}, 11")
    a(f"v_add_u32 {v(vOA + 1)}, {s(sT0)}, {v(vT1)}")
    a(f"v_lshrrev_b32 {v(vT0)}, 3, {v(vLANE)}")
    a(f"v_xor_b32 {v(vT1)}, {v(vT0)}, {v(vT2)}")
    a(f"v_lshlrev_b32 {v(vT1)}, 4, {v(vT1)}")
    a(f"v_lshl_or_b32 {v(vT1)}, {v(vT0)}, 7, {v(vT1)}")
    a(f"v_add_u32 {v(vOA + 2)}, {s(sT0)}, {v(vT1)}")
    a(f"v_lshlrev_b32 {v(vT2)}, 4, {v(vT2)}")
    a(f"v_lshl_or_b32 {v(vOA)}, {v(vT0)}, 9, {v(vT2)}")
    a(f"s_and_b32 {s(sT0)}, s2, 7")
    a(f"s_lshl_b32 {s(sT0)}, {s(sT0)}, 8")
    a(f"s_and_b32 {s(sT1)}, s2, 0xf8")
    a(f"s_add_u32 {s(sT0)}, {s(sT0)}, {s(sT1)}")
    a(f"v_lshl_add_u32 {v(vDA)}, {v(vLANE)}, 13, {s(sT0)}")
    a(f"s_cmp_eq_u32 {s(sFRAG)}, 0")
    a("s_cbranch_scc1 K1_W0")
    a(f"s_waitcnt vmcnt({8 + min(UP, 5)}) lgkmcnt(0)")
    a("s_branch K1_W1")
    a.label("K1_W0")
    a(f"s_waitcnt vmcnt({min(UP, 5)}) lgkmcnt(0)")
    a.label("K1_W1")
    a(f"v_lshl_or_b32 {v(vREC + 1)}, {v(vRANK)}, 22, {v(vEA)}")
    a("s_barrier")
    late = d1[UP:]
    NPRE = int(os.environ.get("NPRE", "6"))
    for it in late[:NPRE]:
        for ln in it:
            a(ln)
    late = late[NPRE:]
    a.stamp()
    a(f"s_cmp_lg_u32 {s(sWV)}, {SCAN_WAVE}")
    a("s_cbranch_scc1 K1_NOSCAN")
    a(f"v_mul_u32_u24 {v(vT0)}, 80, {v(vLANE)}")
    a(f"v_add_u32 {v(vT0)}, {LBINS}, {v(vT0)}")
    for i in range(5):
        a(f"ds_read_b128 {v(vA + 4 * i, 4)}, {v(vT0)} offset:{16 * i}")
    a("s_waitcnt lgkmcnt(0)")
    for i in range(1, 20):
        a(f"v_add_u32 {v(vA + i)}, {v(vA + i - 1)}, {v(vA + i)}")
    a(f"v_mov_b32 {v(vT1)}, {v(vA + 19)}")
    wave_scan(a, vT1)
    a(f"v_sub_u32 {v(vQ)}, {v(vT1)}, {v(vA + 19)}")
    for i in range(1, 21):
        a(f"v_add_u32 {v(vQ + i)}, {v(vQ)}, {v(vA + i - 1)}")
    for i in range(5):
        a(f"ds_write_b128 {v(vT0)}, {v(vQ + 4 * i, 4)} offset:{16 * i}")
    for j in range(4):
        for hl in range(2):
            r = vQ + 5 * j + 3 * hl
            d = vDESC + 2 * j + hl
            a(f"v_lshl_or_b32 {v(d)}, {v(r + 1)}, 10, {v(r)}")
            a(f"v_lshl_or_b32 {v(d)}, {v(r + 2)}, 20, {v(d)}")
    a("s_waitcnt lgkmcnt(0)")
    a.label("K1_NOSCAN")
    a.stamp()

    def reads(kk):
        b, kh, k4 = kk & 1, kk >> 2, kk & 3
        out = [f"ds_read_b128 {v(vHF + 4 * b, 4)}, {v(vHB + k4)} offset:{HALF_H * kh}"]
        for ti in range(4):
            for half in range(2):
                out.append(f"ds_read_b64_tr_b16 {v(vWF + 16 * b + 4 * ti + 2 * half, 2)}, {v(vWB + ti)} offset:{HALF_W * kh + 8192 * k4 + 1024 * half}")
        return out

    def gemm_half(kh):
        for ln in reads(4 * kh):
            a(ln)
        for kk in range(4 * kh, 4 * kh + 4):
            b = kk & 1
            a("s_waitcnt lgkmcnt(0)")
            nxt = reads(kk + 1) if (kk & 3) < 3 else []
            for ti in range(4):
                d = vACC + 4 * ti
                for _ in range(3):
                    if nxt:
                        a(nxt.pop(0))
                a(f"v_mfma_f32_16x16x32_bf16 {v(d, 4)}, {v(vWF + 16 * b + 4 * ti, 4)}, {v(vHF + 4 * b, 4)}, {'0' if kk == 0 else v(d, 4)}")
                if late and ti & 1:
                    for ln in late.pop(0):
                        a(ln)

    def middle(tag):
        a("s_waitcnt vmcnt(0)")
        a("s_barrier")
        a.stamp()
        a(f"ds_read_b32 {v(vT0)}, {v(vBIN)}")
        srd_off(a, S_SRC, 20, REC_OFF, REC_SIZE)
        a(f"s_mul_i32 {s(sT0)}, s2, {CH * 8}")
        a("s_waitcnt lgkmcnt(0)")
        a(f"v_add_lshl_u32 {v(vT0)}, {v(vT0)}, {v(vRANK)}, 3")
        a(f"buffer_store_dwordx2 {v(vREC, 2)}, {v(vT0)}, {s(S_SRC, 4)}, {s(sT0)} offen {os.environ.get('F2', '')}")
        a(f"s_cmp_lg_u32 {s(sWV)}, {SCAN_WAVE}")
        a(f"s_cbranch_scc1 K1_NOREC{tag}")
        srd_off(a, S_DESC, 20, DESC_OFF, DESC_SIZE)
        for j in range(4):
            a(f"s_mov_b32 {s(sT0)}, {j * DESC_ROW}")
            a(f"buffer_store_dwordx2 {v(vDESC + 2 * j, 2)}, {v(vDA)}, {s(S_DESC, 4)}, {s(sT0)} offen {os.environ.get('F2', '')}")
        a.label(f"K1_NOREC{tag}")
        a.stamp()

    def frag_out():
        a(f"s_cmp_eq_u32 {s(sFRAG)}, 0")
        a("s_cbranch_scc1 K1_NOFST")
        for p in range(4):
            a(f"v_lshl_or_b32 {v(vFP + p)}, {v(vFL + 2 * p + 1)}, 16, {v(vFL + 2 * p)}")
        a(f"buffer_store_dwordx4 {v(vFP, 4)}, {v(vFA)}, {s(S_WS, 4)}, 0 offen {os.environ.get('F1', 'sc0 sc1')}")
        a.label("K1_NOFST")

    def scale_pack():
        a(f"s_mov_b32 {s(sC)}, {LOG2E}")
        a(f"s_mov_b32 {s(sC + 1)}, {LOG2E}")
        if os.environ.get("K1PK", "1") == "1":
            for p in range(8):
                a(f"v_pk_mul_f32 {v(vACC + 2 * p, 2)}, {v(vACC + 2 * p, 2)}, {s(sC, 2)}")
        else:
            for p in range(16):
                a(f"v_mul_f32 {v(vACC + p)}, {s(sC)}, {v(vACC + p)}")
        for p in range(8):
            a(f"v_cvt_pk_bf16_f32 {v(vOUT + p)}, {v(vACC + 2 * p)}, {v(vACC + 2 * p + 1)}")

    def b_out():
        a.stamp()
        srd_off(a, S_OUT, 20, BP_OFF, BP_SIZE)
        a("s_nop 0")
        scale_pack()
        a(f"v_xor_b32 {v(vT0)}, 64, {v(vOA + 1)}")
        a(f"ds_write_b128 {v(vOA + 1)}, {v(vOUT, 4)}")
        a(f"ds_write_b128 {v(vT0)}, {v(vOUT + 4, 4)}")
        a(f"ds_read_b128 {v(vOUT + 8, 4)}, {v(vOA + 2)}")
        a(f"ds_read_b128 {v(vOUT + 12, 4)}, {v(vOA + 2)} offset:1024")
        a(f"s_add_u32 {s(sT0)}, {s(sSO)}, 4096")
        a("s_waitcnt lgkmcnt(1)")
        a(f"buffer_store_dwordx4 {v(vOUT + 8, 4)}, {v(vOA)}, {s(S_OUT, 4)}, {s(sSO)} offen {os.environ.get('F1', 'sc0 sc1')}")
        a("s_waitcnt lgkmcnt(0)")
        a(f"buffer_store_dwordx4 {v(vOUT + 12, 4)}, {v(vOA)}, {s(S_OUT, 4)}, {s(sT0)} offen {os.environ.get('F1', 'sc0 sc1')}")

    def finish():
        a.stamp()
        if a.stamps:
            a("s_waitcnt vmcnt(0)")
        a.stamp()
        a.stamp(True)
        if a.stamps:
            srd(a, S_WS, 20, 16 << 20)
        a.dump_stamps(S_WS, STAMP1_OFF, 0, sWV, sT0)

    gemm_half(0)
    middle("")
    srd(a, S_EA, 6, POS_SIZE)
    a(f"s_lshr_b32 {s(sT0)}, s2, 3")
    a(f"s_lshl_b32 {s(sT0)}, {s(sT0)}, 11")
    a(f"v_lshlrev_b32 {v(vT1)}, 2, v0")
    a(f"buffer_load_dword {v(vT2)}, {v(vT1)}, {s(S_EA, 4)}, {s(sT0)} offen")
    gemm_half(1)
    b_out()
    frag_out()
    finish()
    a.label("K1_END")
    a("s_endpgm")
    return dict(name="prep_kernel", vgpr=124, sgpr=96, grid=256, block=640, lds=K1_LDS)
```

```python
import os
from asmlib import Asm, v, s, regs_of
from cfg import *
from k1 import srd, srd_off

NTMAX = 52
CAP = NTMAX * 16
LIMIT = CAP - 75
XT = 384
LS = 0
LX = LS + NTMAX * 1024
LL = LX + NTMAX * XT
LE = LL + (CAP + 64) * 4
LZ = LE + CAP * 4
LPOS = LZ + 512
LWX = LPOS + 6 * 512
LTOT = LWX + 512
LPD = LTOT + 128
LM = LPD + 256
MROW = 528
LH = (LM + 48 * MROW + 255) // 256 * 256
LR = LH + 40 * 512
RING = 4096
K2_LDS = LR + 8 * RING
assert LM % 16 == 0 and LR % 64 == 0 and LZ % 16 == 0 and K2_LDS <= 163840
MARK = 0x40000000
SPLIT_NUM = int(os.environ.get("SPLIT", "42"))

YA, YB, EA_, EB = 0, 16, 32, 48
ACC, MP, AF, X2, SP, LST = 64, 96, 104, 112, 120, 124
Y2Q, Y2C, Y2K, ID, QUA, ZER = 128, 148, 152, 156, 164, 168
vS, vL, vX1, vX2, vXS, vR0, vG, vR1, vMA, vWXA, vT0, vT1, vLN, vTID = range(172, 186)
vHB = 186
vPO, vF16 = 190, 191
WH2 = 192
T = WH2
S_BP, S_REC, S_DESC, S_FR, S_H, S_POS, S_OUT, S_TMP = 24, 28, 32, 36, 40, 44, 48, 52
sK3, sK2, sK1, sIT = 56, 57, 58, 59
sWV, sQ, sST, sFIRST, sSLOW, sLO, sTOT = 60, 61, 62, 63, 64, 65, 66
sTB = 67
sSQP = 73
sMASK = 74
sREM, sPEND, sGA, sRB, sT0, sT1, sT2, sT3 = 76, 77, 78, 79, 80, 81, 82, 83
sC0 = 84
sWB, sTL, sBT, sPS = 86, 87, 88, 89
sE0, sE1 = 90, 92
sWRT, sGX, sW1 = 23, 21, 99
sSQS, sPQ, sLO0 = 3, 20, 22
sSTR = 100

uid = [0]


def fresh():
    uid[0] += 1
    return uid[0]


def emit(a, lines):
    for ln in lines:
        a(ln)


def group_of(a, dst, tile):
    a(f"s_mov_b32 {s(dst)}, 0")
    for g in range(1, 5):
        a(f"s_cmp_ge_u32 {s(tile)}, {s(sTB + g)}")
        a(f"s_addc_u32 {s(dst)}, {s(dst)}, 0")


def mf32(d, x, y, c):
    return f"v_mfma_f32_32x32x16_bf16 {v(d, 16)}, {v(x, 4)}, {v(y, 4)}, {c if c == '0' else v(c, 16)}"


def mf8(d, x, y, c):
    return f"v_mfma_f32_32x32x8_bf16 {v(d, 16)}, {v(x, 2)}, {v(y, 2)}, {c if c == '0' else v(c, 16)}"


def mf16(d, x, y, c):
    return f"v_mfma_f32_16x16x32_bf16 {v(d, 4)}, {v(x, 4)}, {v(y, 4)}, {c if c == '0' else v(c, 4)}"


def p_mfmas(Y):
    return [mf32(Y, AF, ID, "0"), mf32(Y, AF + 4, ID + 4, Y), mf32(Y, X2, Y2C, Y), mf8(Y, X2 + 4, Y2K, Y)]


S1, S2 = mf32(ACC, MP, SP, ACC), mf32(ACC + 16, MP + 4, SP, ACC + 16)


Z0, Z1 = mf8(ACC, ZER, ZER, "0"), mf8(ACC + 16, ZER, ZER, "0")


def flush_head(b, F, WX, zero):
    n = fresh()
    b(f"s_cmp_lg_u32 {s(sSLOW)}, 0")
    b(f"s_cbranch_scc1 K2_FA{n}")
    b.label(f"K2_FB{n}")
    rd = [f"ds_read_b128 {v(WX[k], 4)}, {v(vWXA)} offset:{32 * k}" for k in range(4)]
    early = [k for k in range(4) if not ACC <= WX[k] < ACC + 32]
    emit(b, [rd[k] for k in early])
    b(f"s_mul_i32 {s(sT0)}, {s(sGA)}, {2 * MROW}")
    b(f"s_lshl_b32 {s(sT1)}, {s(sGA)}, 7")
    b(f"s_add_u32 {s(sT1)}, {s(sT1)}, {s(sPQ)}")
    for st in range(2):
        for p in range(8):
            b(f"v_cvt_pk_bf16_f32 {v(F + 8 * st + p)}, {v(ACC + 16 * st + 2 * p)}, {v(ACC + 16 * st + 2 * p + 1)}")
        if st == 0:
            emit(b, [rd[k] for k in range(4) if k not in early])
            if zero and len(early) == 4:
                b(Z0)
            b(f"v_add_u32 {v(vT0)}, {s(sT0)}, {v(vMA)}")
            b(f"v_lshl_add_u32 {v(vT1)}, {v(vLN)}, 2, {s(sT1)}")
    wr = [f"ds_write_b64 {v(vT0)}, {v(F + 8 * st + 2 * p, 2)} offset:{64 * st + 16 * p}" for st in range(2) for p in range(4)]
    m = [mf32(ACC + 16, WX[k], F + 4 * k, "0" if k == 0 else ACC + 16) for k in range(4)]
    emit(b, [f"s_waitcnt lgkmcnt({4 - len(early)})", f"s_mov_b64 exec, {s(sE0, 2)}", m[0]] + wr[:3] + [m[1]] + wr[3:6])
    if len(early) < 4:
        b("s_waitcnt lgkmcnt(6)")
    emit(b, [m[2]] + wr[6:] + ["s_mov_b64 exec, -1", m[3]])
    if zero and len(early) < 4:
        b(Z0)
    o = Asm()
    o.label(f"K2_FA{n}")
    o(f"s_lshl_b32 {s(sT1)}, {s(sGA)}, 7")
    o(f"s_add_u32 {s(sT1)}, {s(sT1)}, {s(sPQ)}")
    o(f"v_lshl_add_u32 {v(vT1)}, {v(vLN)}, 2, {s(sT1)}")
    o(f"ds_read_b32 {v(vPO)}, {v(vT1)}")
    o(f"s_lshl_b32 {s(sT0)}, {s(sGA)}, 11")
    o(f"s_lshl_b32 {s(sT1)}, {s(sQ)}, 8")
    o(f"s_add_u32 {s(sT0)}, {s(sT0)}, {s(sT1)}")
    o(f"v_and_b32 {v(vT0)}, 7, {v(vLN)}")
    o(f"v_lshrrev_b32 {v(vT1)}, 5, {v(vLN)}")
    o(f"v_lshlrev_b32 {v(vT1)}, 4, {v(vT1)}")
    o(f"v_lshl_or_b32 {v(vT0)}, {v(vT0)}, 10, {v(vT1)}")
    o(f"s_mov_b64 exec, {s(sE0, 2)}")
    for st in range(2):
        for k in range(4):
            o(f"buffer_load_dwordx4 {v(F + 4 * k, 4)}, {v(vT0)}, {s(S_TMP, 4)}, {s(sT0)} offen offset:{128 * st + 32 * k} sc1")
        o("s_waitcnt vmcnt(0)")
        for p in range(8):
            o(f"v_pk_add_f32 {v(F + 2 * p, 2)}, {v(F + 2 * p, 2)}, {v(ACC + 16 * st + 2 * p, 2)}")
        for k in range(4):
            o(f"buffer_store_dwordx4 {v(F + 4 * k, 4)}, {v(vT0)}, {s(S_TMP, 4)}, {s(sT0)} offen offset:{128 * st + 32 * k}")
        o("s_waitcnt vmcnt(0) lgkmcnt(0)")
    o("s_mov_b64 exec, -1")
    o(f"s_branch K2_FB{n}")
    return o.lines


FLUSH_TAIL = [f"v_add_f32 {v(vT0)}, {v(vPO)}, {v(ACC + 16)}", "s_mov_b32 exec_hi, 0",
              f"ds_write_b32 {v(vT1)}, {v(vT0)}", "s_mov_b32 exec_hi, -1"]


def late_state(b):
    b(f"s_lshl_b32 {s(sTL)}, {s(sPS)}, 1")
    b(f"s_mov_b32 {s(sWRT)}, 0")
    for g in range(5):
        b(f"s_cmp_lg_u32 {s(sTB + g)}, {s(sTB + g + 1)}")
        b(f"s_cselect_b32 {s(sT0)}, {1 << g}, 0")
        b(f"s_cmp_lg_u32 {s(sTB + g)}, {s(sTL)}")
        b(f"s_cselect_b32 {s(sT0)}, {s(sT0)}, 0")
        b(f"s_or_b32 {s(sWRT)}, {s(sWRT)}, {s(sT0)}")
    b(f"s_cmp_lt_u32 {s(sTL)}, {s(sTB + 5)}")
    b(f"s_cselect_b32 {s(sT0)}, 32, 0")
    b(f"s_or_b32 {s(sWRT)}, {s(sWRT)}, {s(sT0)}")
    b(f"s_cmp_lg_u32 {s(sSLOW)}, 0")
    b(f"s_cselect_b32 {s(sWRT)}, 31, {s(sWRT)}")
    group_of(b, sGX, sTL)


def wh2_part(o, n, done):
    o(f"s_add_u32 {s(sIT)}, {s(sIT)}, 1")
    for part in range(4):
        if part < 3:
            o(f"s_cmp_lg_u32 {s(sIT)}, {part + 1}")
            o(f"s_cbranch_scc1 K2_W{n}_{part + 1}")
        for f in range(4):
            o(f"buffer_load_dwordx4 {v(WH2 + 16 * part + 4 * f, 4)}, {v(vF16)}, {s(S_FR, 4)}, {s(sWB)} offen offset:{1024 * f}")
        o(f"s_add_u32 {s(sWB)}, {s(sWB)}, {4096 if part < 3 else (-3 * 4096) & 0xffffffff}")
        o(f"s_branch {done}")
        if part < 3:
            o.label(f"K2_W{n}_{part + 1}")


def switch(o):
    o(f"s_set_gpr_idx_on {s(sSQP)}, gpr_idx(SRC0)")
    for i in range(4):
        o(f"v_mov_b32 {v(Y2C + i)}, {v(Y2Q + i)}")
    o("s_set_gpr_idx_off")
    o(f"s_lshr_b32 {s(sSQP)}, {s(sSQP)}, 8")
    o(f"s_mov_b32 m0, {s(sRB)}")


def site(off_s, off_p, F, WX):
    n = fresh()
    bits = 1 << (off_s + 1) | (0 if off_p is None else 1 << (off_p + 1))
    chk = [f"s_and_b32 {s(sT0)}, {s(sMASK)}, {bits}", f"s_cbranch_scc1 K2_H{n}", f"K2_R{n}:"]
    o = Asm()

    def rest(tag, done):
        if off_p is not None:
            o(f"s_bitcmp1_b32 {s(sMASK)}, {off_p + 1}")
            o(f"s_cbranch_scc0 K2_HD{tag}")
            o.label(f"K2_HP{tag}")
            switch(o)
            o.label(f"K2_HD{tag}")
        if "x" in os.environ.get("ABL", ""):
            o(f"s_branch {done}")
        o(f"s_cmp_ge_u32 {s(sIT)}, 4")
        o(f"s_cbranch_scc1 {done}")
        wh2_part(o, tag, done)

    o.label(f"K2_H{n}")
    if off_p is not None:
        o(f"s_bitcmp1_b32 {s(sMASK)}, {off_s + 1}")
        o(f"s_cbranch_scc0 K2_HP{n}b")
    if off_s == 0:
        o(f"s_cmp_eq_u32 {s(sGA)}, -1")
        o(f"s_cbranch_scc1 K2_H0{n}")
    far = flush_head(o, F, WX, True)
    o(f"s_and_b32 {s(sGA)}, {s(sSQS)}, 255")
    o(f"s_lshr_b32 {s(sSQS)}, {s(sSQS)}, 8")
    o(f"s_nop {5 if off_p is not None else 7}")
    rest(f"{n}a", f"K2_HT{n}")
    o.label(f"K2_HT{n}")
    emit(o, FLUSH_TAIL + [Z1, f"s_branch K2_R{n}"])
    if off_s == 0:
        o.label(f"K2_H0{n}")
        emit(o, [Z0, Z1])
        late_state(o)
        o(f"s_cmp_eq_u32 {s(sST)}, 0")
        o(f"s_cselect_b32 {s(sGA)}, {s(sLO0)}, 20")
    if off_p is not None:
        rest(f"{n}b", f"K2_R{n}")
    return chk, o.lines + far


def dma(slot):
    so = [s(sK3), s(sK2), s(sK1), "0"]
    return [f"buffer_load_dwordx4 {v(LST + 2 * slot + i)}, {s(S_BP, 4)}, {so[2 * slot + i]} offen offset:{2048 * slot + 1024 * i} {os.environ.get('F4', '')} lds" for i in range(2)]


LST_ADD = [f"v_pk_add_f32 {v(LST + 2 * i, 2)}, {v(LST + 2 * i, 2)}, {v(vG, 2)} op_sel_hi:[1,0]" for i in range(2)]


def frag_reads(slot):
    return [f"ds_read_b128 {v(AF, 4)}, {v(vR0)} offset:{slot * 2048}",
            f"ds_read_b128 {v(AF + 4, 4)}, {v(vR1)} offset:{slot * 2048}",
            f"ds_read_b128 {v(X2, 4)}, {v(vX1)} offset:{slot * XT}",
            f"ds_read_b64 {v(X2 + 4, 2)}, {v(vX2)} offset:{slot * XT}"]


def list_read(ahead):
    return f"ds_read2_b64 {v(LST, 4)}, {v(vL)} offset0:{16 * ahead} offset1:{16 * ahead + 8}"


ADV_X = f"v_pk_add_f32 {v(vX1, 2)}, {v(vX1, 2)}, {v(vXS, 2)} op_sel_hi:[1,0]"
ADV_S = f"v_pk_add_f32 {v(vS, 2)}, {v(vS, 2)}, {s(sSTR, 2)}"


def exps(Y, Ex):
    return [f"v_exp_f32 {v(Ex + i)}, -{v(Y + i)}" for i in range(16)]


def rcps(Ex):
    return [f"v_rcp_f32 {v(Ex + i)}, {v(Ex + i)}" for i in range(16)]


def pkmuls(Y, Ex):
    return [f"v_pk_mul_f32 {v(Ex + 2 * i, 2)}, {v(Ex + 2 * i, 2)}, {v(Y + 2 * i, 2)}" for i in range(8)]


def cvts(Ex):
    return [f"v_cvt_pk_bf16_f32 {v(MP + i)}, {v(Ex + 2 * i)}, {v(Ex + 2 * i + 1)}" for i in range(8)]


def plus_one(Ex):
    return mf8(Ex, QUA, QUA, Ex)


def place(main, items):
    out = []
    for i, ins in enumerate(main + [None]):
        for pos, lines in items:
            if pos == i:
                out.extend(lines if isinstance(lines, list) else [lines])
        if ins is not None:
            out.append(ins)
    return out


def loop_body(far, mm=(0, 6, 10, 13, 16, 19), dm=(2, 4), op=2, r0=7, r1=14, pw=11, prio=os.environ.get('PRIO', '1') == '1'):
    hi = ["s_setprio 3"] if prio else []
    lo = ["s_setprio 0"] if prio else []
    chk, o = site(-1, 1, YB, [EA_ + 4 * k for k in range(4)])
    far.extend(o)
    m, d = p_mfmas(YB) + [S1, S2], dma(1)
    blk = place(cvts(EB) + exps(YA, EA_) + exps(YB, EB), [(0, lo + ["s_waitcnt lgkmcnt(0)"] + chk)] +
                [(mm[i], m[i]) for i in range(6)] + [(dm[0], d[0]), (dm[1], d[1])] +
                [(mm[5] + 1, [f"ds_read_b128 {v(SP, 4)}, {v(vS)}", list_read(2)]), (24 + op, plus_one(EA_))])
    blk += place(rcps(EA_) + pkmuls(YA, EA_) + LST_ADD, [
        (op, plus_one(EB)), (r0, ["s_waitcnt vmcnt(2) lgkmcnt(0)"] + frag_reads(0)), (pw, hi)])
    chk, o = site(0, 2, YA, [MP, MP + 4, ACC, ACC + 4])
    far.extend(o)
    m, d = p_mfmas(YA) + [S1, S2], dma(0)
    blk += place(cvts(EA_) + rcps(EB) + pkmuls(YB, EB) + [ADV_S, ADV_X], [(0, lo + ["s_waitcnt lgkmcnt(0)"] + chk)] +
                 [(mm[i], m[i]) for i in range(6)] + [(dm[0], d[0]), (dm[1], d[1])] +
                 [(r1, ["s_waitcnt vmcnt(2)"] + frag_reads(1)),
                  (r1 + 3, [f"s_lshr_b64 {s(sMASK, 2)}, {s(sMASK, 2)}, 2", f"s_sub_u32 {s(sREM)}, {s(sREM)}, 1"]),
                  (mm[5] + 1, [f"ds_read_b128 {v(SP, 4)}, {v(vS)} offset:1024"] + hi)])
    return blk


def spread(main, extra):
    n, k = len(main), len(extra)
    return place(main, [(min(n, (i * n) // k + (n // k) // 2), x) for i, x in enumerate(extra)])


def regs_in(line):
    out = set()
    for tok in line.split(None, 1)[1].split(","):
        out |= regs_of(tok.strip().split()[0])
    return out


def capture(fn):
    b = Asm()
    fn(b)
    return b.lines


def colmap_v(a, dst, src, tmp):
    a(f"v_and_b32 {v(dst)}, 0x23, {v(src)}")
    a(f"v_bfe_u32 {v(tmp)}, {v(src)}, 2, 1")
    a(f"v_lshl_or_b32 {v(dst)}, {v(tmp)}, 4, {v(dst)}")
    a(f"v_bfe_u32 {v(tmp)}, {v(src)}, 3, 2")
    a(f"v_lshl_or_b32 {v(dst)}, {v(tmp)}, 2, {v(dst)}")


def gen_k2(a, stamps=False):
    if stamps:
        a.stamps = (94, [96, 97, 98] + list(range(4, 20)))
    tDL, tDH, tN, tO0, tP2, tRA = T, T + 1, T + 2, T + 3, T + 4, T + 5
    tA, tB, tT = T + 6, T + 7, T + 8
    tF = T + 9
    tV = T + 10
    tR = T + 12
    tWD, tWE, tWX, tPP = T + 20, T + 21, T + 22, T + 23
    t0, t1, t2, t3, t4, t5 = range(T + 24, T + 30)
    tW, tM = T + 36, T + 38
    tPS, tPD = T + 40, T + 30
    tAS, tAX, tI = T + 48, T + 49, T + 51
    tH = T + 60
    AG, HF = ACC, ACC + 24
    far = []

    def lane_setup():
        a(f"v_lshrrev_b32 {v(t0)}, 1, {v(vLN)}")
        a(f"s_lshl_b32 {s(sT0)}, {s(sWV)}, 8")
        a(f"v_lshl_add_u32 {v(t2)}, {v(t0)}, 3, {s(sT0)}")
        a(f"v_lshl_add_u32 {v(tRA)}, {v(t0)}, 3, {s(sWV)}")

    def lane_setup2():
        a(f"v_mul_u32_u24 {v(tRA)}, {CH}, {v(tRA)}")
        a(f"v_and_b32 {v(tP2)}, 1, {v(vLN)}")
        a(f"v_lshlrev_b32 {v(tP2)}, 1, {v(tP2)}")
        a(f"v_lshlrev_b32 {v(tF)}, 4, {v(vLN)}")

    def w1_load(kk, ct):
        page = 2 * ct + (kk >> 2)
        return f"buffer_load_dwordx4 {v(8 * kk + 4 * ct, 4)}, {v(tF if page == 0 else T + 52 + page)}, {s(S_FR, 4)}, {s(sW1)} offen offset:{1024 * (kk & 3)}"

    def w1_pages():
        for page in range(1, 4):
            a(f"v_add_u32 {v(T + 52 + page)}, {4096 * page}, {v(tF)}")

    W1L = [w1_load(kk, ct) for kk in range(8) for ct in range(2)]

    def lds_init(b, first):
        b(f"v_lshlrev_b32 {v(t4)}, 4, {v(vTID)}")
        b(f"v_add_u32 {v(t5)}, 65536, {v(t4)}")
        total = LL // 16
        assert total // 512 == 8 and (LWX - LZ) // 16 == 224 and (CAP + 64) // 4 == 224
        for r in range(8):
            b(f"ds_write_b128 {v(t4)}, {v(ZER, 4)} offset:{8192 * r}")
        b(f"v_cmp_gt_u32 vcc, {total - 4096}, {v(vTID)}")
        for i in range(4):
            b(f"v_mov_b32 {v(T + 56 + i)}, {MARK}")
        tail = ["s_mov_b64 exec, vcc", f"v_cmp_gt_u32 vcc, 224, {v(vTID)}", f"ds_write_b128 {v(t5)}, {v(ZER, 4)}", "s_mov_b64 exec, vcc"]
        if first:
            tail.append(f"ds_write_b128 {v(t5)}, {v(ZER, 4)} offset:{LZ - 65536}")
        tail += [f"ds_write_b128 {v(t5)}, {v(T + 56, 4)} offset:{LL - 65536}", "s_mov_b64 exec, -1"]
        return tail

    def once_consts(b):
        b(f"s_mov_b32 {s(sE0)}, 0xff")
        b(f"s_mov_b32 {s(sE0 + 1)}, 0xff")
        b(f"s_mov_b32 {s(sSTR)}, 2048")
        b(f"s_mov_b32 {s(sSTR + 1)}, 128")
        b(f"v_and_b32 {v(t0)}, 15, {v(vLN)}")
        b(f"v_bfe_u32 {v(t1)}, {v(vLN)}, 4, 1")
        b(f"v_lshrrev_b32 {v(t2)}, 5, {v(vLN)}")
        b(f"v_lshl_or_b32 {v(t3)}, {v(t1)}, 2, {v(t2)}")
        b(f"v_bfe_u32 {v(t4)}, {v(vLN)}, 1, 2")
        b(f"v_xor_b32 {v(t3)}, {v(t3)}, {v(t4)}")
        b(f"v_lshlrev_b32 {v(t3)}, 4, {v(t3)}")
        b(f"v_lshl_or_b32 {v(t3)}, {v(t0)}, 7, {v(t3)}")
        b(f"v_add_u32 {v(vR0)}, {s(sRB)}, {v(t3)}")
        b(f"v_xor_b32 {v(vR1)}, 32, {v(vR0)}")
        b(f"v_cmp_eq_u32 vcc, {v(t1)}, {v(t2)}")
        b(f"v_mov_b32 {v(t3)}, {2 * XT}")
        b(f"v_and_b32 {v(t4)}, 7, {v(vLN)}")
        b(f"v_cndmask_b32 {v(vXS)}, 0, {v(t3)}, vcc")
        b(f"s_lshl_b32 {s(sT0)}, {s(sQ)}, 7")
        b(f"v_mul_u32_u24 {v(t3)}, {MROW}, {v(t4)}")
        b(f"v_lshl_add_u32 {v(t3)}, {v(t2)}, 3, {v(t3)}")
        b(f"s_add_u32 {s(sT1)}, {s(sT0)}, {LM}")
        b(f"v_add_u32 {v(vMA)}, {s(sT1)}, {v(t3)}")
        b(f"v_mov_b32 {v(vPO)}, 0")
        b(f"v_lshlrev_b32 {v(vF16)}, 4, {v(vLN)}")
        b(f"s_add_u32 {s(sT1)}, {s(sT0)}, {LWX}")
        b(f"v_lshl_add_u32 {v(vWXA)}, {v(t2)}, 4, {s(sT1)}")
        b(f"v_cmp_gt_u32 vcc, 32, {v(vLN)}")
        b(f"v_mov_b32 {v(t1)}, 0x3f80")
        b(f"v_mov_b32 {v(QUA + 1)}, 0")
        b(f"v_cndmask_b32 {v(QUA)}, 0, {v(t1)}, vcc")
        b(f"v_and_b32 {v(t0)}, 1, {v(vLN)}")
        b(f"v_lshlrev_b32 {v(t0)}, 4, {v(t0)}")
        b(f"v_lshlrev_b32 {v(t0)}, {v(t0)}, {v(t1)}")
        b(f"v_bfe_u32 {v(t1)}, {v(vLN)}, 1, 4")
        b(f"v_lshlrev_b32 {v(t2)}, 2, {v(t2)}")
        b(f"v_sub_u32 {v(t1)}, {v(t1)}, {v(t2)}")
        for p in range(4):
            b(f"v_cmp_eq_u32 vcc, {p}, {v(t1)}")
            b(f"v_cmp_eq_u32 {s(sT2, 2)}, {8 + p}, {v(t1)}")
            b("s_nop 0")
            b(f"v_cndmask_b32 {v(ID + p)}, 0, {v(t0)}, vcc")
            b(f"v_cndmask_b32 {v(ID + 4 + p)}, 0, {v(t0)}, {s(sT2, 2)}")

    def wde_consts(b):
        b(f"s_mov_b32 {s(sC0)}, {LOG2E}")
        b(f"s_mov_b32 {s(sC0 + 1)}, {LOG2E}")
        for i, w in enumerate((tWD, tWE)):
            b(f"v_lshlrev_b32 {v(t0)}, 16, {v(w)}")
            b(f"v_mul_f32 {v(t0)}, {s(sC0)}, {v(t0)}")
            b(f"v_cvt_pk_bf16_f32 {v(t1)}, {v(t0)}, {v(t0)}")
            b(f"v_lshlrev_b32 {v(t1)}, 16, {v(t1)}")
            b(f"v_sub_f32 {v(t1)}, {v(t0)}, {v(t1)}")
            b(f"v_cvt_pk_bf16_f32 {v(Y2K + i)}, {v(t0)}, {v(t1)}")

    def dense_addr(b):
        b(f"v_lshrrev_b32 {v(t0)}, 3, {v(vTID)}")
        b(f"v_lshlrev_b32 {v(tAS)}, 9, {v(t0)}")
        b(f"v_and_b32 {v(t1)}, 1, {v(vTID)}")
        b(f"v_lshl_or_b32 {v(tAS)}, {v(t1)}, 3, {v(tAS)}")
        b(f"v_and_b32 {v(t2)}, 6, {v(vTID)}")
        b(f"v_or_b32 {v(tAS)}, {v(tAS)}, {v(t2)}")
        b(f"v_lshrrev_b32 {v(t0)}, 4, {v(vTID)}")
        b(f"v_mul_u32_u24 {v(t0)}, {XT}, {v(t0)}")
        b(f"v_bfe_u32 {v(t3)}, {v(vTID)}, 1, 3")
        b(f"v_lshl_or_b32 {v(t3)}, {v(t1)}, 3, {v(t3)}")
        b(f"v_add_u32 {v(t0)}, {LX}, {v(t0)}")
        b(f"v_lshl_add_u32 {v(tAX)}, {v(t3)}, 4, {v(t0)}")
        b(f"v_lshl_add_u32 {v(tAX + 1)}, {v(t3)}, 3, {v(t0)}")

    a.label("edge_kernel")
    a("s_cmp_ge_u32 s2, 256")
    a("s_cbranch_scc1 K2_END")
    a("s_and_b32 s3, s2, 7")
    a("s_lshl_b32 s3, s3, 5")
    a("s_lshr_b32 s2, s2, 3")
    a("s_add_u32 s2, s2, s3")
    a(f"s_cmp_ge_u32 s2, {NB}")
    a("s_cbranch_scc1 K2_END")
    a.stamp(True)
    a.stamp()
    a("s_load_dwordx2 s[22:23], s[0:1], 80")
    a("s_load_dwordx16 s[4:19], s[0:1], 0")
    a("s_load_dwordx2 s[20:21], s[0:1], 64")
    a(f"v_lshrrev_b32 {v(t0)}, 6, v0")
    a(f"v_and_b32 {v(vLN)}, 63, v0")
    a(f"v_readfirstlane_b32 {s(sWV)}, {v(t0)}")
    a(f"v_mov_b32 {v(vTID)}, v0")
    a(f"s_mul_i32 {s(sTL)}, s2, {DESC_ROW}")
    a(f"s_add_u32 {s(sTL)}, {s(sTL)}, {DESC_OFF}")
    a(f"s_mov_b32 {s(S_DESC + 2)}, {DESC_ROW}")
    a(f"s_mov_b32 {s(S_DESC + 3)}, 0x20000")
    lane_setup()
    a(f"v_lshrrev_b32 {v(t3)}, 5, {v(vLN)}")
    a(f"v_and_b32 {v(t0)}, 31, {v(vLN)}")
    a(f"v_xor_b32 {v(t1)}, {v(t0)}, {v(t3)}")
    a(f"s_lshl_b32 {s(sT2)}, {s(sWV)}, 1")
    a(f"v_xor_b32 {v(t1)}, {s(sT2)}, {v(t1)}")
    a(f"v_lshlrev_b32 {v(t1)}, 4, {v(t1)}")
    a(f"v_lshl_or_b32 {v(t1)}, {v(t3)}, 9, {v(t1)}")
    lane_setup2()
    w1_pages()
    a(f"s_and_b32 {s(sQ)}, {s(sWV)}, 3")
    a(f"s_lshr_b32 {s(sST)}, {s(sWV)}, 2")
    a(f"s_lshl_b32 {s(sW1)}, {s(sWV)}, 14")
    a(f"s_mov_b32 {s(sFIRST)}, 1")
    a(f"s_mov_b32 {s(sSLOW)}, 0")
    a(f"s_lshl_b32 {s(sRB)}, {s(sWV)}, 12")
    a(f"s_add_u32 {s(sRB)}, {s(sRB)}, {LR}")
    a(f"v_mov_b32 {v(tH)}, {v(t1)}")
    a(f"v_mov_b32 {v(tH + 1)}, {v(t2)}")
    for i in range(4):
        a(f"v_mov_b32 {v(ZER + i)}, 0")
    b = Asm()
    tail = lds_init(b, True)
    writes = [ln for ln in b.lines if ln.startswith("ds_")]
    NE = int(os.environ.get("NE", "0"))
    emit(a, [ln for ln in b.lines if not ln.startswith("ds_")] + tail)
    a(f"v_mov_b32 {v(tH + 2)}, {v(t4)}")
    writes = [ln.replace(f"ds_write_b128 {v(t4)},", f"ds_write_b128 {v(tH + 2)},") for ln in writes]
    early = capture(once_consts) + capture(dense_addr)
    emit(a, place(early, [(2 * i, w) for i, w in enumerate(writes[:NE])]))
    a("s_waitcnt lgkmcnt(0)")
    a.stamp()
    a(f"s_add_u32 {s(S_DESC)}, s22, {s(sTL)}")
    a(f"s_addc_u32 {s(S_DESC + 1)}, s23, 0")
    a(f"s_and_b32 {s(S_DESC + 1)}, {s(S_DESC + 1)}, 0xffff")
    a(f"buffer_load_dwordx2 {v(tDL, 2)}, {v(tH + 1)}, {s(S_DESC, 4)}, 0 offen")
    srd(a, S_H, 4, H_SIZE)
    HPOS = "early"

    def h_dma():
        a(f"s_mul_i32 {s(sT0)}, s2, {40 * 512}")
        a(f"s_lshl_b32 {s(sT1)}, {s(sWV)}, 10")
        a(f"s_add_u32 {s(sT0)}, {s(sT0)}, {s(sT1)}")
        for j in range(3):
            if j == 2:
                a(f"s_cmp_ge_u32 {s(sWV)}, 4")
                a("s_cbranch_scc1 K2_NOH")
            a(f"s_add_u32 m0, {s(sT1)}, {LH + 8192 * j}")
            a("s_nop 0")
            a(f"buffer_load_dwordx4 {v(tH)}, {s(S_H, 4)}, {s(sT0)} offen lds")
            a(f"s_add_u32 {s(sT0)}, {s(sT0)}, 8192")
        a.label("K2_NOH")

    if HPOS == "early":
        h_dma()
    srd_off(a, S_FR, 22, FR_OFF, 3 * FR_ONE)

    def small_loads(b):
        colmap_v(b, t0, vLN, t1)
        srd(b, S_TMP, 14, WE_SIZE)
        b(f"s_lshl_b32 {s(sT0)}, {s(sQ)}, 7")
        b(f"s_add_u32 {s(sT0)}, {s(sT0)}, {512 * 512}")
        b(f"v_lshlrev_b32 {v(t0)}, 1, {v(t0)}")
        b(f"buffer_load_ushort {v(tWD)}, {v(t0)}, {s(S_TMP, 4)}, {s(sT0)} offen")
        b(f"buffer_load_ushort {v(tWE)}, {v(t0)}, {s(S_TMP, 4)}, {s(sT0)} offen offset:512")
        b(f"v_and_b32 {v(t0)}, 0xe7, {v(vTID)}")
        b(f"v_bfe_u32 {v(t1)}, {v(vTID)}, 3, 1")
        b(f"v_lshl_or_b32 {v(t0)}, {v(t1)}, 4, {v(t0)}")
        b(f"v_bfe_u32 {v(t1)}, {v(vTID)}, 4, 1")
        b(f"v_lshl_or_b32 {v(t0)}, {v(t1)}, 3, {v(t0)}")
        b(f"v_lshlrev_b32 {v(t0)}, 1, {v(t0)}")
        srd(b, S_TMP, 16, 512)
        b(f"buffer_load_ushort {v(tWX)}, {v(t0)}, {s(S_TMP, 4)}, 0 offen")
        srd(b, S_POS, 6, POS_SIZE)
        b(f"s_mul_i32 {s(sT0)}, s2, 240")
        b(f"v_lshlrev_b32 {v(t0)}, 2, {v(vLN)}")
        b(f"buffer_load_dword {v(tPP)}, {v(t0)}, {s(S_POS, 4)}, {s(sT0)} offen")
        srd_off(b, S_REC, 22, REC_OFF, REC_SIZE)
        srd_off(b, S_BP, 22, BP_OFF - 3072, BP_SIZE + 3072)
        srd(b, S_OUT, 20, OUT_SIZE)
        b(f"s_mul_i32 {s(sT0)}, s2, {SLOW_ROW}")
        b(f"s_add_u32 {s(sT0)}, {s(sT0)}, {SLOW_OFF}")
        b(f"s_add_u32 {s(S_TMP)}, s22, {s(sT0)}")
        b(f"s_addc_u32 {s(S_TMP + 1)}, s23, 0")
        b(f"s_and_b32 {s(S_TMP + 1)}, {s(S_TMP + 1)}, 0xffff")
        b(f"s_mov_b32 {s(S_TMP + 2)}, {SLOW_ROW}")
        b(f"s_mov_b32 {s(S_TMP + 3)}, 0x20000")
        b(f"s_mov_b32 {s(sK3)}, 3072")
        b(f"s_mov_b32 {s(sK2)}, 2048")
        b(f"s_mov_b32 {s(sK1)}, 1024")
        b(f"s_lshl_b32 {s(sPQ)}, {s(sQ)}, 7")
        b(f"s_add_u32 {s(sPQ)}, {s(sPQ)}, {LPOS}")
        b(f"v_bfe_u32 {v(t3)}, {v(vLN)}, 4, 2")
        b(f"v_and_b32 {v(t2)}, 7, {v(vLN)}")
        b(f"v_xor_b32 {v(t3)}, {v(t3)}, {v(t2)}")
        b(f"s_lshl_b32 {s(sT0)}, {s(sQ)}, 7")
        b(f"v_lshl_add_u32 {v(vG)}, {v(t3)}, 4, {s(sT0)}")
        b(f"v_and_b32 {v(t0)}, 15, {v(vLN)}")
        b(f"v_lshrrev_b32 {v(t1)}, 4, {v(vLN)}")
        b(f"v_xor_b32 {v(t1)}, {v(t1)}, {v(t0)}")
        b(f"v_lshlrev_b32 {v(t1)}, 4, {v(t1)}")
        b(f"v_lshl_or_b32 {v(t1)}, {v(t0)}, 9, {v(t1)}")
        b(f"v_add_u32 {v(vHB)}, {LH}, {v(t1)}")
        for k in range(1, 4):
            b(f"v_xor_b32 {v(vHB + k)}, {64 * k}, {v(vHB)}")

    NW1, NW2a, NW2b, NW3 = [int(x) for x in os.environ.get("NW", "6,2,2,6").split(",")]
    NW2 = NW2a + NW2b
    NW4 = 16 - NW1 - NW2 - NW3
    win1 = spread(capture(small_loads), W1L[:NW1])
    emit(a, spread(win1, writes[NE:]) if NE < 8 else win1)
    a(f"s_waitcnt vmcnt({(2 if HPOS == 'early' else 0) + 4 + NW1})")
    a.stamp()

    a.label("K2_BATCH")
    a(f"v_and_b32 {v(tO0)}, 1023, {v(tDL)}")
    a(f"v_lshrrev_b32 {v(tT)}, 20, {v(tDH)}")
    a(f"v_sub_u32 {v(tT)}, {v(tT)}, {v(tO0)}")
    a(f"v_add3_u32 {v(tO0)}, {v(tRA)}, {v(tO0)}, {v(tP2)}")
    a(f"v_sub_u32 {v(tN)}, {v(tT)}, {v(tP2)}")
    a(f"v_lshlrev_b32 {v(tO0)}, 3, {v(tO0)}")
    a(f"v_cmp_lt_i32 vcc, 0, {v(tN)}")
    a(f"v_cmp_lt_i32 {s(sT2, 2)}, 4, {v(tN)}")
    a(f"v_mov_b32 {v(t2)}, {MARK}")
    a(f"v_cndmask_b32 {v(t1)}, {v(t2)}, {v(tO0)}, vcc")
    a(f"v_cndmask_b32 {v(t2)}, {v(t2)}, {v(tO0)}, {s(sT2, 2)}")
    a(f"buffer_load_dwordx4 {v(tR, 4)}, {v(t1)}, {s(S_REC, 4)}, 0 offen")
    a(f"buffer_load_dwordx4 {v(tR + 4, 4)}, {v(t2)}, {s(S_REC, 4)}, 0 offen offset:32")
    if HPOS == "rec":
        h_dma()
    main, a = a, Asm()
    a(f"v_lshrrev_b32 {v(t0)}, 10, {v(tDL)}")
    a(f"v_lshl_or_b32 {v(t0)}, {v(tDH)}, 20, {v(t0)}")
    a(f"v_and_b32 {v(t0)}, 0x3fffffff, {v(t0)}")
    a(f"v_sub_u32 {v(t0)}, {v(t0)}, {v(tDL)}")
    a(f"v_lshrrev_b32 {v(t1)}, 10, {v(tDH)}")
    a(f"v_and_b32 {v(t2)}, 0xfffff, {v(tDH)}")
    a(f"v_mov_b32 {v(tA)}, {v(t0)}")
    a(f"v_sub_u32 {v(t1)}, {v(t1)}, {v(t2)}")
    a(f"v_mov_b32 {v(tB)}, {v(t1)}")
    order = [tT, tA, tB]
    for sh in ("row_shr:2", "row_shr:4", "row_shr:8"):
        for r in order:
            a(f"v_add_u32_dpp {v(r)}, {v(r)}, {v(r)} {sh} row_mask:0xf bank_mask:0xf bound_ctrl:0")
    for sh in ("row_bcast:15 row_mask:0xa", "row_bcast:31 row_mask:0xc"):
        for r in order:
            a(f"v_add_u32_dpp {v(r)}, {v(r)}, {v(r)} {sh} bank_mask:0xf")
    a(f"s_lshl_b32 {s(sT0)}, {s(sWV)}, 2")
    a(f"s_add_u32 {s(sT0)}, {s(sT0)}, {LTOT}")
    a(f"v_mov_b32 {v(t3)}, {s(sT0)}")
    emit(main, spread(a.lines, W1L[NW1:NW1 + NW2a]) if NW2a else a.lines)
    a = main
    a("s_mov_b32 exec_lo, 0")
    a("s_mov_b32 exec_hi, 0x80000000")
    for i in range(3):
        a(f"ds_write_b32 {v(t3)}, {v(tA + i)} offset:{32 * i}")
    a("s_mov_b64 exec, -1")
    a(f"v_sub_u32 {v(tA)}, {v(tA)}, {v(t0)}")
    a(f"v_sub_u32 {v(tB)}, {v(tB)}, {v(t1)}")
    a(f"v_and_b32 {v(t3)}, 7, {v(vLN)}")
    a(f"v_lshlrev_b32 {v(t3)}, 2, {v(t3)}")
    a(f"v_add_u32 {v(t3)}, {LTOT}, {v(t3)}")
    a("s_waitcnt lgkmcnt(0)")
    a("s_barrier")
    a.stamp()
    for i in range(3):
        a(f"ds_read_b32 {v(t0 + i)}, {v(t3)} offset:{32 * i}")
    emit(a, W1L[NW1 + NW2a:NW1 + NW2])
    a(f"s_mov_b32 {s(sTB)}, 0")
    a("s_waitcnt lgkmcnt(0)")
    for i in range(3):
        a(f"v_mov_b32 {v(t3 + i)}, {v(t0 + i)}")
    for sh in ("row_shr:1", "row_shr:2", "row_shr:4"):
        for i in range(3):
            a(f"v_add_u32_dpp {v(t0 + i)}, {v(t0 + i)}, {v(t0 + i)} {sh} row_mask:0xf bank_mask:0xf bound_ctrl:0")
    for i in range(3):
        a(f"v_sub_u32 {v(t3 + i)}, {v(t0 + i)}, {v(t3 + i)}")
    a(f"v_readlane_b32 {s(sT0)}, {v(t0)}, 7")
    a(f"v_readlane_b32 {s(sT1)}, {v(t1)}, 7")
    a(f"v_readlane_b32 {s(sBT)}, {v(t2)}, 7")
    a(f"v_readlane_b32 {s(sT2)}, {v(t3)}, {s(sWV)}")
    a(f"v_readlane_b32 {s(sT3)}, {v(t4)}, {s(sWV)}")
    a(f"v_readlane_b32 {s(sTL)}, {v(t5)}, {s(sWV)}")
    a(f"s_add_u32 {s(sT0)}, {s(sT0)}, {15 | 15 << 10 | 15 << 20}")
    a(f"s_add_u32 {s(sT1)}, {s(sT1)}, {15 | 15 << 10}")
    for g in range(5):
        src = sT0 if g < 3 else sT1
        a(f"s_bfe_u32 {s(sPS)}, {s(src)}, {hex((6 << 16) | (10 * (g % 3) + 4))}")
        a(f"s_add_u32 {s(sTB + g + 1)}, {s(sTB + g)}, {s(sPS)}")
    a(f"s_cmp_gt_u32 {s(sBT)}, {CAP}")
    a(f"s_cselect_b32 {s(sT0)}, 255, {s(sTB + 5)}")
    a(f"s_cmp_gt_u32 {s(sT0)}, {NTMAX}")
    a("s_cbranch_scc1 K2_OVER")
    a.label("K2_FITS")
    a(f"s_lshl_b32 {s(sT0)}, {s(sTB + 1)}, 14")
    a(f"s_lshl_b32 {s(sT1)}, {s(sTB + 2)}, 24")
    a(f"s_add_u32 {s(sT2)}, {s(sT2)}, {s(sT0)}")
    a(f"s_add_u32 {s(sT2)}, {s(sT2)}, {s(sT1)}")
    a(f"s_lshl_b32 {s(sT0)}, {s(sTB + 3)}, 4")
    a(f"s_lshl_b32 {s(sT1)}, {s(sTB + 4)}, 14")
    a(f"s_add_u32 {s(sT3)}, {s(sT3)}, {s(sT0)}")
    a(f"s_add_u32 {s(sT3)}, {s(sT3)}, {s(sT1)}")
    a(f"v_add_u32 {v(tA)}, {s(sT2)}, {v(tA)}")
    a(f"v_add_u32 {v(tB)}, {s(sT3)}, {v(tB)}")
    a(f"v_lshl_or_b32 {v(tV)}, {v(tB)}, 30, {v(tA)}")
    a(f"v_lshrrev_b32 {v(tV + 1)}, 2, {v(tB)}")
    a(f"s_add_u32 {s(sT0)}, {s(sTB + 5)}, 1")
    a(f"s_lshr_b32 {s(sT0)}, {s(sT0)}, 1")
    a(f"s_mul_i32 {s(sPS)}, {s(sT0)}, {SPLIT_NUM}")
    a(f"s_add_u32 {s(sPS)}, {s(sPS)}, 32")
    a(f"s_lshr_b32 {s(sPS)}, {s(sPS)}, 6")
    a(f"s_cmp_lg_u32 {s(sSLOW)}, 0")
    a(f"s_cselect_b32 {s(sPS)}, {s(sT0)}, {s(sPS)}")
    a(f"s_cmp_eq_u32 {s(sST)}, 0")
    a(f"s_cselect_b32 {s(sREM)}, 0, {s(sPS)}")
    a(f"s_cselect_b32 {s(sPEND)}, {s(sPS)}, {s(sT0)}")
    a(f"s_lshl_b32 {s(sT0)}, {s(sREM)}, 7")
    a(f"s_add_u32 {s(sT0)}, {s(sT0)}, {LL}")
    a(f"v_lshrrev_b32 {v(t0)}, 3, {v(vLN)}")
    a(f"v_lshl_add_u32 {v(vL)}, {v(t0)}, 3, {s(sT0)}")
    a(f"v_lshlrev_b32 {v(tI)}, 2, {v(vTID)}")
    a(f"v_add_u32 {v(tI)}, {LL}, {v(tI)}")
    a(f"s_mov_b32 m0, {s(sRB)}")

    def batch_consts(b):
        b(f"s_mov_b32 {s(sGA)}, -1")
        b(f"s_mov_b32 {s(sIT)}, 0")
        b(f"s_add_u32 {s(sWB)}, {s(sW1)}, {2 * FR_ONE}")
        b(f"s_mov_b64 {s(sMASK, 2)}, 0")
        for g in range(1, 5):
            b(f"s_bitset1_b64 {s(sMASK, 2)}, {s(sTB + g)}")
        b(f"s_lshl_b32 {s(sTL)}, {s(sREM)}, 1")
        b(f"s_lshr_b64 {s(sMASK, 2)}, {s(sMASK, 2)}, {s(sTL)}")
        b(f"s_or_b32 {s(sMASK)}, {s(sMASK)}, 1")
        b(f"s_lshl_b64 {s(sMASK, 2)}, {s(sMASK, 2)}, 1")
        b(f"s_mov_b32 {s(sSQP)}, 0")
        for g in range(4, 0, -1):
            b(f"s_lshl_b32 {s(sT0)}, {s(sSQP)}, 8")
            b(f"s_or_b32 {s(sT0)}, {s(sT0)}, {4 * g}")
            if g < 4:
                b(f"s_cmp_lg_u32 {s(sTB + g)}, {s(sTB + g + 1)}")
                b(f"s_cselect_b32 {s(sT0)}, {s(sT0)}, {s(sSQP)}")
            b(f"s_cmp_gt_u32 {s(sTB + g)}, {s(sTL)}")
            b(f"s_cselect_b32 {s(sSQP)}, {s(sT0)}, {s(sSQP)}")
        b(f"s_mov_b32 {s(sSQS)}, {s(sSQP)}")
        group_of(b, sLO0, sTL)
        b(f"s_lshl_b32 {s(sLO0)}, {s(sLO0)}, 2")
        b(f"s_lshl_b32 {s(sT0)}, {s(sREM)}, 11")
        b(f"v_add_u32 {v(vS)}, {s(sT0)}, {v(tF)}")
        b(f"s_mul_i32 {s(sT0)}, {s(sREM)}, {2 * XT}")
        b(f"s_add_u32 {s(sT0)}, {s(sT0)}, {LX}")
        b(f"s_add_u32 {s(sT1)}, {s(sT0)}, 256")
        b(f"v_and_b32 {v(t0)}, 15, {v(vLN)}")
        b(f"v_cmp_eq_u32 vcc, 0, {v(vXS)}")
        b(f"v_lshl_add_u32 {v(t4)}, {v(t0)}, 4, {s(sT0)}")
        b(f"v_lshl_add_u32 {v(t5)}, {v(t0)}, 3, {s(sT1)}")
        b(f"v_mov_b32 {v(t1)}, {LZ}")
        b(f"v_cndmask_b32 {v(vX1)}, {v(t4)}, {v(t1)}, vcc")
        b(f"v_cndmask_b32 {v(vX2)}, {v(t5)}, {v(t1)}, vcc")
        b(f"s_sub_u32 {s(sREM)}, {s(sPEND)}, {s(sREM)}")
        b(f"s_sub_u32 {s(sREM)}, {s(sREM)}, 1")

    def scatter(r, slot):
        a(f"v_bfe_u32 {v(t0)}, {v(r + 1)}, 19, 3")
        a(f"v_cmp_lt_i32 vcc, {slot}, {v(tN)}")
        a(f"v_mul_u32_u24 {v(t0)}, 10, {v(t0)}")
        a(f"v_lshrrev_b32 {v(t1)}, 22, {v(r + 1)}")
        a(f"v_lshrrev_b64 {v(t2, 2)}, {v(t0)}, {v(tV, 2)}")
        a(f"v_and_b32 {v(t2)}, 1023, {v(t2)}")
        a(f"v_add_lshl_u32 {v(t2)}, {v(t2)}, {v(t1)}, 2")
        a(f"v_add_u32 {v(t2)}, {LL}, {v(t2)}")
        a("s_mov_b64 exec, vcc")
        a(f"ds_write_b32 {v(t2)}, {v(r)}")
        a(f"ds_write_b32 {v(t2)}, {v(r + 1)} offset:{LE - LL}")
        a("s_mov_b64 exec, -1")

    a(f"s_waitcnt vmcnt({NW2 + (2 if HPOS == 'rec' else 0)})")
    a.stamp()
    rest = W1L[NW1 + NW2:]
    for i, slot in enumerate((0, 1, 4, 5)):
        scatter(tR + 2 * i, slot)
        emit(a, rest[(i * NW3) // 4:((i + 1) * NW3) // 4])
    a(f"v_cmp_lt_i32 vcc, 8, {v(tN)}")
    a(f"s_cmp_eq_u32 {s(sFIRST)}, 0")
    a("s_cbranch_scc1 K2_NOTAB")
    a(f"v_and_b32 {v(t0)}, 255, {v(vTID)}")
    a(f"v_lshlrev_b32 {v(t0)}, 1, {v(t0)}")
    a(f"v_add_u32 {v(t0)}, {LWX}, {v(t0)}")
    a(f"ds_write_b16 {v(t0)}, {v(tWX)}")
    a(f"v_lshlrev_b32 {v(t0)}, 2, {v(vLN)}")
    a(f"v_add_u32 {v(t0)}, {LPD}, {v(t0)}")
    a(f"ds_write_b32 {v(t0)}, {v(tPP)}")
    a.label("K2_NOTAB")
    a("s_cbranch_vccnz K2_MORE")
    a.label("K2_NOMORE")
    main, a = a, Asm()
    a.label("K2_MORE")
    a(f"v_add_u32 {v(tO0)}, 32, {v(tO0)}")
    a(f"v_subrev_u32 {v(tN)}, 4, {v(tN)}")
    a(f"buffer_load_dwordx4 {v(tR, 4)}, {v(tO0)}, {s(S_REC, 4)}, 0 offen offset:32")
    a("s_waitcnt vmcnt(0)")
    scatter(tR, 4)
    scatter(tR + 2, 5)
    a(f"v_cmp_lt_i32 vcc, 8, {v(tN)}")
    a("s_nop 4")
    a("s_cbranch_vccnz K2_MORE")
    a("s_branch K2_NOMORE")
    far += a.lines
    a = main
    a(f"s_waitcnt vmcnt({NW2 + NW3}) lgkmcnt(0)" if HPOS == "rec" else "s_waitcnt lgkmcnt(0)")
    a("s_barrier")
    a.stamp()

    a(f"ds_read2st64_b32 {v(tW, 2)}, {v(tI)} offset1:8")
    a(list_read(0))
    a(f"v_add_u32 {v(tI)}, {LE - LL}, {v(tI)}")
    a(f"ds_read2st64_b32 {v(tM, 2)}, {v(tI)} offset1:8")
    a(f"v_cmp_gt_u32 vcc, {CAP - 512}, {v(vTID)}")
    a(f"v_mov_b32 {v(t0)}, {MARK}")
    a("s_waitcnt lgkmcnt(2)")
    a(f"v_cndmask_b32 {v(tW + 1)}, {v(t0)}, {v(tW + 1)}, vcc")
    for r in range(2):
        a(f"v_lshrrev_b32 {v(tPS + 2 * r)}, 9, {v(tW + r)}")
        a(f"v_mul_u32_u24 {v(tPS + 2 * r)}, 6, {v(tPS + 2 * r)}")
        a(f"v_and_b32 {v(tPS + 2 * r)}, -4, {v(tPS + 2 * r)}")
    POSL = [f"buffer_load_dwordx2 {v(tPS + 2 * r, 2)}, {v(tPS + 2 * r)}, {s(S_POS, 4)}, 0 offen" for r in range(2)]
    ORDER = os.environ.get("ORDER", "dd:ppdd")
    ops = {"p": list(POSL), "d": dma(0) + dma(1)}
    first, later = ORDER.split(":")
    if first.startswith("p"):
        a(ops["p"].pop(0))
        first = first[1:]
    a(f"s_mov_b32 {s(sT0)}, {LPD}")
    a("s_waitcnt lgkmcnt(0)")
    emit(a, LST_ADD)
    emit(a, [ops[c].pop(0) for c in first])
    for r in range(2):
        a(f"v_bfe_u32 {v(t1)}, {v(tM + r)}, 16, 6")
        a(f"v_mad_u32_u24 {v(t1)}, {v(t1)}, 6, {s(sT0)}")
        for c in range(3):
            a(f"ds_read_u16_d16_hi {v(tPD + 3 * r + c)}, {v(t1)} offset:{2 * c}")
    LATE = [ops[c].pop(0) for c in later]
    NEARLY = 6 - len(LATE)
    allops = ORDER.replace(":", "")
    POSW = 5 - allops.rindex("p")

    def dense(b, r):
        ps, pd, w, m, de = tPS + 2 * r, tPD + 3 * r, tW + r, tM + r, T + 44
        b(f"v_mov_b32 {v(t5)}, 0x3f80")
        b(f"s_mov_b32 {s(sT1)}, 0xffff0000")
        b(f"s_mov_b32 {s(sT2)}, 0x01000100")
        b(f"v_bfe_u32 {v(t0)}, {v(w)}, 9, 1")
        b(f"v_lshlrev_b32 {v(t0)}, 4, {v(t0)}")
        b(f"v_alignbit_b32 {v(ps)}, {v(ps + 1)}, {v(ps)}, {v(t0)}")
        b(f"v_lshrrev_b32 {v(ps + 1)}, {v(t0)}, {v(ps + 1)}")
        b(f"v_lshlrev_b32 {v(t0)}, 16, {v(ps)}")
        b(f"v_and_b32 {v(t1)}, {s(sT1)}, {v(ps)}")
        b(f"v_lshlrev_b32 {v(t2)}, 16, {v(ps + 1)}")
        for c in range(3):
            b(f"v_sub_f32 {v(t0 + c)}, {v(pd + c)}, {v(t0 + c)}")
        b(f"v_cvt_pk_bf16_f32 {v(ps)}, {v(t0)}, {v(t1)}")
        b(f"v_cvt_pk_bf16_f32 {v(ps + 1)}, {v(t2)}, {v(t2)}")
        b(f"v_lshlrev_b32 {v(t0)}, 16, {v(ps)}")
        b(f"v_and_b32 {v(t1)}, {s(sT1)}, {v(ps)}")
        b(f"v_and_b32 {v(t2)}, {s(sT1)}, {v(ps + 1)}")
        b(f"v_mul_f32 {v(t0)}, {v(t0)}, {v(t0)}")
        b(f"v_fmac_f32 {v(t0)}, {v(t1)}, {v(t1)}")
        b(f"v_fmac_f32 {v(t0)}, {v(t2)}, {v(t2)}")
        b(f"v_cmp_gt_u32 vcc, {MARK}, {v(w)}")
        b(f"v_cvt_pk_bf16_f32 {v(de)}, {v(t0)}, {v(t0)}")
        b(f"v_perm_b32 {v(de + 1)}, {v(m)}, {v(m)}, {s(sT2)}")
        b(f"v_bfe_u32 {v(t1)}, {v(m)}, 16, 3")
        b(f"v_lshl_add_u32 {v(t0)}, {v(t1)}, 4, {v(tAS)}")
        b(f"v_lshl_add_u32 {v(t1)}, {v(t1)}, 1, {v(tAX)}")
        return ["s_mov_b64 exec, vcc",
                f"ds_write_b16 {v(t0)}, {v(t5)} offset:{32768 * r}",
                f"ds_write_b16 {v(t0)}, {v(ps)} offset:{32768 * r + 128}",
                f"ds_write_b16_d16_hi {v(t0)}, {v(ps)} offset:{32768 * r + 256}",
                f"ds_write_b16 {v(t0)}, {v(ps + 1)} offset:{32768 * r + 384}",
                f"ds_write_b16 {v(t1)}, {v(t5)} offset:{32 * XT * r}",
                f"ds_write_b64 {v(tAX + 1)}, {v(de, 2)} offset:{256 + 32 * XT * r}",
                "s_mov_b64 exec, -1"]

    def dense_second():
        n = fresh()
        a(f"s_lshl_b32 {s(sT0)}, {s(sWV)}, 2")
        a(f"s_add_u32 {s(sT0)}, {s(sT0)}, 32")
        a(f"s_cmp_ge_u32 {s(sT0)}, {s(sTB + 5)}")
        a(f"s_cbranch_scc1 K2_ND{n}")
        emit(a, dense(a, 1))
        a.label(f"K2_ND{n}")

    a(f"s_cmp_eq_u32 {s(sFIRST)}, 0")
    a("s_cbranch_scc1 K2_NOA")

    def hreads(hf, kk):
        return [f"ds_read_b128 {v(hf + 12 * (kk & 1) + 4 * nt, 4)}, {v(vHB + (kk & 3))} offset:{8192 * nt + 256 * (kk >> 2)}" for nt in range(3)]

    def a_steps(kks, fill, late=()):
        per = (len(fill) + len(kks) - 1) // len(kks)
        late = list(late)
        for i, kk in enumerate(kks):
            a(f"s_waitcnt vmcnt({NEARLY}) lgkmcnt(0)" if kk == 0 else "s_waitcnt lgkmcnt(0)")
            if kk < 7:
                emit(a, hreads(HF, kk + 1))
            mf = []
            for nt in range(3):
                for ct in range(2):
                    d = AG + 8 * nt + 4 * ct
                    mf.append(mf16(d, HF + 12 * (kk & 1) + 4 * nt, 8 * kk + 4 * ct, "0" if kk == 0 else d))
            mine = fill[i * per:(i + 1) * per]
            emit(a, place(mine, [((j * len(mine)) // 6, mf[j]) for j in range(6)]))
            for _ in range(LPS[i] if late else 0):
                a(late.pop(0))
        assert not late

    assert NW4 == 0
    LPS = [int(x) for x in os.environ.get("LPS", "2,2,0,0,0").split(",")]
    DK = len(LPS)
    emit(a, hreads(HF, 0))
    a_steps(list(range(DK)), capture(wde_consts) + capture(batch_consts), LATE)
    a.stamp()
    a(f"s_waitcnt vmcnt({POSW})")
    a.stamp()
    b = Asm()
    tail = dense(b, 0)
    a_steps(list(range(DK, 8)), b.lines)
    emit(a, tail)
    dense_second()
    a.stamp()
    a(f"s_lshl_b32 {s(sT0)}, {s(sWV)}, 9")
    a(f"s_add_u32 {s(sT0)}, {s(sT0)}, {LM}")
    a(f"v_and_b32 {v(t0)}, 15, {v(vLN)}")
    a(f"v_lshlrev_b32 {v(t0)}, 4, {v(t0)}")
    a(f"v_bfe_u32 {v(t1)}, {v(vLN)}, 4, 1")
    a(f"v_lshl_or_b32 {v(t0)}, {v(t1)}, 3, {v(t0)}")
    a(f"v_lshrrev_b32 {v(t1)}, 5, {v(vLN)}")
    a(f"v_lshl_or_b32 {v(t0)}, {v(t1)}, 12, {v(t0)}")
    a(f"v_add_u32 {v(t0)}, {s(sT0)}, {v(t0)}")
    for nt in range(3):
        for p in range(4):
            a(f"v_pk_mul_f32 {v(AG + 8 * nt + 2 * p, 2)}, {v(AG + 8 * nt + 2 * p, 2)}, {s(sC0, 2)}")
        for p in range(4):
            a(f"v_cvt_pk_bf16_f32 {v(HF + 4 * nt + p)}, {v(AG + 8 * nt + 2 * p)}, {v(AG + 8 * nt + 2 * p + 1)}")
        for ct in range(2):
            a(f"ds_write_b64 {v(t0)}, {v(HF + 4 * nt + 2 * ct, 2)} offset:{8192 * nt + 256 * ct}")
    a(f"s_lshl_b32 {s(sT0)}, {s(sQ)}, 10")
    a(f"s_add_u32 {s(sT0)}, {s(sT0)}, {LM}")
    a(f"v_add_u32 {v(t0)}, {s(sT0)}, {v(tF)}")
    assert allops.endswith("dd")
    a("s_waitcnt vmcnt(2) lgkmcnt(0)")
    emit(a, frag_reads(0)[:2] + [list_read(1)])
    a("s_barrier")
    a.stamp()
    for g in range(5):
        a(f"ds_read_b128 {v(Y2Q + 4 * g, 4)}, {v(t0)} offset:{4096 * g}")
    a.label("K2_READY")
    emit(a, frag_reads(0)[2:])
    a("s_waitcnt lgkmcnt(0)")
    a("s_barrier")
    a.stamp()
    a(f"s_set_gpr_idx_on {s(sLO0)}, gpr_idx(SRC0)")
    for i in range(4):
        a(f"v_mov_b32 {v(Y2C + i)}, {v(Y2Q + i)}")
    a("s_set_gpr_idx_off")
    a(f"s_mov_b32 m0, {s(sRB)}")
    a(f"s_cmp_lt_i32 {s(sREM)}, 0")
    a("s_cbranch_scc1 K2_IDLE")
    emit(a, LST_ADD + dma(0))
    emit(a, p_mfmas(YA))
    a("s_waitcnt vmcnt(2)")
    emit(a, frag_reads(1))
    a(f"v_add_u32 {v(vX1)}, {v(vXS)}, {v(vX1)}")
    a(f"v_add_u32 {v(vX2)}, {v(vXS)}, {v(vX2)}")
    a(".p2align 6")
    a.label("K2_LOOP")
    abl = os.environ.get("ABL", "")
    for ln in loop_body(far):
        if ("w" in abl and ln.startswith("s_waitcnt vmcnt")) or ("d" in abl and ln.startswith("buffer_load")) or \
           ("l" in abl and ln.startswith("ds_read")) or ("m" in abl and ln.startswith("v_mfma")) or \
           ("t" in abl and (ln.startswith("v_exp") or ln.startswith("v_rcp"))) or \
           ("i" in abl and ln.startswith("v_mfma") and (v(ID, 4) in ln or v(ID + 4, 4) in ln)) or \
           ("o" in abl and ln.startswith("v_mfma") and v(QUA, 2) in ln) or \
           ("s" in abl and ln.startswith("v_mfma") and v(SP, 4) in ln) or \
           ("y" in abl and ln.startswith("v_mfma") and (v(Y2C, 4) in ln or v(Y2K, 2) in ln)) or \
           ("f" in abl and ln.startswith("s_cbranch_scc1 K2_H")):
            continue
        a(ln)
    a("s_cbranch_scc0 K2_LOOP")
    chk, o = site(-1, None, YB, [EA_ + 4 * k for k in range(4)])
    far += o
    a("s_setprio 0")
    a("s_waitcnt lgkmcnt(0)")
    MA, CA, HR, W1, MF, XR, XF = 0, 24, 48, 64, 128, AF, 60
    GR = [164, 166, 168, 170, 180, 182]
    eO, eM, eF, e0 = 176, 173, vF16, 179

    def row_bases(b):
        b(f"v_and_b32 {v(XR)}, 15, {v(vLN)}")
        b(f"v_and_b32 {v(XR + 2)}, 48, {v(vLN)}")
        b(f"v_mul_u32_u24 {v(XR + 3)}, {MROW}, {v(XR)}")
        b(f"v_add_u32 {v(XR + 3)}, {v(XR + 3)}, {v(XR + 2)}")
        b(f"v_lshrrev_b32 {v(XR + 1)}, 3, {v(XR)}")
        b(f"v_lshrrev_b32 {v(XR + 1)}, {v(XR + 1)}, {s(sWRT)}")
        b(f"v_mov_b32 {v(XR + 4)}, {LZ}")
        for nt in range(3):
            b(f"v_and_b32 {v(XR + 5)}, {1 << (2 * nt)}, {v(XR + 1)}")
            b(f"v_cmp_ne_u32 vcc, 0, {v(XR + 5)}")
            b(f"v_add_u32 {v(XR + 6)}, {LM + 16 * MROW * nt}, {v(XR + 3)}")
            b("s_nop 0")
            b(f"v_cndmask_b32 {v(eM + nt)}, {v(XR + 4)}, {v(XR + 6)}, vcc")

    rbl = capture(row_bases)
    emit(a, chk + cvts(EB) + rbl[:2] + [S1, S2] + rbl[2:12])
    far += flush_head(a, YB, [EA_ + 4 * k for k in range(4)], False)
    emit(a, rbl[12:] + ["s_nop 1"] + FLUSH_TAIL)
    a.label("K2_DONE")
    a.stamp()
    a(f"s_cmp_lg_u32 {s(sSLOW)}, 0")
    a("s_cbranch_scc1 K2_NEXT")

    a.label("K2_FINAL")
    a(f"s_cmp_ge_u32 {s(sIT)}, 4")
    a("s_cbranch_scc0 K2_WREST")
    def w_load(ct, kk):
        return f"buffer_load_dwordx4 {v(W1 + 32 * ct + 4 * kk, 4)}, {v(eF)}, {s(S_FR, 4)}, {s(S_TMP + 2 * ct + (kk >> 2))} offen offset:{1024 * (kk & 3)}"

    a(f"s_sub_u32 {s(S_TMP)}, {s(sWB)}, {FR_ONE}")
    for i in range(1, 4):
        a(f"s_add_u32 {s(S_TMP + i)}, {s(S_TMP)}, {4096 * i}")
    a("s_waitcnt lgkmcnt(0)")
    NB4 = int(os.environ.get("NB4", "4"))
    allw = [w_load(ct, kk) for ct in range(2) for kk in range(8)]
    emit(a, allw[:NB4])
    a(f"s_lshl_b32 {s(sT0)}, {s(sWV)}, 6")
    a(f"s_and_b32 {s(sT1)}, {s(sT0)}, 192")
    a(f"s_and_b32 {s(sT2)}, {s(sT0)}, 256")
    a(f"v_xor_b32 {v(e0)}, {s(sT1)}, {v(vHB)}")
    a(f"v_add_u32 {v(e0)}, {s(sT2)}, {v(e0)}")
    for nt in range(3):
        a(f"ds_read_b128 {v(HR + 4 * nt, 4)}, {v(e0)} offset:{8192 * nt}")
    a.stamp()
    a("s_barrier")
    a.stamp()

    def late_setup(b):
        XR = CA
        b(f"v_and_b32 {v(XR)}, 15, {v(vLN)}")
        b(f"v_and_b32 {v(XR + 2)}, 48, {v(vLN)}")
        b(f"s_lshl_b32 {s(sT0)}, {s(sWV)}, 6")
        b(f"s_mul_i32 {s(sT1)}, s2, {40 * 512}")
        b(f"s_add_u32 {s(sWRT)}, {s(sT0)}, {s(sT1)}")
        b(f"v_bfe_u32 {v(XR + 1)}, {v(vLN)}, 1, 2")
        b(f"v_lshlrev_b32 {v(XR + 1)}, 4, {v(XR + 1)}")
        b(f"v_xor_b32 {v(XR + 1)}, {v(XR + 1)}, {v(XR + 2)}")
        b(f"v_lshl_or_b32 {v(XR + 1)}, {v(XR)}, 6, {v(XR + 1)}")
        b(f"v_add_u32 {v(eO + 1)}, {s(sRB)}, {v(XR + 1)}")
        b(f"v_bfe_u32 {v(XR + 1)}, {v(vLN)}, 3, 2")
        b(f"v_xor_b32 {v(XR + 1)}, {v(XR + 1)}, {v(vLN)}")
        b(f"v_lshl_add_u32 {v(eO + 2)}, {v(XR + 1)}, 4, {s(sRB)}")
        b(f"v_lshrrev_b32 {v(XR + 1)}, 2, {v(vLN)}")
        b(f"v_and_b32 {v(XR + 3)}, 3, {v(vLN)}")
        b(f"v_lshlrev_b32 {v(XR + 3)}, 4, {v(XR + 3)}")
        b(f"v_lshl_or_b32 {v(eO)}, {v(XR + 1)}, 9, {v(XR + 3)}")
        b(f"s_mov_b32 {s(sE0)}, 0x00ff00ff")
        b(f"s_bitcmp1_b32 {s(sGX)}, 0")
        b(f"s_cselect_b32 {s(sE0)}, 0xff00ff00, {s(sE0)}")
        b(f"s_mov_b32 {s(sE0 + 1)}, {s(sE0)}")
        b(f"s_mov_b32 {s(sC0)}, {LOG2E}")
        b(f"s_mov_b32 {s(sC0 + 1)}, {LOG2E}")
        b(f"s_mov_b32 {s(sE1)}, {LN2}")
        b(f"s_mov_b32 {s(sE1 + 1)}, {LN2}")
        b(f"s_mov_b32 {s(sT1)}, 0xffff0000")

    seq = [(kind, ct, kk) for kind, ct in (("m", 0), ("c", 0), ("c", 1)) for kk in range(8)]

    def ereads(n):
        kind, ct, kk = seq[n]
        r = MF + 12 * (n % 3)
        if kind == "m":
            return [f"ds_read_b128 {v(r + 4 * nt, 4)}, {v(eM + nt)} offset:{64 * kk}" for nt in range(3)]
        return [f"ds_read_b128 {v(r + 4 * nt, 4)}, {v(vHB + (kk & 3))} offset:{8192 * nt + 256 * (kk >> 2)}" for nt in range(3)]

    def step(n):
        kind, ct, kk = seq[n]
        vm = {("m", 0, 0): f"vmcnt({NB4}) ", ("c", 0, 0): "vmcnt(8) "}.get(seq[n], f"vmcnt({7 - kk}) " if (kind, ct) == ("c", 1) else "")
        out = [f"s_waitcnt {vm}lgkmcnt({3 if n + 1 < len(seq) else 0})"]
        if n + 2 < len(seq):
            out += ereads(n + 2)
        for nt in range(3):
            for c in ((0, 1) if kind == "m" else (ct,)):
                d = (MA if kind == "m" else CA) + 8 * nt + 4 * c
                out.append(mf16(d, (WH2 if kind == "m" else W1) + 32 * c + 4 * kk, MF + 12 * (n % 3) + 4 * nt, "0" if kk == 0 else d))
        return out

    def pos_update(b):
        b(f"s_cmp_ge_u32 {s(sWV)}, 2")
        b("s_cbranch_scc1 K2_NOPOS")
        b(f"v_mul_u32_u24 v63, 21846, {v(vTID)}")
        b(f"v_lshrrev_b32 v63, 16, v63")
        b(f"v_mul_u32_u24 v180, 3, v63")
        b(f"v_sub_u32 v180, {v(vTID)}, v180")
        b(f"v_and_b32 v181, 7, v63")
        b(f"v_lshl_add_u32 v180, v180, 3, v181")
        b(f"v_lshlrev_b32 v180, 2, v180")
        b(f"v_add_u32 v180, {LPOS + 32}, v180")
        b(f"v_lshrrev_b32 v63, 3, v63")
        b(f"v_lshl_add_u32 v181, v63, 9, v180")
        b(f"v_add_u32 v180, {5 * 512}, v180")
        b("ds_read2_b32 v[164:165], v181 offset1:32")
        b("ds_read2_b32 v[166:167], v181 offset0:64 offset1:96")
        b("ds_read2_b32 v[168:169], v180 offset1:32")
        b("ds_read2_b32 v[170:171], v180 offset0:64 offset1:96")
        b(f"v_lshlrev_b32 v61, 1, {v(vTID)}")
        b(f"v_add_u32 v182, {LPD}, v61")
        b(f"ds_read_u16 v62, v182")
        b(f"v_cmp_gt_u32 vcc, 120, {v(vTID)}")
        b(f"s_mul_i32 {s(sBT)}, s2, 240")
        b(f"s_add_u32 {s(sBT)}, {s(sBT)}, {N * 512}")
        b(f"v_mov_b32 v60, {MARK}")
        b(f"v_cndmask_b32 v60, v60, v61, vcc")
        b(f"v_cmp_eq_u32 vcc, {s(sGX)}, v63")
        b("s_waitcnt lgkmcnt(0)")
        b("v_pk_add_f32 v[164:165], v[164:165], v[166:167]")
        b("v_pk_add_f32 v[168:169], v[168:169], v[170:171]")
        b("v_lshlrev_b32 v62, 16, v62")
        b("v_add_f32 v164, v164, v165")
        b("v_add_f32 v168, v168, v169")
        b("v_cndmask_b32 v168, 0, v168, vcc")
        b("v_add_f32 v164, v164, v168")
        b(f"v_fma_f32 v62, v164, {s(sE1)}, v62")
        b("v_cvt_pk_bf16_f32 v62, v62, v62")
        b.label("K2_NOPOS")

    def fix_move(ct):
        n = fresh()
        far.extend([f"K2_XO{n}:"] + [f"v_mov_b32 {v(XF + i)}, {v(MA + 16 + 4 * ct + i)}" for i in range(4)] + [f"s_branch K2_XD{n}"])
        return [f"s_bitcmp1_b32 {s(sGX)}, 0", f"s_cbranch_scc1 K2_XO{n}"] + \
               [f"v_mov_b32_dpp {v(XF + i)}, {v(MA + 16 + 4 * ct + i)} row_ror:8 row_mask:0xf bank_mask:0xf" for i in range(4)] + [f"K2_XD{n}:"]

    def fix_add(ct):
        return [f"s_lshr_b32 {s(sT0)}, {s(sGX)}, 1", f"s_lshl_b32 {s(sT0)}, {s(sT0)}, 3", f"s_mov_b64 exec, {s(sE0, 2)}",
                f"s_set_gpr_idx_on {s(sT0)}, gpr_idx(SRC1,DST)"] + \
               [f"v_add_f32 {v(MA + 4 * ct + i)}, {v(XF + i)}, {v(MA + 4 * ct + i)}" for i in range(4)] + \
               ["s_set_gpr_idx_off", "s_mov_b64 exec, -1"]

    rest = allw[NB4:]
    per = [len(rest) // 8 + (1 if n < len(rest) % 8 else 0) for n in range(8)]
    fill = capture(late_setup)
    assert len(fill) <= 40
    emit(a, ereads(0) + ereads(1))
    for n in range(8):
        st, mine = step(n), fill[5 * n:5 * n + 5] + [rest.pop(0) for _ in range(per[n])]
        emit(a, st[:4] + place(mine, [((j * len(mine)) // 6, st[4 + j]) for j in range(6)]))
    for n in range(8, 16):
        emit(a, step(n) + (fix_move(n - 10) + fix_add(n - 10) if n in (10, 11) else capture(pos_update) if n == 12 else []))
    a.stamp()

    def silu(ct, packed, nts=(0, 1, 2)):
        regs = [(nt, p) for nt in nts for p in range(2)]
        z = lambda nt, p: MA + 8 * nt + 4 * ct + 2 * p
        c = lambda nt, p: CA + 8 * nt + 4 * ct + 2 * p
        g = lambda nt, p: GR[2 * nt + p]
        out = []

        def two(pk, plain):
            for nt, p in regs:
                if packed:
                    out.append(pk(z(nt, p), c(nt, p), g(nt, p)))
                else:
                    out.extend(plain(z(nt, p) + i, c(nt, p) + i, g(nt, p) + i) for i in range(2))
        two(lambda z_, c_, g_: f"v_pk_fma_f32 {v(z_, 2)}, {v(c_, 2)}, {s(sC0, 2)}, {v(z_, 2)}",
            lambda z_, c_, g_: f"v_fmac_f32 {v(z_)}, {s(sC0)}, {v(c_)}")
        for nt, p in regs:
            out += [f"v_exp_f32 {v(g(nt, p) + i)}, -{v(z(nt, p) + i)}" for i in range(2)]
        two(lambda z_, c_, g_: f"v_pk_add_f32 {v(g_, 2)}, {v(g_, 2)}, 1.0 op_sel_hi:[1,0]",
            lambda z_, c_, g_: f"v_add_f32 {v(g_)}, 1.0, {v(g_)}")
        for nt, p in regs:
            out += [f"v_rcp_f32 {v(g(nt, p) + i)}, {v(g(nt, p) + i)}" for i in range(2)]
        two(lambda z_, c_, g_: f"v_pk_mul_f32 {v(g_, 2)}, {v(g_, 2)}, {v(z_, 2)}",
            lambda z_, c_, g_: f"v_mul_f32 {v(g_)}, {v(g_)}, {v(z_)}")
        for nt, p in regs:
            out.append(f"v_lshlrev_b32 {v(z(nt, p))}, 16, {v(HR + 4 * nt + 2 * ct + p)}")
            out.append(f"v_and_b32 {v(z(nt, p) + 1)}, {s(sT1)}, {v(HR + 4 * nt + 2 * ct + p)}")
        two(lambda z_, c_, g_: f"v_pk_fma_f32 {v(g_, 2)}, {v(g_, 2)}, {s(sE1, 2)}, {v(z_, 2)}",
            lambda z_, c_, g_: f"v_fma_f32 {v(g_)}, {v(g_)}, {s(sE1)}, {v(z_)}")
        for nt, p in regs:
            out.append(f"v_cvt_pk_bf16_f32 {v(HR + 4 * nt + 2 * ct + p)}, {v(g(nt, p))}, {v(g(nt, p) + 1)}")
        return out

    sl = silu(0, False)
    emit(a, step(16) + ["s_nop 0"] + place(sl, [(9 * (n - 17) + 3, step(n)) for n in range(17, 24)]))
    def stage(nt):
        return [f"ds_write_b128 {v(eO + 1)}, {v(HR + 4 * nt, 4)} offset:{1024 * nt}",
                f"ds_read_b128 {v(MF + 4 * nt, 4)}, {v(eO + 2)} offset:{1024 * nt}"]

    def store(nt):
        st = f"buffer_store_dwordx4 {v(MF + 4 * nt, 4)}, {v(eO)}, {s(S_OUT, 4)}, {s(sWRT)} offen {os.environ.get('F3', 'sc0 sc1')}"
        if nt == 2:
            return ["s_waitcnt lgkmcnt(0)", "s_mov_b32 exec_hi, 0", st]
        return ["s_waitcnt lgkmcnt(0)", st, f"s_add_u32 {s(sWRT)}, {s(sWRT)}, 8192"]

    def pad(lines):
        out = []
        for ln in lines:
            if out and out[-1].startswith(("v_exp", "v_rcp")) and not ln.startswith(("v_exp", "v_rcp")):
                out.insert(len(out), "s_nop 0") if out[-1].split()[1].rstrip(",") in regs_in(ln) else None
            out.append(ln)
        return out

    a(f"s_cmp_ge_u32 {s(sWV)}, 2")
    a("s_cbranch_scc1 K2_NOPST")
    a(f"buffer_store_short v62, v60, {s(S_OUT, 4)}, {s(sBT)} offen {os.environ.get('F5', 'sc0 sc1')}")
    a.label("K2_NOPST")
    emit(a, pad(silu(1, True, (0,))) + stage(0))
    emit(a, pad(silu(1, True, (1,))) + store(0) + stage(1))
    emit(a, pad(silu(1, True, (2,))) + store(1) + stage(2) + store(2))
    a("s_mov_b64 exec, -1")
    a.stamp()
    a.stamp(True)
    if a.stamps:
        a(f"s_mov_b32 {s(S_BP + 2)}, {16 << 20}")
    a.dump_stamps(S_BP, STAMP2_OFF - BP_OFF + 3072, 0, sWV, sT0)
    a.label("K2_END")
    a("s_endpgm")

    emit(a, far)
    a.label("K2_WREST")
    wh2_part(a, fresh(), "K2_FINAL")

    a.label("K2_NOA")
    emit(a, LATE)
    batch_consts(a)
    dense_addr(a)
    a("s_waitcnt vmcnt(0) lgkmcnt(0)")
    emit(a, dense(a, 0))
    dense_second()
    a("s_waitcnt lgkmcnt(0)")
    emit(a, frag_reads(0)[:2] + [list_read(1)])
    a("s_barrier")
    a("s_branch K2_READY")
    a.label("K2_IDLE")
    late_state(a)
    emit(a, capture(row_bases))
    a("s_branch K2_DONE")
    a.label("K2_OVER")
    a(f"s_cmp_lg_u32 {s(sSLOW)}, 0")
    a("s_cbranch_scc1 K2_FITS")
    a(f"s_mov_b32 {s(sSLOW)}, 1")
    a(f"s_mov_b32 {s(sLO)}, 0")
    a(f"s_mov_b32 {s(sTOT)}, {s(sBT)}")
    a(f"v_add_u32 {v(tT)}, {s(sTL)}, {v(tT)}")
    lane_setup()
    a(f"v_lshrrev_b32 {v(t2)}, 1, {v(t2)}")
    a(f"v_add_u32 {v(t2)}, 40960, {v(t2)}")
    a(f"buffer_store_dword {v(tT)}, {v(t2)}, {s(S_TMP, 4)}, 0 offen")
    a(f"v_lshlrev_b32 {v(t0)}, 4, {v(vTID)}")
    for r in range(5):
        a(f"buffer_store_dwordx4 {v(ZER, 4)}, {v(t0)}, {s(S_TMP, 4)}, 0 offen")
        a(f"v_add_u32 {v(t0)}, 8192, {v(t0)}")
    a("s_waitcnt vmcnt(0) lgkmcnt(0)")
    a("s_barrier")
    a("s_branch K2_SETUP")
    a.label("K2_NEXT")
    a("s_waitcnt vmcnt(0) lgkmcnt(0)")
    a("s_barrier")
    a(f"s_mov_b32 {s(sFIRST)}, 0")
    a(f"s_add_u32 {s(sLO)}, {s(sLO)}, {s(sBT)}")
    a(f"s_cmp_ge_u32 {s(sLO)}, {s(sTOT)}")
    a("s_cbranch_scc1 K2_LAST")
    a(f"s_cmp_eq_u32 {s(sBT)}, 0")
    a("s_cbranch_scc1 K2_LAST")
    emit(a, lds_init(a, False))
    a.label("K2_SETUP")
    lane_setup()
    a(f"buffer_load_dwordx2 {v(tDL, 2)}, {v(t2)}, {s(S_DESC, 4)}, 0 offen")
    a(f"v_lshrrev_b32 {v(t2)}, 1, {v(t2)}")
    a(f"v_add_u32 {v(t2)}, 40960, {v(t2)}")
    a(f"buffer_load_dword {v(t2)}, {v(t2)}, {s(S_TMP, 4)}, 0 offen sc1")
    lane_setup2()
    w1_pages()
    a("s_waitcnt vmcnt(0) lgkmcnt(0)")
    a(f"v_and_b32 {v(t0)}, 1023, {v(tDL)}")
    a(f"v_lshrrev_b32 {v(t1)}, 20, {v(tDH)}")
    a(f"v_sub_u32 {v(t0)}, {v(t1)}, {v(t0)}")
    a(f"v_sub_u32 {v(t0)}, {v(t2)}, {v(t0)}")
    a(f"s_add_u32 {s(sT0)}, {s(sLO)}, {LIMIT}")
    a(f"v_cmp_le_u32 vcc, {s(sLO)}, {v(t0)}")
    a(f"v_cmp_ge_u32 {s(sT2, 2)}, {s(sT0)}, {v(t2)}")
    a("s_nop 1")
    a(f"s_and_b64 vcc, vcc, {s(sT2, 2)}")
    a("s_nop 1")
    a(f"v_cndmask_b32 {v(tDL)}, 0, {v(tDL)}, vcc")
    a(f"v_cndmask_b32 {v(tDH)}, 0, {v(tDH)}, vcc")
    a("s_branch K2_BATCH")
    a.label("K2_LAST")
    a(f"v_lshlrev_b32 v0, 6, {v(vTID)}")
    a(f"v_lshrrev_b32 v1, 4, {v(vTID)}")
    a(f"v_mul_u32_u24 v1, {MROW}, v1")
    a(f"v_and_b32 v2, 15, {v(vTID)}")
    a(f"v_lshl_add_u32 v1, v2, 5, v1")
    a(f"v_add_u32 v1, {LM}, v1")
    for r in range(2):
        for k in range(4):
            a(f"buffer_load_dwordx4 {v(4 + 4 * k, 4)}, v0, {s(S_TMP, 4)}, 0 offen offset:{16 * k} sc1")
        a("s_waitcnt vmcnt(0)")
        for p in range(8):
            a(f"v_cvt_pk_bf16_f32 {v(20 + p)}, {v(4 + 2 * p)}, {v(5 + 2 * p)}")
        a(f"ds_write_b128 v1, v[20:23] offset:{32 * MROW * r}")
        a(f"ds_write_b128 v1, v[24:27] offset:{32 * MROW * r + 16}")
        if r == 0:
            a(f"v_cmp_gt_u32 vcc, 128, {v(vTID)}")
            a("v_add_u32 v0, 32768, v0")
            a("s_waitcnt lgkmcnt(0)")
            a("s_and_saveexec_b64 s[4:5], vcc")
            a("s_cbranch_execz K2_LAST2")
    a.label("K2_LAST2")
    a("s_mov_b64 exec, -1")
    a("s_branch K2_FINAL")
    return dict(name="edge_kernel", vgpr=256, sgpr=102, grid=256, block=512, lds=K2_LDS)
```
